```python
import torch

def _softmax(x, axis=-1):
    return torch.softmax(x, dim=axis)
def _gelu(x):
    return torch.nn.functional.gelu(x, approximate="tanh")
def _silu(x):
    return torch.nn.functional.silu(x)
def _sigmoid(x):
    return torch.sigmoid(x)
def _layernorm(x, axis=-1, eps=1e-5):
    m = x.mean(dim=axis, keepdim=True)
    v = x.var(dim=axis, keepdim=True, unbiased=False)
    return (x - m) / torch.sqrt(v + eps)
def _scatter_add(tgt, idx, src, axis=0):
    return tgt.clone().index_add_(axis, idx, src)
def _segment_sum(src, seg, n):
    out = torch.zeros((n,) + src.shape[1:], dtype=src.dtype)
    return out.index_add_(0, seg, src)
def _pad(x, pw):
    flat = tuple(v for pair in reversed(pw) for v in pair)
    return torch.nn.functional.pad(x, flat)

kernel_name = 'standalone__edge_featured_mpnn_egc__graph'

def setup_inputs():

    _w = (lambda a: (lambda t: t.to(torch.bfloat16) if t.is_floating_point() else t)(torch.as_tensor(a)))
    N, deg, D, De = 10000, 16, 128, max(16, 1)
    E = N * deg
    return {
        "x": _w((lambda *s: torch.randn(*s, dtype=torch.bfloat16) * 0.1)(N, D)),
        "e_attr": _w((lambda *s: torch.randn(*s, dtype=torch.bfloat16) * 0.1)(E, De)),
        "src": _w((lambda lo, hi, *s: torch.randint(lo, hi, s))(0, N, E).to(torch.int64)),
        "dst": _w((lambda lo, hi, *s: torch.randint(lo, hi, s))(0, N, E).to(torch.int64)),
        "u_w": _w((lambda *s: torch.randn(*s, dtype=torch.bfloat16) * 0.05)(D, D)),
        "v_w": _w((lambda *s: torch.randn(*s, dtype=torch.bfloat16) * 0.05)(D, D)),
        "g_w": _w((lambda *s: torch.randn(*s, dtype=torch.bfloat16) * 0.1)(2 * D + De, D)),
    }

def reference(x, e_attr, src, dst, u_w, v_w, g_w):
    N, D = x.shape
    g_in = torch.concatenate([x[dst], x[src], e_attr], axis=-1)
    eta = _sigmoid(g_in @ g_w)
    hv = x @ v_w
    msg = eta * hv[src]
    agg = _segment_sum(msg, dst, N)
    return _silu(x @ u_w + agg)
```

```python
import sys
NAME = "standalone__edge_featured_mpnn_egc__graph"
N, E = 10000, 160000
NPROD, CH = 64, 2500
CELLS_OFF, TABLE_OFF, WPACK_OFF = 0, 0x200000, 0x800000
TABLE_BYTES = N * 512
NG = 157
NLOG2E = 0xBFB8AA3B
OOB = 0x7FFFF000
L = []
def o(s): L.append("    " + s)
def lab(s): L.append(s + ":")
def srd(d, b, nbytes, off=0):
    if off:
        o(f"s_add_u32 s{d}, s{b}, {hex(off)}"); o(f"s_addc_u32 s{d+1}, s{b+1}, 0")
    else:
        o(f"s_mov_b32 s{d}, s{b}"); o(f"s_mov_b32 s{d+1}, s{b+1}")
    o(f"s_mov_b32 s{d+2}, {hex(nbytes)}"); o(f"s_mov_b32 s{d+3}, 0x00020000")
def vr(a, n): return f"v[{a}:{a+n-1}]"
def mfma(d, a, b, c):
    cs = "0" if c is None else vr(c, 16)
    o(f"v_mfma_f32_32x32x16_bf16 {vr(d,16)}, {vr(a,4)}, {vr(b,4)}, {cs}")

def header():
    src = open("cdna_kernels/%s.s.ref" % NAME).read().split("\n")
    for l in src:
        if l.startswith("; Override"): break
        L.append(l)
    L.append("; @launch kernel=prep_kernel grid=(%d,1,1) block=(512,1,1) lds=81920" % (NPROD + NG + 1))
    L.append("; @launch kernel=%s_kernel grid=(256,1,1) block=(512,1,1) lds=%d" % (NAME, K2_LDS))
    L.append('.amdgcn_target "amdgcn-amd-amdhsa--gfx950"')
    L.append(".text")

def kstart(n):
    L.append(f".globl {n}"); L.append(".p2align 8"); L.append(f".type {n},@function"); lab(n)

def kdesc(n, vg, sg):
    L.append(".p2align 6")
    L.append(f".amdhsa_kernel {n}")
    for k, v in [("next_free_vgpr", vg), ("next_free_sgpr", sg), ("accum_offset", (vg + 3) // 4 * 4),
                 ("group_segment_fixed_size", 0), ("kernarg_size", 80), ("user_sgpr_count", 2),
                 ("user_sgpr_kernarg_segment_ptr", 1), ("system_sgpr_workgroup_id_x", 1)]:
        L.append(f"  .amdhsa_{k} {v}")
    L.append(".end_amdhsa_kernel")

def k1():
    kstart("prep_kernel")
    o(f"s_cmp_ge_u32 s2, {NPROD + NG + 1}"); o("s_cbranch_scc1 K1_END")
    o("s_load_dwordx16 s[4:19], s[0:1], 0")
    o("s_load_dwordx2 s[20:21], s[0:1], 72")
    o(f"s_cmp_ge_u32 s2, {NPROD}"); o("s_cbranch_scc1 K1_GEMM")
    o("v_lshlrev_b32 v1, 2, v0")
    o(f"s_mul_i32 s22, s2, {CH*4}")
    o("v_mov_b32 v20, -1"); o("v_mov_b32 v21, -1"); o("v_mov_b32 v22, -1"); o("v_mov_b32 v23, -1")
    o("v_lshlrev_b32 v2, 4, v0")
    o("v_mov_b32 v24, 0")
    o("s_waitcnt lgkmcnt(0)")
    srd(24, 8, E * 4); srd(28, 10, E * 4); srd(32, 20, 0x200000, CELLS_OFF)
    for i in range(5):
        o(f"s_add_u32 s23, s22, {i*2048}")
        o(f"buffer_load_dword v{4+i}, v1, s[28:31], s23 offen")
        o(f"buffer_load_dword v{10+i}, v1, s[24:27], s23 offen")
    for i in range(4):
        o(f"ds_write_b128 v2, v[20:23] offset:{i*8192}")
    o("ds_write_b32 v1, v24 offset:32768")
    o("v_mov_b32 v25, 1")
    o("s_waitcnt lgkmcnt(0)"); o("s_barrier")
    o(f"v_cmp_gt_u32 s[36:37], {CH - 2048}, v0") if False else None
    o(f"s_movk_i32 s23, {CH - 2048}")
    o("v_cmp_gt_u32 s[36:37], s23, v0")
    for i in range(5):
        o(f"s_waitcnt vmcnt({2*(4-i)+1})")
        if i == 4: o("s_mov_b64 exec, s[36:37]")
        o(f"v_and_b32 v{26+i}, 0xff, v{4+i}")
        o(f"v_lshlrev_b32 v16, 2, v{26+i}")
        o(f"ds_add_rtn_u32 v{32+i}, v16, v25 offset:32768")
    o("s_mov_b64 exec, -1")
    o("s_waitcnt vmcnt(0)")
    for i in range(5):
        o(f"v_lshrrev_b32 v{4+i}, 8, v{4+i}")
        o(f"v_lshl_or_b32 v{4+i}, v{10+i}, 6, v{4+i}")
        o(f"v_add_u32 v16, {i*512}, v0")
        o(f"v_lshl_or_b32 v{4+i}, v16, 20, v{4+i}")
    for i in range(5):
        o(f"s_waitcnt lgkmcnt({4-i})") if i == 0 or True else None
        o(f"v_cmp_gt_u32 vcc, 32, v{32+i}")
        o(f"v_lshlrev_b32 v16, 2, v{32+i}")
        o(f"v_lshl_add_u32 v{38+i}, v{26+i}, 7, v16")
        if i == 4: o("s_and_b64 vcc, vcc, s[36:37]")
        o(f"s_mov_b64 s[{40+2*i}:{41+2*i}], vcc")
    for i in range(5):
        o(f"s_mov_b64 exec, s[{40+2*i}:{41+2*i}]")
        o(f"ds_write_b32 v{38+i}, v{4+i}")
    o("s_mov_b64 exec, -1")
    o("s_waitcnt lgkmcnt(0)"); o("s_barrier")
    o("v_lshrrev_b32 v3, 3, v0")
    o("v_lshlrev_b32 v16, 2, v3")
    for i in range(4):
        o(f"ds_read_b128 {vr(44+4*i,4)}, v2 offset:{i*8192}")
        o(f"ds_read_b32 v{60+i}, v16 offset:{32768 + i*256}")
    o("v_and_b32 v17, 7, v0")
    o("v_cmp_eq_u32 vcc, 0, v17")
    o("v_lshlrev_b32 v17, 4, v17")
    o("v_lshl_add_u32 v17, v3, 13, v17")
    o("v_cndmask_b32 v18, -1, -2, vcc") if False else None
    o("v_mov_b32 v18, -2")
    o("v_cndmask_b32 v18, -1, v18, vcc")
    o("s_lshl_b32 s22, s2, 7")
    for i in range(4):
        o(f"s_waitcnt lgkmcnt({2*(3-i)})")
        o(f"v_cmp_lt_u32 vcc, 32, v{60+i}")
        o(f"s_add_u32 s23, s22, {i*64*8192}")
        o("s_nop 0")
        o(f"v_cndmask_b32 v{44+4*i}, v{44+4*i}, v18, vcc")
        for c in range(1, 4):
            o(f"v_cndmask_b32 v{44+4*i+c}, v{44+4*i+c}, v20, vcc")
        o(f"buffer_store_dwordx4 {vr(44+4*i,4)}, v17, s[32:35], s23 offen")
    o("s_endpgm")
    lab("K1_GEMM")
    o(f"s_sub_u32 s3, s2, {NPROD}")
    o("v_lshlrev_b32 v1, 4, v0")
    o("v_lshrrev_b32 v2, 4, v0")
    o("v_mul_u32_u24 v2, 320, v2")
    o("v_and_b32 v3, 15, v0")
    o("v_lshl_add_u32 v2, v3, 4, v2")
    o("v_lshrrev_b32 v4, 6, v0")
    o("v_and_b32 v5, 63, v0")
    o("v_readfirstlane_b32 s36, v4")
    o("s_waitcnt lgkmcnt(0)")
    o(f"s_cmp_eq_u32 s3, {NG}")
    o("s_cselect_b32 s22, 0, 32768")
    o("s_cselect_b32 s28, s12, s14"); o("s_cselect_b32 s29, s13, s15")
    o("s_mov_b32 s30, 32768"); o("s_mov_b32 s31, 0x00020000")
    srd(24, 16, 272 * 256)
    srd(32, 4, N * 256)
    for i in range(4):
        o(f"s_add_u32 s23, s22, {i*8192}")
        o(f"buffer_load_dwordx4 {vr(16+4*i,4)}, v1, s[24:27], s23 offen")
    for i in range(4):
        o(f"s_mov_b32 s23, {i*8192}")
        o(f"buffer_load_dwordx4 {vr(32+4*i,4)}, v1, s[28:31], s23 offen")
    o("s_lshr_b32 s37, s36, 2"); o("s_and_b32 s38, s36, 3")
    o("s_lshl_b32 s39, s3, 1"); o("s_add_u32 s39, s39, s37")
    o("s_lshl_b32 s40, s39, 13")
    o("v_and_b32 v6, 31, v5"); o("v_lshrrev_b32 v7, 5, v5")
    o("v_lshlrev_b32 v8, 8, v6"); o("v_lshl_add_u32 v8, v7, 4, v8")
    for s in range(8):
        o(f"buffer_load_dwordx4 {vr(48+4*s,4)}, v8, s[32:35], s40 offen offset:{32*s}")
    o("v_bfe_u32 v9, v5, 2, 2")
    o("v_lshl_add_u32 v9, v7, 3, v9")
    o("v_mul_u32_u24 v9, 320, v9")
    o("v_bfe_u32 v10, v5, 4, 1"); o("v_lshl_add_u32 v9, v10, 5, v9")
    o("v_and_b32 v10, 3, v5"); o("v_lshl_add_u32 v9, v10, 3, v9")
    o("s_lshl_b32 s41, s38, 6"); o("v_add_u32 v9, s41, v9")
    o("v_add_u32 v10, 40960, v9")
    o("v_add_u32 v11, 40960, v2")
    for i in range(4):
        o(f"s_waitcnt vmcnt({15-i})")
        o(f"ds_write_b128 v2, {vr(16+4*i,4)} offset:{i*10240}")
    for i in range(4):
        o(f"s_waitcnt vmcnt({11-i})")
        o(f"ds_write_b128 v11, {vr(32+4*i,4)} offset:{i*10240}")
    o("s_waitcnt lgkmcnt(0)"); o("s_barrier")
    W1, W2 = 80, 112
    for s in range(8):
        for u in range(2):
            o(f"ds_read_b64_tr_b16 {vr(W1+4*s+2*u,2)}, v9 offset:{(16*s+4*u)*320}")
        for u in range(2):
            o(f"ds_read_b64_tr_b16 {vr(W2+4*s+2*u,2)}, v10 offset:{(16*s+4*u)*320}")
        if s % 2 == 1: o("s_waitcnt lgkmcnt(0)")
    o(f"s_cmp_eq_u32 s3, {NG}"); o("s_cbranch_scc1 K1_PACK")
    o("s_waitcnt vmcnt(0)")
    AQ, AH = 16, 32
    for s in range(8):
        mfma(AQ, 48+4*s, W1+4*s, None if s == 0 else AQ)
        mfma(AH, 48+4*s, W2+4*s, None if s == 0 else AH)
    srd(24, 20, TABLE_BYTES, TABLE_OFF)
    o("s_lshl_b32 s40, s39, 14")
    o("s_lshl_b32 s41, s38, 7"); o("s_add_u32 s40, s40, s41")
    o("v_lshlrev_b32 v8, 11, v7"); o("v_lshl_add_u32 v8, v6, 2, v8")
    o(f"s_mov_b32 s42, {hex(NLOG2E)}"); o("s_mov_b32 s43, 0x7fffffff"); o("s_mov_b32 s44, 0xffff")
    o("s_mov_b32 s45, 0x8000"); o("s_mov_b32 s46, 0x7fff0000")
    o("s_nop 7")
    for v in range(16):
        o(f"v_mul_f32 v{AQ+v}, s42, v{AQ+v}")
    for v in range(16):
        o(f"v_cvt_pk_bf16_f32 v{AQ+v}, v{AQ+v}, v{AQ+v}")
    for v in range(16):
        o(f"v_and_b32 v{AQ+v}, s44, v{AQ+v}")
        o(f"v_and_b32 v48, s43, v{AH+v}")
        o(f"v_sub_u32 v48, v48, v{AQ+v}")
        o("v_add_u32 v48, s45, v48")
        o("v_max_i32 v48, 0, v48")
        o(f"v_bfi_b32 v{AH+v}, s46, v48, v{AH+v}")
        o(f"v_bfi_b32 v{AH+v}, s44, v{AQ+v}, v{AH+v}")
        if v % 4 == 0: o(f"s_add_u32 s41, s40, {4096*(v//4)}")
        o(f"buffer_store_dword v{AH+v}, v8, s[24:27], s41 offen offset:{512*(v%4)}")
    o("s_endpgm")
    lab("K1_PACK")
    srd(28, 20, 0x11000, WPACK_OFF)
    o("v_lshlrev_b32 v8, 4, v5")
    o("s_cmp_eq_u32 s37, 0"); o("s_cbranch_scc0 K1_PACKC")
    o("s_lshl_b32 s40, s38, 13")
    for s in range(8):
        if s % 4 == 0:
            o(f"s_add_u32 s41, s40, {s*1024}"); o(f"s_add_u32 s42, s40, {s*1024 + 32768}")
        o(f"buffer_store_dwordx4 {vr(W1+4*s,4)}, v8, s[28:31], s41 offen offset:{(s%4)*1024}")
        o(f"buffer_store_dwordx4 {vr(W2+4*s,4)}, v8, s[28:31], s42 offen offset:{(s%4)*1024}")
    o("s_endpgm")
    lab("K1_PACKC")
    o("v_lshlrev_b32 v12, 11, v7"); o("v_lshl_add_u32 v12, v6, 1, v12")
    o("s_lshl_b32 s40, s38, 6"); o("s_add_u32 s40, s40, 65536")
    for i in range(8):
        o(f"buffer_load_ushort v{16+i}, v12, s[24:27], s40 offen offset:{256*i}")
    o(f"s_mov_b32 s42, {hex(NLOG2E)}")
    o("s_waitcnt vmcnt(0)")
    for i in range(8):
        o(f"v_lshlrev_b32 v{16+i}, 16, v{16+i}")
        o(f"v_mul_f32 v{16+i}, s42, v{16+i}")
    for i in range(4):
        o(f"v_cvt_pk_bf16_f32 v{24+i}, v{16+2*i}, v{17+2*i}")
    o("s_lshl_b32 s40, s38, 10"); o("s_add_u32 s40, s40, 65536")
    o("buffer_store_dwordx4 v[24:27], v8, s[28:31], s40 offen")
    lab("K1_END")
    o("s_endpgm")

POOL = 0; POOL_BYTES = 40960; TOPT = 68
LUT = 40960; CNT = LUT + 4096; K2_LDS = CNT + 64
def k2():
    kn = NAME + "_kernel"
    kstart(kn)
    o("s_cmp_ge_u32 s2, 256"); o("s_cbranch_scc1 K2_END")
    o("s_load_dwordx16 s[4:19], s[0:1], 0")
    o("s_load_dwordx2 s[20:21], s[0:1], 72")
    o("v_lshlrev_b32 v8, 4, v0")
    o("v_lshrrev_b32 v4, 6, v0"); o("v_and_b32 v1, 63, v0")
    o("v_readfirstlane_b32 s3, v4")
    o("v_and_b32 v6, 31, v1"); o("v_lshrrev_b32 v7, 5, v1")
    o("s_lshr_b32 s60, s3, 2"); o("s_and_b32 s61, s3, 3")
    o("s_waitcnt lgkmcnt(0)")
    sW, sX, sE, sT, sO, sS, sD = 24, 28, 32, 36, 40, 44, 48
    srd(sW, 20, WPACK_OFF + 0x11000)
    o("s_lshl_b32 s22, s2, 13")
    EN = 12
    o(f"buffer_load_dwordx4 {vr(EN,4)}, v8, s[{sW}:{sW+3}], s22 offen")
    srd(sX, 4, N * 256); srd(sE, 6, E * 32); srd(sT, 20, TABLE_BYTES, TABLE_OFF); srd(sO, 18, N * 256)
    srd(sS, 8, E * 4); srd(sD, 10, E * 4)
    XF, WA, WU, CF = 96, 128, 160, 192
    o("s_mul_i32 s62, s60, 20"); o("s_lshl_b32 s62, s62, 16"); o("s_lshl_b32 s63, s2, 8")
    o("s_add_u32 s62, s62, s63")
    o("v_lshlrev_b32 v9, 16, v6"); o("v_lshl_add_u32 v9, v7, 4, v9")
    for s in range(8):
        o(f"buffer_load_dwordx4 {vr(XF+4*s,4)}, v9, s[{sX}:{sX+3}], s62 offen offset:{32*s}")
    o("v_lshlrev_b32 v10, 4, v1")
    o("s_lshl_b32 s63, s61, 13"); o(f"s_add_u32 s63, s63, {hex(WPACK_OFF)}")
    for s in range(8):
        if s % 4 == 0:
            o(f"s_add_u32 s64, s63, {s*1024}"); o(f"s_add_u32 s65, s63, {s*1024+32768}")
        o(f"buffer_load_dwordx4 {vr(WA+4*s,4)}, v10, s[{sW}:{sW+3}], s64 offen offset:{(s%4)*1024}")
        o(f"buffer_load_dwordx4 {vr(WU+4*s,4)}, v10, s[{sW}:{sW+3}], s65 offen offset:{(s%4)*1024}")
    o("s_lshl_b32 s63, s61, 10"); o(f"s_add_u32 s63, s63, {hex(WPACK_OFF+65536)}")
    o(f"buffer_load_dwordx4 {vr(CF,4)}, v10, s[{sW}:{sW+3}], s63 offen")
    for i in range(4):
        o(f"v_bfe_u32 v{16+i}, v0, {2*i}, 1"); o(f"v_bfe_u32 v20, v0, {2*i+1}, 1")
        o(f"v_lshl_or_b32 v{16+i}, v20, 16, v{16+i}")
        o(f"v_mul_u32_u24 v{16+i}, 0x3f80, v{16+i}")
    o("v_and_b32 v20, 0xfff, v8")
    o(f"ds_write_b128 v20, v[16:19] offset:{LUT}")
    o("s_lshl_b32 s63, s61, 7")
    o("v_lshlrev_b32 v2, 2, v6"); o("v_add_u32 v2, s63, v2")
    o("v_lshlrev_b32 v3, 4, v7")
    o("v_lshrrev_b32 v11, 3, v0"); o(f"v_mul_u32_u24 v11, {CH}, v11")
    o("s_mov_b64 s[70:71], 0")
    o("s_mov_b32 s72, 0")
    o("v_mov_b32 v24, 0"); o("v_mov_b32 v25, 0"); o("v_mov_b32 v26, 0"); o("v_mov_b32 v27, 0")
    o(f"v_mov_b32 v20, {CNT}")
    o("ds_write_b128 v20, v[24:27]")
    def pool_init():
        o("v_and_b32 v20, 16, v0"); o("v_cmp_eq_u32 vcc, 0, v20")
        o(f"v_mov_b32 v21, {hex(OOB)}"); o("s_nop 0")
        o("v_cndmask_b32 v24, 0, v21, vcc")
        o("v_mov_b32 v25, v24"); o("v_mov_b32 v26, v24"); o("v_mov_b32 v27, v24")
        for i in range(5):
            o(f"ds_write_b128 v8, v[24:27] offset:{POOL + i*8192}")
    pool_init()
    o("s_waitcnt lgkmcnt(0)"); o("s_barrier")
    o("s_waitcnt vmcnt(25)")
    o(f"v_cmp_eq_u32 vcc, -2, v{EN}")
    o("s_cbranch_vccz K2_COMPACT")
    o("s_mov_b64 exec, vcc")
    o("v_lshrrev_b32 v20, 3, v0"); o("v_lshlrev_b32 v21, v20, 1") if False else None
    o("v_lshrrev_b32 v20, 3, v0")
    o("v_mov_b32 v22, 1"); o("v_lshlrev_b32 v21, v20, v22")
    o("v_lshrrev_b32 v20, 5, v20"); o("v_lshlrev_b32 v20, 2, v20")
    o(f"ds_or_b32 v20, v21 offset:{CNT+8}")
    o("s_mov_b64 exec, -1")
    lab("K2_COMPACT")
    o("s_mov_b32 s64, 0"); o("s_mov_b32 s65, 0")
    for i in range(4):
        e = EN + i; mv = 74 + 4*i; mb = mv + 2
        o(f"v_cmp_gt_u32 s[{mv}:{mv+1}], -2, v{e}")
        o(f"v_and_b32 v{16+i}, 63, v{e}")
        o(f"v_cmp_lt_u32 s[{mb}:{mb+1}], 19, v{16+i}")
        o(f"s_andn2_b64 s[66:67], s[{mv}:{mv+1}], s[{mb}:{mb+1}]")
        o(f"s_and_b64 s[68:69], s[{mv}:{mv+1}], s[{mb}:{mb+1}]")
        o("v_mov_b32 v28, s64"); o("v_mov_b32 v29, s65")
        o("v_mbcnt_lo_u32_b32 v28, s66, v28"); o("v_mbcnt_hi_u32_b32 v28, s67, v28")
        o("v_mbcnt_lo_u32_b32 v29, s68, v29"); o("v_mbcnt_hi_u32_b32 v29, s69, v29")
        o(f"v_cndmask_b32 v{20+i}, v28, v29, s[{mb}:{mb+1}]")
        o("s_bcnt1_i32_b64 s66, s[66:67]"); o("s_bcnt1_i32_b64 s68, s[68:69]")
        o("s_add_u32 s64, s64, s66"); o("s_add_u32 s65, s65, s68")
    o("s_lshl_b32 s65, s65, 16"); o("s_or_b32 s64, s64, s65")
    o("v_mov_b32 v28, s64"); o(f"v_mov_b32 v29, {CNT}")
    o("s_mov_b64 exec, 1")
    o("ds_add_rtn_u32 v28, v29, v28")
    o("s_mov_b64 exec, -1")
    for i in range(4):
        e = EN + i; mb = 76 + 4*i
        o(f"v_bfe_u32 v{32+2*i}, v{e}, 6, 14"); o(f"v_lshlrev_b32 v{32+2*i}, 9, v{32+2*i}")
        o(f"v_lshrrev_b32 v{33+2*i}, 20, v{e}"); o(f"v_add_lshl_u32 v{33+2*i}, v{33+2*i}, v11, 5")
        o(f"v_subrev_u32 v30, 20, v{16+i}")
        o(f"v_cndmask_b32 v{16+i}, v{16+i}, v30, s[{mb}:{mb+1}]")
        o(f"v_lshrrev_b32 v30, 3, v{16+i}"); o(f"v_and_b32 v31, 3, v{16+i}")
        o("v_lshl_or_b32 v30, v30, 2, v31")
        o(f"v_lshlrev_b32 v{40+i}, v30, 1") if False else None
        o(f"v_bfm_b32 v{40+i}, 1, v30")
        o(f"v_bfe_u32 v{44+i}, v{16+i}, 2, 1"); o(f"v_lshlrev_b32 v{44+i}, 7, v{44+i}")
    o("s_waitcnt lgkmcnt(0)")
    o("v_readfirstlane_b32 s64, v28")
    o("s_lshr_b32 s65, s64, 16"); o("s_and_b32 s64, s64, 0xffff")
    o("v_mov_b32 v28, s64"); o("v_mov_b32 v29, s65")
    for i in range(4):
        mv = 74 + 4*i; mb = mv + 2
        o(f"v_cndmask_b32 v30, v28, v29, s[{mb}:{mb+1}]")
        o(f"v_add_u32 v30, v30, v{20+i}")
        o("v_lshrrev_b32 v31, 5, v30"); o("v_and_b32 v30, 31, v30")
        o(f"v_sub_u32 v48, {TOPT}, v31")
        o(f"v_cndmask_b32 v31, v31, v48, s[{mb}:{mb+1}]")
        o("v_lshlrev_b32 v31, 9, v31")
        o("v_lshl_add_u32 v48, v30, 2, v31")
        o(f"v_add_u32 v49, v48, v{44+i}")
        o("v_lshrrev_b32 v50, 3, v30"); o("v_and_b32 v51, 3, v30")
        o("v_lshl_or_b32 v50, v50, 2, v51"); o("v_add_u32 v50, 16, v50")
        o("v_bfm_b32 v50, 1, v50")
        o("v_bfe_u32 v51, v30, 2, 1"); o("v_lshl_add_u32 v51, v51, 7, v31")
        o(f"v_lshl_add_u32 v51, v{16+i}, 2, v51")
        o(f"s_mov_b64 exec, s[{mv}:{mv+1}]")
        o(f"ds_write2_b32 v48, v{32+2*i}, v{33+2*i} offset0:0 offset1:32")
        o(f"ds_or_b32 v49, v{40+i} offset:256")
        o("ds_or_b32 v51, v50 offset:256")
        o("s_mov_b64 exec, -1")
    o("s_waitcnt lgkmcnt(0)"); o("s_barrier")
    o(f"v_mov_b32 v29, {CNT}")
    o("ds_read_b128 v[24:27], v29")
    o("s_cmp_eq_u32 s60, 0")
    o(f"s_cselect_b32 s66, 0, {TOPT*512}"); o("s_movk_i32 s67, 512"); o("s_cselect_b32 s67, s67, -512")
    o("v_add_u32 v4, s66, v3")
    o("v_lshl_add_u32 v5, v6, 2, s66")
    o("v_lshl_add_u32 v16, v1, 2, s66")
    o("s_waitcnt lgkmcnt(0)")
    o("v_readfirstlane_b32 s64, v24")
    o("v_readfirstlane_b32 s68, v26"); o("v_readfirstlane_b32 s69, v27")
    o("s_lshl_b32 s65, s60, 4"); o("s_lshr_b32 s64, s64, s65"); o("s_and_b32 s64, s64, 0xffff")
    o("s_add_u32 s64, s64, 31"); o("s_lshr_b32 s64, s64, 5")
    o("s_cmp_eq_u32 s72, 0"); o("s_cselect_b32 s70, s68, s70"); o("s_cselect_b32 s71, s69, s71")
    G = [200, 220, 240 - 4 + 0]; G = [196, 216, 236]
    MK = [17, 18, 19]
    RO = 20
    Z, ACC, PF, FR, BB = 40, 56, 72, 80, 20
    def issue(k):
        for c in range(4):
            o(f"ds_read_b128 {vr(RO+4*c,4)}, v4 offset:{32*c}")
        o("ds_read_b32 v36, v5 offset:128")
        o(f"ds_read_b32 v{MK[k]}, v16 offset:256")
        o("v_add_u32 v4, s67, v4"); o("v_add_u32 v5, s67, v5"); o("v_add_u32 v16, s67, v16")
        for c in range(4):
            o(f"s_waitcnt lgkmcnt({5-c})")
            for i in range(4):
                o(f"v_add_u32 v{RO+4*c+i}, v{RO+4*c+i}, v2")
            for i in range(4):
                o(f"buffer_load_dword v{G[k]+4*c+i}, v{RO+4*c+i}, s[{sT}:{sT+3}], 0 offen")
        o("s_waitcnt lgkmcnt(0)")
        o("v_add_u32 v36, v36, v3")
        o(f"buffer_load_dwordx4 {vr(G[k]+16,4)}, v36, s[{sE}:{sE+3}], 0 offen")
    issue(0); issue(1)
    o("s_cmp_eq_u32 s72, 0"); o("s_cbranch_scc0 K2_LOOP0")
    o("s_waitcnt vmcnt(34)")
    for s in range(8):
        mfma(Z, XF+4*s, WA+4*s, None if s == 0 else Z)
        mfma(ACC, XF+4*s, WU+4*s, None if s == 0 else ACC)
    o(f"s_mov_b32 s65, {hex(NLOG2E)}")
    o("s_nop 9")
    for v in range(16): o(f"v_mul_f32 v{Z+v}, s65, v{Z+v}")
    for i in range(8): o(f"v_cvt_pk_bf16_f32 v{PF+i}, v{Z+2*i}, v{Z+2*i+1}")
    def compute(k):
        g = G[k]
        for i in range(4):
            o(f"v_lshlrev_b32_sdwa v{37}, 4, v{MK[k]} dst_sel:DWORD dst_unused:UNUSED_PAD src0_sel:DWORD src1_sel:BYTE_{i}")
            o(f"ds_read_b128 {vr(FR+4*i,4)}, v37 offset:{LUT}")
        o("s_waitcnt vmcnt(34)")
        for v in range(16): o(f"v_lshlrev_b32 v{Z+v}, 16, v{g+v}")
        o("s_nop 1")
        mfma(Z, g+16, CF, Z)
        o("s_waitcnt lgkmcnt(2)")
        mfma(Z, FR, PF, Z); mfma(Z, FR+4, PF+4, Z)
        o("s_nop 11")
        for v in range(16): o(f"v_exp_f32 v{Z+v}, v{Z+v}")
        for v in range(16): o(f"v_add_f32 v{Z+v}, 1.0, v{Z+v}")
        for v in range(16): o(f"v_rcp_f32 v{Z+v}, v{Z+v}")
        for v in range(16): o(f"v_mul_f32 v{Z+v}, v{Z+v}, v{g+v}")
        for i in range(8): o(f"v_cvt_pk_bf16_f32 v{BB+i}, v{Z+2*i}, v{Z+2*i+1}")
        o("s_waitcnt lgkmcnt(0)")
        o("s_nop 0")
        mfma(ACC, FR+8, BB, ACC); mfma(ACC, FR+12, BB+4, ACC)
    for k in range(3):
        lab(f"K2_LOOP{k}")
        o("s_cmp_eq_u32 s64, 0"); o("s_cbranch_scc1 K2_BATCH_DONE")
        o("s_sub_u32 s64, s64, 1")
        issue((k + 2) % 3)
        compute(k)
    o("s_branch K2_LOOP0")
    lab("K2_BATCH_DONE")
    o("s_cmp_eq_u32 s72, 1"); o("s_cbranch_scc1 K2_HALF2")
    o("s_cmp_eq_u64 s[70:71], 0"); o("s_cbranch_scc1 K2_EPI")
    o("s_ff1_i32_b64 s73, s[70:71]"); o("s_bitset0_b64 s[70:71], s73")
    o("s_mov_b32 s72, 1"); o("s_mov_b32 s58, 0"); o("s_branch K2_RESCAN")
    lab("K2_HALF2")
    o("s_mov_b32 s72, 2"); o("s_mov_b32 s58, 2048")
    lab("K2_RESCAN")
    o("s_waitcnt vmcnt(0) lgkmcnt(0)")
    o(f"s_mul_i32 s59, s73, {CH}")
    o("s_add_u32 s57, s59, s58"); o("s_lshl_b32 s57, s57, 2")
    o(f"buffer_load_dwordx4 v[40:43], v8, s[{sD}:{sD+3}], s57 offen")
    o(f"buffer_load_dwordx4 v[44:47], v8, s[{sS}:{sS+3}], s57 offen")
    o("s_barrier")
    pool_init()
    o("v_mov_b32 v24, 0"); o(f"v_mov_b32 v20, {CNT}"); o("ds_write_b32 v20, v24")
    o("v_mov_b32 v11, s59")
    o("s_waitcnt vmcnt(0)")
    o(f"s_movk_i32 s57, {CH}")
    for i in range(4):
        o("v_lshlrev_b32 v20, 2, v0"); o("v_add_u32 v20, s58, v20"); o(f"v_add_u32 v20, {i}, v20")
        o(f"v_and_b32 v21, 0xff, v{40+i}")
        o("v_cmp_eq_u32 vcc, s2, v21"); o("v_cmp_gt_u32 s[66:67], s57, v20")
        o("s_and_b64 vcc, vcc, s[66:67]")
        o(f"v_lshrrev_b32 v21, 8, v{40+i}")
        o(f"v_lshl_or_b32 v21, v{44+i}, 6, v21"); o("v_lshl_or_b32 v21, v20, 20, v21")
        o(f"v_cndmask_b32 v{EN+i}, -1, v21, vcc")
    o("s_waitcnt lgkmcnt(0)"); o("s_barrier")
    o("s_branch K2_COMPACT")
    lab("K2_EPI")
    o(f"s_mov_b32 s65, {hex(NLOG2E)}")
    o("v_lshlrev_b32 v9, 18, v7"); o("v_lshl_add_u32 v9, v6, 1, v9")
    o("s_lshl_b32 s63, s61, 6"); o("s_add_u32 s62, s62, s63")
    o("s_nop 7")
    for v in range(12): o(f"v_mul_f32 v{Z+v}, s65, v{ACC+v}")
    for v in range(12): o(f"v_exp_f32 v{Z+v}, v{Z+v}")
    for v in range(12): o(f"v_add_f32 v{Z+v}, 1.0, v{Z+v}")
    for v in range(12): o(f"v_rcp_f32 v{Z+v}, v{Z+v}")
    for v in range(12): o(f"v_mul_f32 v{Z+v}, v{Z+v}, v{ACC+v}")
    for v in range(12): o(f"v_cvt_pk_bf16_f32 v{Z+v}, v{Z+v}, v{Z+v}")
    for v in range(12):
        if v == 8: o("s_mov_b32 exec_hi, 0")
        o(f"s_add_u32 s63, s62, {((v&3) + 8*(v>>2)) << 16}")
        o(f"buffer_store_short v{Z+v}, v9, s[{sO}:{sO+3}], s63 offen")
    lab("K2_END")
    o("s_endpgm")

header(); k1(); k2()
L.append('.section .rodata,"a"')
kdesc("prep_kernel", 144, 56); kdesc(NAME + "_kernel", 256, 96)
out = sys.argv[1] if len(sys.argv) > 1 else "cdna_kernels/%s.s" % NAME
open(out, "w").write("\n".join(x for x in L if x is not None) + "\n")
```

```python
import sys
NAME = "standalone__edge_featured_mpnn_egc__graph"
N, E = 10000, 160000
NPROD, CH = 64, 2500
CELLS_OFF, TABLE_OFF, WPACK_OFF = 0, 0x200000, 0x800000
TABLE_BYTES = N * 512
NG = 157
NLOG2E = 0xBFB8AA3B
OOB = 0x7FFFF000
L = []
def o(s): L.append("    " + s)
def lab(s): L.append(s + ":")
def srd(d, b, nbytes, off=0):
    if off:
        o(f"s_add_u32 s{d}, s{b}, {hex(off)}"); o(f"s_addc_u32 s{d+1}, s{b+1}, 0")
    else:
        o(f"s_mov_b32 s{d}, s{b}"); o(f"s_mov_b32 s{d+1}, s{b+1}")
    o(f"s_mov_b32 s{d+2}, {hex(nbytes)}"); o(f"s_mov_b32 s{d+3}, 0x00020000")
def vr(a, n): return f"v[{a}:{a+n-1}]"
def mfma(d, a, b, c):
    cs = "0" if c is None else vr(c, 16)
    o(f"v_mfma_f32_32x32x16_bf16 {vr(d,16)}, {vr(a,4)}, {vr(b,4)}, {cs}")

STAMPS = "stamps" in sys.argv
def stamp(i):
    if STAMPS: o(f"s_memrealtime s[{90+2*i}:{91+2*i}]")
def stamp_init():
    if STAMPS:
        for i in range(1, 6): o(f"s_mov_b32 s{90+2*i}, 0")
        o("v_lshrrev_b32 v255, 6, v0") if False else None
        stamp(0)
def stamp_out(kid, role):
    if not STAMPS: return
    o("s_waitcnt vmcnt(0)")
    stamp(5)
    o("s_waitcnt lgkmcnt(0)")
    o("s_mov_b64 exec, -1")
    o("v_lshrrev_b32 v1, 6, v0"); o("v_and_b32 v2, 63, v0")
    o("v_lshlrev_b32 v1, 5, v1"); o("v_lshl_add_u32 v1, v2, 2, v1")
    for i in range(6): o(f"v_writelane_b32 v3, s{90+2*i}, {i}")
    o(f"s_mov_b32 s4, {role}"); o("v_writelane_b32 v3, s4, 6")
    o("s_mov_b32 s4, 0xC0FFEE"); o("v_writelane_b32 v3, s4, 7")
    if "dbg" in sys.argv:
        o("s_load_dwordx2 s[12:13], s[0:1], 64"); o("s_not_b32 s4, s90"); o("v_writelane_b32 v3, s4, 6")
        o("s_waitcnt lgkmcnt(0)")
        o(f"s_add_u32 s8, s12, {512*(1-kid)}"); o("s_addc_u32 s9, s13, 0"); o("s_mov_b32 s10, 256"); o("s_mov_b32 s11, 0x00020000")
        o(f"v_lshlrev_b32 v1, 2, v2"); o("s_mov_b64 exec, 0x7f")
        o(f"buffer_atomic_umax v3, v1, s[8:11], 0 offen offset:{32*kid}")
        return
    srd(8, 20, 0x100000, 0x4000000 + kid * 512 * 512)
    o("s_lshl_b32 s4, s2, 9")
    o("s_mov_b64 exec, 0xff")
    o("buffer_store_dword v3, v1, s[8:11], s4 offen")

def header():
    src = open("cdna_kernels/%s.s.ref" % NAME).read().split("\n")
    for l in src:
        if l.startswith("; Override"): break
        L.append(l)
    L.append("; @launch kernel=prep_kernel grid=(%d,1,1) block=(512,1,1) lds=81920" % (NPROD + NG + 1))
    L.append("; @launch kernel=%s_kernel grid=(256,1,1) block=(512,1,1) lds=%d" % (NAME, K2_LDS))
    L.append('.amdgcn_target "amdgcn-amd-amdhsa--gfx950"')
    L.append(".text")

def kstart(n):
    L.append(f".globl {n}"); L.append(".p2align 8"); L.append(f".type {n},@function"); lab(n)

def kdesc(n, vg, sg):
    L.append(".p2align 6")
    L.append(f".amdhsa_kernel {n}")
    for k, v in [("next_free_vgpr", vg), ("next_free_sgpr", sg), ("accum_offset", (vg + 3) // 4 * 4),
                 ("group_segment_fixed_size", 0), ("kernarg_size", 80), ("user_sgpr_count", 2),
                 ("user_sgpr_kernarg_segment_ptr", 1), ("system_sgpr_workgroup_id_x", 1)]:
        L.append(f"  .amdhsa_{k} {v}")
    L.append(".end_amdhsa_kernel")

def k1():
    kstart("prep_kernel")
    o(f"s_cmp_ge_u32 s2, {NPROD + NG + 1}"); o("s_cbranch_scc1 K1_END")
    o("s_load_dwordx16 s[4:19], s[0:1], 0")
    o("s_load_dwordx2 s[20:21], s[0:1], 72")
    stamp_init()
    o(f"s_cmp_ge_u32 s2, {NPROD}"); o("s_cbranch_scc1 K1_GEMM")
    o("v_lshlrev_b32 v1, 2, v0")
    o(f"s_mul_i32 s22, s2, {CH*4}")
    o("v_mov_b32 v20, -1"); o("v_mov_b32 v21, -1"); o("v_mov_b32 v22, -1"); o("v_mov_b32 v23, -1")
    o("v_lshlrev_b32 v2, 4, v0")
    o("v_mov_b32 v24, 0")
    o("s_waitcnt lgkmcnt(0)")
    srd(24, 8, E * 4); srd(28, 10, E * 4); srd(32, 20, 0x200000, CELLS_OFF)
    for i in range(5):
        o(f"s_add_u32 s23, s22, {i*2048}")
        o(f"buffer_load_dword v{4+i}, v1, s[28:31], s23 offen")
        o(f"buffer_load_dword v{10+i}, v1, s[24:27], s23 offen")
    for i in range(4):
        o(f"ds_write_b128 v2, v[20:23] offset:{i*8192}")
    o("ds_write_b32 v1, v24 offset:32768")
    o("v_mov_b32 v25, 1")
    o("s_waitcnt lgkmcnt(0)"); o("s_barrier")
    o(f"v_cmp_gt_u32 s[36:37], {CH - 2048}, v0") if False else None
    o(f"s_movk_i32 s23, {CH - 2048}")
    o("v_cmp_gt_u32 s[36:37], s23, v0")
    for i in range(5):
        o(f"s_waitcnt vmcnt({2*(4-i)+1})")
        if i == 4: o("s_mov_b64 exec, s[36:37]")
        o(f"v_and_b32 v{26+i}, 0xff, v{4+i}")
        o(f"v_lshlrev_b32 v16, 2, v{26+i}")
        o(f"ds_add_rtn_u32 v{32+i}, v16, v25 offset:32768")
    o("s_mov_b64 exec, -1")
    o("s_waitcnt vmcnt(0)")
    stamp(1)
    for i in range(5):
        o(f"v_lshrrev_b32 v{4+i}, 8, v{4+i}")
        o(f"v_lshl_or_b32 v{4+i}, v{10+i}, 6, v{4+i}")
        o(f"v_add_u32 v16, {i*512}, v0")
        o(f"v_lshl_or_b32 v{4+i}, v16, 20, v{4+i}")
    for i in range(5):
        o(f"s_waitcnt lgkmcnt({4-i})") if i == 0 or True else None
        o(f"v_cmp_gt_u32 vcc, 32, v{32+i}")
        o(f"v_lshlrev_b32 v16, 2, v{32+i}")
        o(f"v_lshl_add_u32 v{38+i}, v{26+i}, 7, v16")
        if i == 4: o("s_and_b64 vcc, vcc, s[36:37]")
        o(f"s_mov_b64 s[{40+2*i}:{41+2*i}], vcc")
    for i in range(5):
        o(f"s_mov_b64 exec, s[{40+2*i}:{41+2*i}]")
        o(f"ds_write_b32 v{38+i}, v{4+i}")
    o("s_mov_b64 exec, -1")
    o("s_waitcnt lgkmcnt(0)"); o("s_barrier")
    stamp(2)
    o("v_lshrrev_b32 v3, 3, v0")
    o("v_lshlrev_b32 v16, 2, v3")
    for i in range(4):
        o(f"ds_read_b128 {vr(44+4*i,4)}, v2 offset:{i*8192}")
        o(f"ds_read_b32 v{60+i}, v16 offset:{32768 + i*256}")
    o("v_and_b32 v17, 7, v0")
    o("v_cmp_eq_u32 vcc, 0, v17")
    o("v_lshlrev_b32 v17, 4, v17")
    o("v_lshl_add_u32 v17, v3, 13, v17")
    o("v_cndmask_b32 v18, -1, -2, vcc") if False else None
    o("v_mov_b32 v18, -2")
    o("v_cndmask_b32 v18, -1, v18, vcc")
    o("s_lshl_b32 s22, s2, 7")
    for i in range(4):
        o(f"s_waitcnt lgkmcnt({2*(3-i)})")
        o(f"v_cmp_lt_u32 vcc, 32, v{60+i}")
        o(f"s_add_u32 s23, s22, {i*64*8192}")
        o("s_nop 0")
        o(f"v_cndmask_b32 v{44+4*i}, v{44+4*i}, v18, vcc")
        for c in range(1, 4):
            o(f"v_cndmask_b32 v{44+4*i+c}, v{44+4*i+c}, v20, vcc")
        o(f"buffer_store_dwordx4 {vr(44+4*i,4)}, v17, s[32:35], s23 offen")
    stamp(3); stamp_out(0, 0)
    o("s_endpgm")
    lab("K1_GEMM")
    o(f"s_sub_u32 s3, s2, {NPROD}")
    o("v_lshlrev_b32 v1, 4, v0")
    o("v_lshrrev_b32 v2, 4, v0")
    o("v_mul_u32_u24 v2, 320, v2")
    o("v_and_b32 v3, 15, v0")
    o("v_lshl_add_u32 v2, v3, 4, v2")
    o("v_lshrrev_b32 v4, 6, v0")
    o("v_and_b32 v5, 63, v0")
    o("v_readfirstlane_b32 s36, v4")
    o("s_waitcnt lgkmcnt(0)")
    o(f"s_cmp_eq_u32 s3, {NG}")
    o("s_cselect_b32 s22, 0, 32768")
    o("s_cselect_b32 s28, s12, s14"); o("s_cselect_b32 s29, s13, s15")
    o("s_mov_b32 s30, 32768"); o("s_mov_b32 s31, 0x00020000")
    srd(24, 16, 272 * 256)
    srd(32, 4, N * 256)
    for i in range(4):
        o(f"s_add_u32 s23, s22, {i*8192}")
        o(f"buffer_load_dwordx4 {vr(16+4*i,4)}, v1, s[24:27], s23 offen")
    for i in range(4):
        o(f"s_mov_b32 s23, {i*8192}")
        o(f"buffer_load_dwordx4 {vr(32+4*i,4)}, v1, s[28:31], s23 offen")
    o("s_lshr_b32 s37, s36, 2"); o("s_and_b32 s38, s36, 3")
    o("s_lshl_b32 s39, s3, 1"); o("s_add_u32 s39, s39, s37")
    o("s_lshl_b32 s40, s39, 13")
    o("v_and_b32 v6, 31, v5"); o("v_lshrrev_b32 v7, 5, v5")
    o("v_lshlrev_b32 v8, 8, v6"); o("v_lshl_add_u32 v8, v7, 4, v8")
    for s in range(8):
        o(f"buffer_load_dwordx4 {vr(48+4*s,4)}, v8, s[32:35], s40 offen offset:{32*s}")
    o("v_bfe_u32 v9, v5, 2, 2")
    o("v_lshl_add_u32 v9, v7, 3, v9")
    o("v_mul_u32_u24 v9, 320, v9")
    o("v_bfe_u32 v10, v5, 4, 1"); o("v_lshl_add_u32 v9, v10, 5, v9")
    o("v_and_b32 v10, 3, v5"); o("v_lshl_add_u32 v9, v10, 3, v9")
    o("s_lshl_b32 s41, s38, 6"); o("v_add_u32 v9, s41, v9")
    o("v_add_u32 v10, 40960, v9")
    o("v_add_u32 v11, 40960, v2")
    for i in range(4):
        o(f"s_waitcnt vmcnt({15-i})")
        o(f"ds_write_b128 v2, {vr(16+4*i,4)} offset:{i*10240}")
    for i in range(4):
        o(f"s_waitcnt vmcnt({11-i})")
        o(f"ds_write_b128 v11, {vr(32+4*i,4)} offset:{i*10240}")
    o("s_waitcnt lgkmcnt(0)"); o("s_barrier")
    stamp(1)
    W1, W2 = 80, 112
    for s in range(8):
        for u in range(2):
            o(f"ds_read_b64_tr_b16 {vr(W1+4*s+2*u,2)}, v9 offset:{(16*s+4*u)*320}")
        for u in range(2):
            o(f"ds_read_b64_tr_b16 {vr(W2+4*s+2*u,2)}, v10 offset:{(16*s+4*u)*320}")
        if s % 2 == 1: o("s_waitcnt lgkmcnt(0)")
    o(f"s_cmp_eq_u32 s3, {NG}"); o("s_cbranch_scc1 K1_PACK")
    o("s_waitcnt vmcnt(0)")
    stamp(2)
    AQ, AH = 16, 32
    for s in range(8):
        mfma(AQ, 48+4*s, W1+4*s, None if s == 0 else AQ)
        mfma(AH, 48+4*s, W2+4*s, None if s == 0 else AH)
    srd(24, 20, TABLE_BYTES, TABLE_OFF)
    o("s_lshl_b32 s40, s39, 14")
    o("s_lshl_b32 s41, s38, 7"); o("s_add_u32 s40, s40, s41")
    o("v_lshlrev_b32 v8, 11, v7"); o("v_lshl_add_u32 v8, v6, 2, v8")
    o(f"s_mov_b32 s42, {hex(NLOG2E)}"); o("s_mov_b32 s43, 0x7fffffff"); o("s_mov_b32 s44, 0xffff")
    o("s_mov_b32 s45, 0x8000"); o("s_mov_b32 s46, 0x7fff0000")
    o("s_nop 7")
    for v in range(16):
        o(f"v_mul_f32 v{AQ+v}, s42, v{AQ+v}")
    for v in range(16):
        o(f"v_cvt_pk_bf16_f32 v{AQ+v}, v{AQ+v}, v{AQ+v}")
    for v in range(16):
        o(f"v_and_b32 v{AQ+v}, s44, v{AQ+v}")
        o(f"v_and_b32 v48, s43, v{AH+v}")
        o(f"v_sub_u32 v48, v48, v{AQ+v}")
        o("v_add_u32 v48, s45, v48")
        o("v_max_i32 v48, 0, v48")
        o(f"v_bfi_b32 v{AH+v}, s46, v48, v{AH+v}")
        o(f"v_bfi_b32 v{AH+v}, s44, v{AQ+v}, v{AH+v}")
        if v % 4 == 0: o(f"s_add_u32 s41, s40, {4096*(v//4)}")
        o(f"buffer_store_dword v{AH+v}, v8, s[24:27], s41 offen offset:{512*(v%4)}")
    stamp(3); stamp_out(0, 1)
    o("s_endpgm")
    lab("K1_PACK")
    srd(28, 20, 0x11000, WPACK_OFF)
    o("v_lshlrev_b32 v8, 4, v5")
    o("s_cmp_eq_u32 s37, 0"); o("s_cbranch_scc0 K1_PACKC")
    o("s_lshl_b32 s40, s38, 13")
    for s in range(8):
        if s % 4 == 0:
            o(f"s_add_u32 s41, s40, {s*1024}"); o(f"s_add_u32 s42, s40, {s*1024 + 32768}")
        o(f"buffer_store_dwordx4 {vr(W1+4*s,4)}, v8, s[28:31], s41 offen offset:{(s%4)*1024}")
        o(f"buffer_store_dwordx4 {vr(W2+4*s,4)}, v8, s[28:31], s42 offen offset:{(s%4)*1024}")
    o("s_endpgm")
    lab("K1_PACKC")
    o("v_lshlrev_b32 v12, 11, v7"); o("v_lshl_add_u32 v12, v6, 1, v12")
    o("s_lshl_b32 s40, s38, 6"); o("s_add_u32 s40, s40, 65536")
    for i in range(8):
        o(f"buffer_load_ushort v{16+i}, v12, s[24:27], s40 offen offset:{256*i}")
    o(f"s_mov_b32 s42, {hex(NLOG2E)}")
    o("s_waitcnt vmcnt(0)")
    for i in range(8):
        o(f"v_lshlrev_b32 v{16+i}, 16, v{16+i}")
        o(f"v_mul_f32 v{16+i}, s42, v{16+i}")
    for i in range(4):
        o(f"v_cvt_pk_bf16_f32 v{24+i}, v{16+2*i}, v{17+2*i}")
    o("s_lshl_b32 s40, s38, 10"); o("s_add_u32 s40, s40, 65536")
    o("buffer_store_dwordx4 v[24:27], v8, s[28:31], s40 offen")
    lab("K1_END")
    o("s_endpgm")

POOL = 0; POOL_BYTES = 40960; TOPT = 68
LUT = 40960; CNT = LUT + 4096; K2_LDS = CNT + 64
def k2():
    kn = NAME + "_kernel"
    kstart(kn)
    o("s_cmp_ge_u32 s2, 256"); o("s_cbranch_scc1 K2_END")
    o("s_load_dwordx16 s[4:19], s[0:1], 0")
    o("s_load_dwordx2 s[20:21], s[0:1], 72")
    stamp_init()
    o("v_lshlrev_b32 v8, 4, v0")
    o("v_lshrrev_b32 v4, 6, v0"); o("v_and_b32 v1, 63, v0")
    o("v_readfirstlane_b32 s3, v4")
    o("v_and_b32 v6, 31, v1"); o("v_lshrrev_b32 v7, 5, v1")
    o("s_lshr_b32 s60, s3, 2"); o("s_and_b32 s61, s3, 3")
    o("s_waitcnt lgkmcnt(0)")
    sW, sX, sE, sT, sO, sS, sD = 24, 28, 32, 36, 40, 44, 48
    srd(sW, 20, WPACK_OFF + 0x11000)
    o("s_lshl_b32 s22, s2, 13")
    EN = 12
    o(f"buffer_load_dwordx4 {vr(EN,4)}, v8, s[{sW}:{sW+3}], s22 offen")
    srd(sX, 4, N * 256); srd(sE, 6, E * 32); srd(sT, 20, TABLE_BYTES, TABLE_OFF); srd(sO, 18, N * 256)
    srd(sS, 8, E * 4); srd(sD, 10, E * 4)
    XF, WA, WU, CF = 96, 128, 160, 192
    o("s_mul_i32 s62, s60, 20"); o("s_lshl_b32 s62, s62, 16"); o("s_lshl_b32 s63, s2, 8")
    o("s_add_u32 s62, s62, s63")
    o("v_lshlrev_b32 v9, 16, v6"); o("v_lshl_add_u32 v9, v7, 4, v9")
    for s in range(8):
        o(f"buffer_load_dwordx4 {vr(XF+4*s,4)}, v9, s[{sX}:{sX+3}], s62 offen offset:{32*s}")
    o("v_lshlrev_b32 v10, 4, v1")
    o("s_lshl_b32 s63, s61, 13"); o(f"s_add_u32 s63, s63, {hex(WPACK_OFF)}")
    for s in range(8):
        if s % 4 == 0:
            o(f"s_add_u32 s64, s63, {s*1024}"); o(f"s_add_u32 s65, s63, {s*1024+32768}")
        o(f"buffer_load_dwordx4 {vr(WA+4*s,4)}, v10, s[{sW}:{sW+3}], s64 offen offset:{(s%4)*1024}")
        o(f"buffer_load_dwordx4 {vr(WU+4*s,4)}, v10, s[{sW}:{sW+3}], s65 offen offset:{(s%4)*1024}")
    o("s_lshl_b32 s63, s61, 10"); o(f"s_add_u32 s63, s63, {hex(WPACK_OFF+65536)}")
    o(f"buffer_load_dwordx4 {vr(CF,4)}, v10, s[{sW}:{sW+3}], s63 offen")
    for i in range(4):
        o(f"v_bfe_u32 v{16+i}, v0, {2*i}, 1"); o(f"v_bfe_u32 v20, v0, {2*i+1}, 1")
        o(f"v_lshl_or_b32 v{16+i}, v20, 16, v{16+i}")
        o(f"v_mul_u32_u24 v{16+i}, 0x3f80, v{16+i}")
    o("v_and_b32 v20, 0xfff, v8")
    o(f"ds_write_b128 v20, v[16:19] offset:{LUT}")
    o("s_lshl_b32 s63, s61, 7")
    o("v_lshlrev_b32 v2, 2, v6"); o("v_add_u32 v2, s63, v2")
    o("v_lshlrev_b32 v3, 4, v7")
    o("v_lshrrev_b32 v11, 3, v0"); o(f"v_mul_u32_u24 v11, {CH}, v11")
    o("s_mov_b64 s[70:71], 0")
    o("s_mov_b32 s72, 0")
    o("v_mov_b32 v24, 0"); o("v_mov_b32 v25, 0"); o("v_mov_b32 v26, 0"); o("v_mov_b32 v27, 0")
    o(f"v_mov_b32 v20, {CNT}")
    o("ds_write_b128 v20, v[24:27]")
    def pool_init():
        o("v_and_b32 v20, 16, v0"); o("v_cmp_eq_u32 vcc, 0, v20")
        o(f"v_mov_b32 v21, {hex(OOB)}"); o("s_nop 0")
        o("v_cndmask_b32 v24, 0, v21, vcc")
        o("v_mov_b32 v25, v24"); o("v_mov_b32 v26, v24"); o("v_mov_b32 v27, v24")
        for i in range(5):
            o(f"ds_write_b128 v8, v[24:27] offset:{POOL + i*8192}")
    pool_init()
    o("s_waitcnt lgkmcnt(0)"); o("s_barrier")
    o("s_waitcnt vmcnt(25)")
    stamp(1)
    o(f"v_cmp_eq_u32 vcc, -2, v{EN}")
    o("s_cbranch_vccz K2_COMPACT")
    o("s_mov_b64 exec, vcc")
    o("v_lshrrev_b32 v20, 3, v0"); o("v_lshlrev_b32 v21, v20, 1") if False else None
    o("v_lshrrev_b32 v20, 3, v0")
    o("v_mov_b32 v22, 1"); o("v_lshlrev_b32 v21, v20, v22")
    o("v_lshrrev_b32 v20, 5, v20"); o("v_lshlrev_b32 v20, 2, v20")
    o(f"ds_or_b32 v20, v21 offset:{CNT+8}")
    o("s_mov_b64 exec, -1")
    lab("K2_COMPACT")
    o("s_mov_b32 s64, 0"); o("s_mov_b32 s65, 0")
    for i in range(4):
        e = EN + i; mv = 74 + 4*i; mb = mv + 2
        o(f"v_cmp_gt_u32 s[{mv}:{mv+1}], -2, v{e}")
        o(f"v_and_b32 v{16+i}, 63, v{e}")
        o(f"v_cmp_lt_u32 s[{mb}:{mb+1}], 19, v{16+i}")
        o(f"s_andn2_b64 s[66:67], s[{mv}:{mv+1}], s[{mb}:{mb+1}]")
        o(f"s_and_b64 s[68:69], s[{mv}:{mv+1}], s[{mb}:{mb+1}]")
        o("v_mov_b32 v28, s64"); o("v_mov_b32 v29, s65")
        o("v_mbcnt_lo_u32_b32 v28, s66, v28"); o("v_mbcnt_hi_u32_b32 v28, s67, v28")
        o("v_mbcnt_lo_u32_b32 v29, s68, v29"); o("v_mbcnt_hi_u32_b32 v29, s69, v29")
        o(f"v_cndmask_b32 v{20+i}, v28, v29, s[{mb}:{mb+1}]")
        o("s_bcnt1_i32_b64 s66, s[66:67]"); o("s_bcnt1_i32_b64 s68, s[68:69]")
        o("s_add_u32 s64, s64, s66"); o("s_add_u32 s65, s65, s68")
    o("s_lshl_b32 s65, s65, 16"); o("s_or_b32 s64, s64, s65")
    o("v_mov_b32 v28, s64"); o(f"v_mov_b32 v29, {CNT}")
    o("s_mov_b64 exec, 1")
    o("ds_add_rtn_u32 v28, v29, v28")
    o("s_mov_b64 exec, -1")
    for i in range(4):
        e = EN + i; mb = 76 + 4*i
        o(f"v_bfe_u32 v{32+2*i}, v{e}, 6, 14"); o(f"v_lshlrev_b32 v{32+2*i}, 9, v{32+2*i}")
        o(f"v_lshrrev_b32 v{33+2*i}, 20, v{e}"); o(f"v_add_lshl_u32 v{33+2*i}, v{33+2*i}, v11, 5")
        o(f"v_subrev_u32 v30, 20, v{16+i}")
        o(f"v_cndmask_b32 v{16+i}, v{16+i}, v30, s[{mb}:{mb+1}]")
        o(f"v_lshrrev_b32 v30, 3, v{16+i}"); o(f"v_and_b32 v31, 3, v{16+i}")
        o("v_lshl_or_b32 v30, v30, 2, v31")
        o(f"v_lshlrev_b32 v{40+i}, v30, 1") if False else None
        o(f"v_bfm_b32 v{40+i}, 1, v30")
        o(f"v_bfe_u32 v{44+i}, v{16+i}, 2, 1"); o(f"v_lshlrev_b32 v{44+i}, 7, v{44+i}")
    o("s_waitcnt lgkmcnt(0)")
    o("v_readfirstlane_b32 s64, v28")
    o("s_lshr_b32 s65, s64, 16"); o("s_and_b32 s64, s64, 0xffff")
    o("v_mov_b32 v28, s64"); o("v_mov_b32 v29, s65")
    for i in range(4):
        mv = 74 + 4*i; mb = mv + 2
        o(f"v_cndmask_b32 v30, v28, v29, s[{mb}:{mb+1}]")
        o(f"v_add_u32 v30, v30, v{20+i}")
        o("v_lshrrev_b32 v31, 5, v30"); o("v_and_b32 v30, 31, v30")
        o(f"v_sub_u32 v48, {TOPT}, v31")
        o(f"v_cndmask_b32 v31, v31, v48, s[{mb}:{mb+1}]")
        o("v_lshlrev_b32 v31, 9, v31")
        o("v_lshl_add_u32 v48, v30, 2, v31")
        o(f"v_add_u32 v49, v48, v{44+i}")
        o("v_lshrrev_b32 v50, 3, v30"); o("v_and_b32 v51, 3, v30")
        o("v_lshl_or_b32 v50, v50, 2, v51"); o("v_add_u32 v50, 16, v50")
        o("v_bfm_b32 v50, 1, v50")
        o("v_bfe_u32 v51, v30, 2, 1"); o("v_lshl_add_u32 v51, v51, 7, v31")
        o(f"v_lshl_add_u32 v51, v{16+i}, 2, v51")
        o(f"s_mov_b64 exec, s[{mv}:{mv+1}]")
        o(f"ds_write2_b32 v48, v{32+2*i}, v{33+2*i} offset0:0 offset1:32")
        o(f"ds_or_b32 v49, v{40+i} offset:256")
        o("ds_or_b32 v51, v50 offset:256")
        o("s_mov_b64 exec, -1")
    o("s_waitcnt lgkmcnt(0)"); o("s_barrier")
    o(f"v_mov_b32 v29, {CNT}")
    o("ds_read_b128 v[24:27], v29")
    o("s_cmp_eq_u32 s60, 0")
    o(f"s_cselect_b32 s66, 0, {TOPT*512}"); o("s_movk_i32 s67, 512"); o("s_cselect_b32 s67, s67, -512")
    o("v_add_u32 v4, s66, v3")
    o("v_lshl_add_u32 v5, v6, 2, s66")
    o("v_lshl_add_u32 v16, v1, 2, s66")
    o("s_waitcnt lgkmcnt(0)")
    o("v_readfirstlane_b32 s64, v24")
    o("v_readfirstlane_b32 s68, v26"); o("v_readfirstlane_b32 s69, v27")
    o("s_lshl_b32 s65, s60, 4"); o("s_lshr_b32 s64, s64, s65"); o("s_and_b32 s64, s64, 0xffff")
    o("s_add_u32 s64, s64, 31"); o("s_lshr_b32 s64, s64, 5")
    o("s_cmp_eq_u32 s72, 0"); o("s_cselect_b32 s70, s68, s70"); o("s_cselect_b32 s71, s69, s71")
    G = [200, 220, 240 - 4 + 0]; G = [196, 216, 236]
    MK = [17, 18, 19]
    RO = 20
    Z, ACC, PF, FR, BB = 40, 56, 72, 80, 20
    def issue(k):
        for c in range(4):
            o(f"ds_read_b128 {vr(RO+4*c,4)}, v4 offset:{32*c}")
        o("ds_read_b32 v36, v5 offset:128")
        o(f"ds_read_b32 v{MK[k]}, v16 offset:256")
        o("v_add_u32 v4, s67, v4"); o("v_add_u32 v5, s67, v5"); o("v_add_u32 v16, s67, v16")
        for c in range(4):
            o(f"s_waitcnt lgkmcnt({5-c})")
            for i in range(4):
                o(f"v_add_u32 v{RO+4*c+i}, v{RO+4*c+i}, v2")
            for i in range(4):
                o(f"buffer_load_dword v{G[k]+4*c+i}, v{RO+4*c+i}, s[{sT}:{sT+3}], 0 offen")
        o("s_waitcnt lgkmcnt(0)")
        o("v_add_u32 v36, v36, v3")
        o(f"buffer_load_dwordx4 {vr(G[k]+16,4)}, v36, s[{sE}:{sE+3}], 0 offen")
    stamp(2)
    issue(0); issue(1)
    o("s_cmp_eq_u32 s72, 0"); o("s_cbranch_scc0 K2_LOOP0")
    o("s_waitcnt vmcnt(34)")
    for s in range(8):
        mfma(Z, XF+4*s, WA+4*s, None if s == 0 else Z)
        mfma(ACC, XF+4*s, WU+4*s, None if s == 0 else ACC)
    o(f"s_mov_b32 s65, {hex(NLOG2E)}")
    o("s_nop 9")
    for v in range(16): o(f"v_mul_f32 v{Z+v}, s65, v{Z+v}")
    for i in range(8): o(f"v_cvt_pk_bf16_f32 v{PF+i}, v{Z+2*i}, v{Z+2*i+1}")
    stamp(3)
    def compute(k):
        g = G[k]
        for i in range(4):
            o(f"v_lshlrev_b32_sdwa v{37}, 4, v{MK[k]} dst_sel:DWORD dst_unused:UNUSED_PAD src0_sel:DWORD src1_sel:BYTE_{i}")
            o(f"ds_read_b128 {vr(FR+4*i,4)}, v37 offset:{LUT}")
        o("s_waitcnt vmcnt(34)")
        for v in range(16): o(f"v_lshlrev_b32 v{Z+v}, 16, v{g+v}")
        o("s_nop 1")
        mfma(Z, g+16, CF, Z)
        o("s_waitcnt lgkmcnt(2)")
        mfma(Z, FR, PF, Z); mfma(Z, FR+4, PF+4, Z)
        o("s_nop 11")
        for v in range(16): o(f"v_exp_f32 v{Z+v}, v{Z+v}")
        for v in range(16): o(f"v_add_f32 v{Z+v}, 1.0, v{Z+v}")
        for v in range(16): o(f"v_rcp_f32 v{Z+v}, v{Z+v}")
        for v in range(16): o(f"v_mul_f32 v{Z+v}, v{Z+v}, v{g+v}")
        for i in range(8): o(f"v_cvt_pk_bf16_f32 v{BB+i}, v{Z+2*i}, v{Z+2*i+1}")
        o("s_waitcnt lgkmcnt(0)")
        o("s_nop 0")
        mfma(ACC, FR+8, BB, ACC); mfma(ACC, FR+12, BB+4, ACC)
    for k in range(3):
        lab(f"K2_LOOP{k}")
        o("s_cmp_eq_u32 s64, 0"); o("s_cbranch_scc1 K2_BATCH_DONE")
        o("s_sub_u32 s64, s64, 1")
        issue((k + 2) % 3)
        compute(k)
    o("s_branch K2_LOOP0")
    lab("K2_BATCH_DONE")
    o("s_cmp_eq_u32 s72, 1"); o("s_cbranch_scc1 K2_HALF2")
    o("s_cmp_eq_u64 s[70:71], 0"); o("s_cbranch_scc1 K2_EPI")
    o("s_ff1_i32_b64 s73, s[70:71]"); o("s_bitset0_b64 s[70:71], s73")
    o("s_mov_b32 s72, 1"); o("s_mov_b32 s58, 0"); o("s_branch K2_RESCAN")
    lab("K2_HALF2")
    o("s_mov_b32 s72, 2"); o("s_mov_b32 s58, 2048")
    lab("K2_RESCAN")
    o("s_waitcnt vmcnt(0) lgkmcnt(0)")
    o(f"s_mul_i32 s59, s73, {CH}")
    o("s_add_u32 s57, s59, s58"); o("s_lshl_b32 s57, s57, 2")
    o(f"buffer_load_dwordx4 v[40:43], v8, s[{sD}:{sD+3}], s57 offen")
    o(f"buffer_load_dwordx4 v[44:47], v8, s[{sS}:{sS+3}], s57 offen")
    o("s_barrier")
    pool_init()
    o("v_mov_b32 v24, 0"); o(f"v_mov_b32 v20, {CNT}"); o("ds_write_b32 v20, v24")
    o("v_mov_b32 v11, s59")
    o("s_waitcnt vmcnt(0)")
    o(f"s_movk_i32 s57, {CH}")
    for i in range(4):
        o("v_lshlrev_b32 v20, 2, v0"); o("v_add_u32 v20, s58, v20"); o(f"v_add_u32 v20, {i}, v20")
        o(f"v_and_b32 v21, 0xff, v{40+i}")
        o("v_cmp_eq_u32 vcc, s2, v21"); o("v_cmp_gt_u32 s[66:67], s57, v20")
        o("s_and_b64 vcc, vcc, s[66:67]")
        o(f"v_lshrrev_b32 v21, 8, v{40+i}")
        o(f"v_lshl_or_b32 v21, v{44+i}, 6, v21"); o("v_lshl_or_b32 v21, v20, 20, v21")
        o(f"v_cndmask_b32 v{EN+i}, -1, v21, vcc")
    o("s_waitcnt lgkmcnt(0)"); o("s_barrier")
    o("s_branch K2_COMPACT")
    lab("K2_EPI")
    stamp(4)
    o(f"s_mov_b32 s65, {hex(NLOG2E)}")
    o("v_lshlrev_b32 v9, 18, v7"); o("v_lshl_add_u32 v9, v6, 1, v9")
    o("s_lshl_b32 s63, s61, 6"); o("s_add_u32 s62, s62, s63")
    o("s_nop 7")
    for v in range(12): o(f"v_mul_f32 v{Z+v}, s65, v{ACC+v}")
    for v in range(12): o(f"v_exp_f32 v{Z+v}, v{Z+v}")
    for v in range(12): o(f"v_add_f32 v{Z+v}, 1.0, v{Z+v}")
    for v in range(12): o(f"v_rcp_f32 v{Z+v}, v{Z+v}")
    for v in range(12): o(f"v_mul_f32 v{Z+v}, v{Z+v}, v{ACC+v}")
    for v in range(12): o(f"v_cvt_pk_bf16_f32 v{Z+v}, v{Z+v}, v{Z+v}")
    for v in range(12):
        if v == 8: o("s_mov_b32 exec_hi, 0")
        o(f"s_add_u32 s63, s62, {((v&3) + 8*(v>>2)) << 16}")
        o(f"buffer_store_short v{Z+v}, v9, s[{sO}:{sO+3}], s63 offen")
    stamp_out(1, 0)
    lab("K2_END")
    o("s_endpgm")

header(); k1(); k2()
L.append('.section .rodata,"a"')
kdesc("prep_kernel", 144, 102 if STAMPS else 56); kdesc(NAME + "_kernel", 256, 102 if STAMPS else 96)
out = sys.argv[1] if len(sys.argv) > 1 else "cdna_kernels/%s.s" % NAME
open(out, "w").write("\n".join(x for x in L if x is not None) + "\n")
```

```python
import sys
NAME = "standalone__edge_featured_mpnn_egc__graph"
N, E = 10000, 160000
NPROD, CH = 64, 2500
CELLS_OFF, TABLE_OFF, WPACK_OFF = 0, 0x200000, 0x800000
TABLE_BYTES = N * 512
NG = 157
NLOG2E = 0xBFB8AA3B
OOB = 0x7FFFF000
L = []
def o(s): L.append("    " + s)
def lab(s): L.append(s + ":")
def srd(d, b, nbytes, off=0):
    if off:
        o(f"s_add_u32 s{d}, s{b}, {hex(off)}"); o(f"s_addc_u32 s{d+1}, s{b+1}, 0")
    else:
        o(f"s_mov_b32 s{d}, s{b}"); o(f"s_mov_b32 s{d+1}, s{b+1}")
    o(f"s_mov_b32 s{d+2}, {hex(nbytes)}"); o(f"s_mov_b32 s{d+3}, 0x00020000")
def vr(a, n): return f"v[{a}:{a+n-1}]"
def mfma(d, a, b, c):
    cs = "0" if c is None else vr(c, 16)
    o(f"v_mfma_f32_32x32x16_bf16 {vr(d,16)}, {vr(a,4)}, {vr(b,4)}, {cs}")

STAMPS = "stamps" in sys.argv
def stamp(i):
    if STAMPS: o(f"s_memrealtime s[{90+2*i}:{91+2*i}]")
def stamp_init():
    if STAMPS:
        for i in range(1, 6): o(f"s_mov_b32 s{90+2*i}, 0")
        o("v_lshrrev_b32 v255, 6, v0") if False else None
        stamp(0)
def stamp_out(kid, role):
    if not STAMPS: return
    o("s_waitcnt vmcnt(0)")
    stamp(5)
    o("s_waitcnt lgkmcnt(0)")
    o("s_mov_b64 exec, -1")
    o("v_lshrrev_b32 v1, 6, v0"); o("v_and_b32 v2, 63, v0")
    o("v_lshlrev_b32 v1, 5, v1"); o("v_lshl_add_u32 v1, v2, 2, v1")
    for i in range(6): o(f"v_writelane_b32 v3, s{90+2*i}, {i}")
    o(f"s_mov_b32 s4, {role}"); o("v_writelane_b32 v3, s4, 6")
    o("s_mov_b32 s4, 0xC0FFEE"); o("v_writelane_b32 v3, s4, 7")
    if "dbg" in sys.argv:
        wg, slot, msk = {(0,0): (5, 12, 0xf), (0,1): (100, 0, 0x3f), (1,0): (77, 6, 0x3f)}[(kid, role)]
        o("v_readfirstlane_b32 s5, v1"); o("s_load_dwordx2 s[12:13], s[0:1], 64")
        o("s_waitcnt lgkmcnt(0)")
        o(f"s_add_u32 s8, s12, {512*(1-kid)}"); o("s_addc_u32 s9, s13, 0"); o("s_mov_b32 s10, 256"); o("s_mov_b32 s11, 0x00020000")
        o(f"s_xor_b32 s4, s2, {wg}"); o("s_or_b32 s4, s4, s5"); o("s_cmp_eq_u32 s4, 0"); o(f"s_cbranch_scc0 DBG{kid}{role}")
        o(f"v_lshlrev_b32 v1, 2, v2"); o(f"s_mov_b64 exec, {msk}")
        o(f"buffer_store_dword v3, v1, s[8:11], 0 offen offset:{4*slot}")
        lab(f"DBG{kid}{role}")
        return
    srd(8, 20, 0x100000, 0x4000000 + kid * 512 * 512)
    o("s_lshl_b32 s4, s2, 9")
    o("s_mov_b64 exec, 0xff")
    o("buffer_store_dword v3, v1, s[8:11], s4 offen")

def header():
    src = open("cdna_kernels/%s.s.ref" % NAME).read().split("\n")
    for l in src:
        if l.startswith("; Override"): break
        L.append(l)
    L.append("; @launch kernel=prep_kernel grid=(%d,1,1) block=(512,1,1) lds=81920" % (NPROD + NG + 1))
    L.append("; @launch kernel=%s_kernel grid=(256,1,1) block=(512,1,1) lds=%d" % (NAME, K2_LDS))
    L.append('.amdgcn_target "amdgcn-amd-amdhsa--gfx950"')
    L.append(".text")

def kstart(n):
    L.append(f".globl {n}"); L.append(".p2align 8"); L.append(f".type {n},@function"); lab(n)

def kdesc(n, vg, sg):
    L.append(".p2align 6")
    L.append(f".amdhsa_kernel {n}")
    for k, v in [("next_free_vgpr", vg), ("next_free_sgpr", sg), ("accum_offset", (vg + 3) // 4 * 4),
                 ("group_segment_fixed_size", 0), ("kernarg_size", 80), ("user_sgpr_count", 2),
                 ("user_sgpr_kernarg_segment_ptr", 1), ("system_sgpr_workgroup_id_x", 1)]:
        L.append(f"  .amdhsa_{k} {v}")
    L.append(".end_amdhsa_kernel")

def k1():
    kstart("prep_kernel")
    o(f"s_cmp_ge_u32 s2, {NPROD + NG + 1}"); o("s_cbranch_scc1 K1_END")
    o("s_load_dwordx16 s[4:19], s[0:1], 0")
    o("s_load_dwordx2 s[20:21], s[0:1], 72")
    stamp_init()
    o(f"s_cmp_ge_u32 s2, {NPROD}"); o("s_cbranch_scc1 K1_GEMM")
    o("v_lshlrev_b32 v1, 2, v0")
    o(f"s_mul_i32 s22, s2, {CH*4}")
    o("v_mov_b32 v20, -1"); o("v_mov_b32 v21, -1"); o("v_mov_b32 v22, -1"); o("v_mov_b32 v23, -1")
    o("v_lshlrev_b32 v2, 4, v0")
    o("v_mov_b32 v24, 0")
    o("s_waitcnt lgkmcnt(0)")
    srd(24, 8, E * 4); srd(28, 10, E * 4); srd(32, 20, 0x200000, CELLS_OFF)
    for i in range(5):
        o(f"s_add_u32 s23, s22, {i*2048}")
        o(f"buffer_load_dword v{4+i}, v1, s[28:31], s23 offen")
        o(f"buffer_load_dword v{10+i}, v1, s[24:27], s23 offen")
    for i in range(4):
        o(f"ds_write_b128 v2, v[20:23] offset:{i*8192}")
    o("ds_write_b32 v1, v24 offset:32768")
    o("v_mov_b32 v25, 1")
    o("s_waitcnt lgkmcnt(0)"); o("s_barrier")
    o(f"v_cmp_gt_u32 s[36:37], {CH - 2048}, v0") if False else None
    o(f"s_movk_i32 s23, {CH - 2048}")
    o("v_cmp_gt_u32 s[36:37], s23, v0")
    for i in range(5):
        o(f"s_waitcnt vmcnt({2*(4-i)+1})")
        if i == 4: o("s_mov_b64 exec, s[36:37]")
        o(f"v_and_b32 v{26+i}, 0xff, v{4+i}")
        o(f"v_lshlrev_b32 v16, 2, v{26+i}")
        o(f"ds_add_rtn_u32 v{32+i}, v16, v25 offset:32768")
    o("s_mov_b64 exec, -1")
    o("s_waitcnt vmcnt(0)")
    stamp(1)
    for i in range(5):
        o(f"v_lshrrev_b32 v{4+i}, 8, v{4+i}")
        o(f"v_lshl_or_b32 v{4+i}, v{10+i}, 6, v{4+i}")
        o(f"v_add_u32 v16, {i*512}, v0")
        o(f"v_lshl_or_b32 v{4+i}, v16, 20, v{4+i}")
    for i in range(5):
        o(f"s_waitcnt lgkmcnt({4-i})") if i == 0 or True else None
        o(f"v_cmp_gt_u32 vcc, 32, v{32+i}")
        o(f"v_lshlrev_b32 v16, 2, v{32+i}")
        o(f"v_lshl_add_u32 v{38+i}, v{26+i}, 7, v16")
        if i == 4: o("s_and_b64 vcc, vcc, s[36:37]")
        o(f"s_mov_b64 s[{40+2*i}:{41+2*i}], vcc")
    for i in range(5):
        o(f"s_mov_b64 exec, s[{40+2*i}:{41+2*i}]")
        o(f"ds_write_b32 v{38+i}, v{4+i}")
    o("s_mov_b64 exec, -1")
    o("s_waitcnt lgkmcnt(0)"); o("s_barrier")
    stamp(2)
    o("v_lshrrev_b32 v3, 3, v0")
    o("v_lshlrev_b32 v16, 2, v3")
    for i in range(4):
        o(f"ds_read_b128 {vr(44+4*i,4)}, v2 offset:{i*8192}")
        o(f"ds_read_b32 v{60+i}, v16 offset:{32768 + i*256}")
    o("v_and_b32 v17, 7, v0")
    o("v_cmp_eq_u32 vcc, 0, v17")
    o("v_lshlrev_b32 v17, 4, v17")
    o("v_lshl_add_u32 v17, v3, 13, v17")
    o("v_cndmask_b32 v18, -1, -2, vcc") if False else None
    o("v_mov_b32 v18, -2")
    o("v_cndmask_b32 v18, -1, v18, vcc")
    o("s_lshl_b32 s22, s2, 7")
    for i in range(4):
        o(f"s_waitcnt lgkmcnt({2*(3-i)})")
        o(f"v_cmp_lt_u32 vcc, 32, v{60+i}")
        o(f"s_add_u32 s23, s22, {i*64*8192}")
        o("s_nop 0")
        o(f"v_cndmask_b32 v{44+4*i}, v{44+4*i}, v18, vcc")
        for c in range(1, 4):
            o(f"v_cndmask_b32 v{44+4*i+c}, v{44+4*i+c}, v20, vcc")
        o(f"buffer_store_dwordx4 {vr(44+4*i,4)}, v17, s[32:35], s23 offen")
    stamp(3); stamp_out(0, 0)
    o("s_endpgm")
    lab("K1_GEMM")
    o(f"s_sub_u32 s3, s2, {NPROD}")
    o("v_lshlrev_b32 v1, 4, v0")
    o("v_lshrrev_b32 v2, 4, v0")
    o("v_mul_u32_u24 v2, 320, v2")
    o("v_and_b32 v3, 15, v0")
    o("v_lshl_add_u32 v2, v3, 4, v2")
    o("v_lshrrev_b32 v4, 6, v0")
    o("v_and_b32 v5, 63, v0")
    o("v_readfirstlane_b32 s36, v4")
    o("s_waitcnt lgkmcnt(0)")
    o(f"s_cmp_eq_u32 s3, {NG}")
    o("s_cselect_b32 s22, 0, 32768")
    o("s_cselect_b32 s28, s12, s14"); o("s_cselect_b32 s29, s13, s15")
    o("s_mov_b32 s30, 32768"); o("s_mov_b32 s31, 0x00020000")
    srd(24, 16, 272 * 256)
    srd(32, 4, N * 256)
    for i in range(4):
        o(f"s_add_u32 s23, s22, {i*8192}")
        o(f"buffer_load_dwordx4 {vr(16+4*i,4)}, v1, s[24:27], s23 offen")
    for i in range(4):
        o(f"s_mov_b32 s23, {i*8192}")
        o(f"buffer_load_dwordx4 {vr(32+4*i,4)}, v1, s[28:31], s23 offen")
    o("s_lshr_b32 s37, s36, 2"); o("s_and_b32 s38, s36, 3")
    o("s_lshl_b32 s39, s3, 1"); o("s_add_u32 s39, s39, s37")
    o("s_lshl_b32 s40, s39, 13")
    o("v_and_b32 v6, 31, v5"); o("v_lshrrev_b32 v7, 5, v5")
    o("v_lshlrev_b32 v8, 8, v6"); o("v_lshl_add_u32 v8, v7, 4, v8")
    for s in range(8):
        o(f"buffer_load_dwordx4 {vr(48+4*s,4)}, v8, s[32:35], s40 offen offset:{32*s}")
    o("v_bfe_u32 v9, v5, 2, 2")
    o("v_lshl_add_u32 v9, v7, 3, v9")
    o("v_mul_u32_u24 v9, 320, v9")
    o("v_bfe_u32 v10, v5, 4, 1"); o("v_lshl_add_u32 v9, v10, 5, v9")
    o("v_and_b32 v10, 3, v5"); o("v_lshl_add_u32 v9, v10, 3, v9")
    o("s_lshl_b32 s41, s38, 6"); o("v_add_u32 v9, s41, v9")
    o("v_add_u32 v10, 40960, v9")
    o("v_add_u32 v11, 40960, v2")
    for i in range(4):
        o(f"s_waitcnt vmcnt({15-i})")
        o(f"ds_write_b128 v2, {vr(16+4*i,4)} offset:{i*10240}")
    for i in range(4):
        o(f"s_waitcnt vmcnt({11-i})")
        o(f"ds_write_b128 v11, {vr(32+4*i,4)} offset:{i*10240}")
    o("s_waitcnt lgkmcnt(0)"); o("s_barrier")
    stamp(1)
    W1, W2 = 80, 112
    for s in range(8):
        for u in range(2):
            o(f"ds_read_b64_tr_b16 {vr(W1+4*s+2*u,2)}, v9 offset:{(16*s+4*u)*320}")
        for u in range(2):
            o(f"ds_read_b64_tr_b16 {vr(W2+4*s+2*u,2)}, v10 offset:{(16*s+4*u)*320}")
        if s % 2 == 1: o("s_waitcnt lgkmcnt(0)")
    o(f"s_cmp_eq_u32 s3, {NG}"); o("s_cbranch_scc1 K1_PACK")
    o("s_waitcnt vmcnt(0)")
    stamp(2)
    AQ, AH = 16, 32
    for s in range(8):
        mfma(AQ, 48+4*s, W1+4*s, None if s == 0 else AQ)
        mfma(AH, 48+4*s, W2+4*s, None if s == 0 else AH)
    srd(24, 20, TABLE_BYTES, TABLE_OFF)
    o("s_lshl_b32 s40, s39, 14")
    o("s_lshl_b32 s41, s38, 7"); o("s_add_u32 s40, s40, s41")
    o("v_lshlrev_b32 v8, 11, v7"); o("v_lshl_add_u32 v8, v6, 2, v8")
    o(f"s_mov_b32 s42, {hex(NLOG2E)}"); o("s_mov_b32 s43, 0x7fffffff"); o("s_mov_b32 s44, 0xffff")
    o("s_mov_b32 s45, 0x8000"); o("s_mov_b32 s46, 0x7fff0000")
    o("s_nop 7")
    for v in range(16):
        o(f"v_mul_f32 v{AQ+v}, s42, v{AQ+v}")
    for v in range(16):
        o(f"v_cvt_pk_bf16_f32 v{AQ+v}, v{AQ+v}, v{AQ+v}")
    for v in range(16):
        o(f"v_and_b32 v{AQ+v}, s44, v{AQ+v}")
        o(f"v_and_b32 v48, s43, v{AH+v}")
        o(f"v_sub_u32 v48, v48, v{AQ+v}")
        o("v_add_u32 v48, s45, v48")
        o("v_max_i32 v48, 0, v48")
        o(f"v_bfi_b32 v{AH+v}, s46, v48, v{AH+v}")
        o(f"v_bfi_b32 v{AH+v}, s44, v{AQ+v}, v{AH+v}")
        if v % 4 == 0: o(f"s_add_u32 s41, s40, {4096*(v//4)}")
        o(f"buffer_store_dword v{AH+v}, v8, s[24:27], s41 offen offset:{512*(v%4)}")
    stamp(3); stamp_out(0, 1)
    o("s_endpgm")
    lab("K1_PACK")
    srd(28, 20, 0x11000, WPACK_OFF)
    o("v_lshlrev_b32 v8, 4, v5")
    o("s_cmp_eq_u32 s37, 0"); o("s_cbranch_scc0 K1_PACKC")
    o("s_lshl_b32 s40, s38, 13")
    for s in range(8):
        if s % 4 == 0:
            o(f"s_add_u32 s41, s40, {s*1024}"); o(f"s_add_u32 s42, s40, {s*1024 + 32768}")
        o(f"buffer_store_dwordx4 {vr(W1+4*s,4)}, v8, s[28:31], s41 offen offset:{(s%4)*1024}")
        o(f"buffer_store_dwordx4 {vr(W2+4*s,4)}, v8, s[28:31], s42 offen offset:{(s%4)*1024}")
    o("s_endpgm")
    lab("K1_PACKC")
    o("v_lshlrev_b32 v12, 11, v7"); o("v_lshl_add_u32 v12, v6, 1, v12")
    o("s_lshl_b32 s40, s38, 6"); o("s_add_u32 s40, s40, 65536")
    for i in range(8):
        o(f"buffer_load_ushort v{16+i}, v12, s[24:27], s40 offen offset:{256*i}")
    o(f"s_mov_b32 s42, {hex(NLOG2E)}")
    o("s_waitcnt vmcnt(0)")
    for i in range(8):
        o(f"v_lshlrev_b32 v{16+i}, 16, v{16+i}")
        o(f"v_mul_f32 v{16+i}, s42, v{16+i}")
    for i in range(4):
        o(f"v_cvt_pk_bf16_f32 v{24+i}, v{16+2*i}, v{17+2*i}")
    o("s_lshl_b32 s40, s38, 10"); o("s_add_u32 s40, s40, 65536")
    o("buffer_store_dwordx4 v[24:27], v8, s[28:31], s40 offen")
    lab("K1_END")
    o("s_endpgm")

POOL = 0; POOL_BYTES = 40960; TOPT = 68
LUT = 40960; CNT = LUT + 4096; K2_LDS = CNT + 64
def k2():
    kn = NAME + "_kernel"
    kstart(kn)
    o("s_cmp_ge_u32 s2, 256"); o("s_cbranch_scc1 K2_END")
    o("s_load_dwordx16 s[4:19], s[0:1], 0")
    o("s_load_dwordx2 s[20:21], s[0:1], 72")
    stamp_init()
    o("v_lshlrev_b32 v8, 4, v0")
    o("v_lshrrev_b32 v4, 6, v0"); o("v_and_b32 v1, 63, v0")
    o("v_readfirstlane_b32 s3, v4")
    o("v_and_b32 v6, 31, v1"); o("v_lshrrev_b32 v7, 5, v1")
    o("s_lshr_b32 s60, s3, 2"); o("s_and_b32 s61, s3, 3")
    o("s_waitcnt lgkmcnt(0)")
    sW, sX, sE, sT, sO, sS, sD = 24, 28, 32, 36, 40, 44, 48
    srd(sW, 20, WPACK_OFF + 0x11000)
    o("s_lshl_b32 s22, s2, 13")
    EN = 12
    o(f"buffer_load_dwordx4 {vr(EN,4)}, v8, s[{sW}:{sW+3}], s22 offen")
    srd(sX, 4, N * 256); srd(sE, 6, E * 32); srd(sT, 20, TABLE_BYTES, TABLE_OFF); srd(sO, 18, N * 256)
    srd(sS, 8, E * 4); srd(sD, 10, E * 4)
    XF, WA, WU, CF = 96, 128, 160, 192
    o("s_mul_i32 s62, s60, 20"); o("s_lshl_b32 s62, s62, 16"); o("s_lshl_b32 s63, s2, 8")
    o("s_add_u32 s62, s62, s63")
    o("v_lshlrev_b32 v9, 16, v6"); o("v_lshl_add_u32 v9, v7, 4, v9")
    for s in range(8):
        o(f"buffer_load_dwordx4 {vr(XF+4*s,4)}, v9, s[{sX}:{sX+3}], s62 offen offset:{32*s}")
    o("v_lshlrev_b32 v10, 4, v1")
    o("s_lshl_b32 s63, s61, 13"); o(f"s_add_u32 s63, s63, {hex(WPACK_OFF)}")
    for s in range(8):
        if s % 4 == 0:
            o(f"s_add_u32 s64, s63, {s*1024}"); o(f"s_add_u32 s65, s63, {s*1024+32768}")
        o(f"buffer_load_dwordx4 {vr(WA+4*s,4)}, v10, s[{sW}:{sW+3}], s64 offen offset:{(s%4)*1024}")
        o(f"buffer_load_dwordx4 {vr(WU+4*s,4)}, v10, s[{sW}:{sW+3}], s65 offen offset:{(s%4)*1024}")
    o("s_lshl_b32 s63, s61, 10"); o(f"s_add_u32 s63, s63, {hex(WPACK_OFF+65536)}")
    o(f"buffer_load_dwordx4 {vr(CF,4)}, v10, s[{sW}:{sW+3}], s63 offen")
    for i in range(4):
        o(f"v_bfe_u32 v{16+i}, v0, {2*i}, 1"); o(f"v_bfe_u32 v20, v0, {2*i+1}, 1")
        o(f"v_lshl_or_b32 v{16+i}, v20, 16, v{16+i}")
        o(f"v_mul_u32_u24 v{16+i}, 0x3f80, v{16+i}")
    o("v_and_b32 v20, 0xfff, v8")
    o(f"ds_write_b128 v20, v[16:19] offset:{LUT}")
    o("s_lshl_b32 s63, s61, 7")
    o("v_lshlrev_b32 v2, 2, v6"); o("v_add_u32 v2, s63, v2")
    o("v_lshlrev_b32 v3, 4, v7")
    o("v_lshrrev_b32 v11, 3, v0"); o(f"v_mul_u32_u24 v11, {CH}, v11")
    o("s_mov_b64 s[70:71], 0")
    o("s_mov_b32 s72, 0")
    o("v_mov_b32 v24, 0"); o("v_mov_b32 v25, 0"); o("v_mov_b32 v26, 0"); o("v_mov_b32 v27, 0")
    o(f"v_mov_b32 v20, {CNT}")
    o("ds_write_b128 v20, v[24:27]")
    def pool_init():
        o("v_and_b32 v20, 16, v0"); o("v_cmp_eq_u32 vcc, 0, v20")
        o(f"v_mov_b32 v21, {hex(OOB)}"); o("s_nop 0")
        o("v_cndmask_b32 v24, 0, v21, vcc")
        o("v_mov_b32 v25, v24"); o("v_mov_b32 v26, v24"); o("v_mov_b32 v27, v24")
        for i in range(5):
            o(f"ds_write_b128 v8, v[24:27] offset:{POOL + i*8192}")
    pool_init()
    o("s_waitcnt lgkmcnt(0)"); o("s_barrier")
    o("s_waitcnt vmcnt(25)")
    stamp(1)
    o(f"v_cmp_eq_u32 vcc, -2, v{EN}")
    o("s_cbranch_vccz K2_COMPACT")
    o("s_mov_b64 exec, vcc")
    o("v_lshrrev_b32 v20, 3, v0"); o("v_lshlrev_b32 v21, v20, 1") if False else None
    o("v_lshrrev_b32 v20, 3, v0")
    o("v_mov_b32 v22, 1"); o("v_lshlrev_b32 v21, v20, v22")
    o("v_lshrrev_b32 v20, 5, v20"); o("v_lshlrev_b32 v20, 2, v20")
    o(f"ds_or_b32 v20, v21 offset:{CNT+8}")
    o("s_mov_b64 exec, -1")
    lab("K2_COMPACT")
    o("s_mov_b32 s64, 0"); o("s_mov_b32 s65, 0")
    for i in range(4):
        e = EN + i; mv = 74 + 4*i; mb = mv + 2
        o(f"v_cmp_gt_u32 s[{mv}:{mv+1}], -2, v{e}")
        o(f"v_and_b32 v{16+i}, 63, v{e}")
        o(f"v_cmp_lt_u32 s[{mb}:{mb+1}], 19, v{16+i}")
        o(f"s_andn2_b64 s[66:67], s[{mv}:{mv+1}], s[{mb}:{mb+1}]")
        o(f"s_and_b64 s[68:69], s[{mv}:{mv+1}], s[{mb}:{mb+1}]")
        o("v_mov_b32 v28, s64"); o("v_mov_b32 v29, s65")
        o("v_mbcnt_lo_u32_b32 v28, s66, v28"); o("v_mbcnt_hi_u32_b32 v28, s67, v28")
        o("v_mbcnt_lo_u32_b32 v29, s68, v29"); o("v_mbcnt_hi_u32_b32 v29, s69, v29")
        o(f"v_cndmask_b32 v{20+i}, v28, v29, s[{mb}:{mb+1}]")
        o("s_bcnt1_i32_b64 s66, s[66:67]"); o("s_bcnt1_i32_b64 s68, s[68:69]")
        o("s_add_u32 s64, s64, s66"); o("s_add_u32 s65, s65, s68")
    o("s_lshl_b32 s65, s65, 16"); o("s_or_b32 s64, s64, s65")
    o("v_mov_b32 v28, s64"); o(f"v_mov_b32 v29, {CNT}")
    o("s_mov_b64 exec, 1")
    o("ds_add_rtn_u32 v28, v29, v28")
    o("s_mov_b64 exec, -1")
    for i in range(4):
        e = EN + i; mb = 76 + 4*i
        o(f"v_bfe_u32 v{32+2*i}, v{e}, 6, 14"); o(f"v_lshlrev_b32 v{32+2*i}, 9, v{32+2*i}")
        o(f"v_lshrrev_b32 v{33+2*i}, 20, v{e}"); o(f"v_add_lshl_u32 v{33+2*i}, v{33+2*i}, v11, 5")
        o(f"v_subrev_u32 v30, 20, v{16+i}")
        o(f"v_cndmask_b32 v{16+i}, v{16+i}, v30, s[{mb}:{mb+1}]")
        o(f"v_lshrrev_b32 v30, 3, v{16+i}"); o(f"v_and_b32 v31, 3, v{16+i}")
        o("v_lshl_or_b32 v30, v30, 2, v31")
        o(f"v_lshlrev_b32 v{40+i}, v30, 1") if False else None
        o(f"v_bfm_b32 v{40+i}, 1, v30")
        o(f"v_bfe_u32 v{44+i}, v{16+i}, 2, 1"); o(f"v_lshlrev_b32 v{44+i}, 7, v{44+i}")
    o("s_waitcnt lgkmcnt(0)")
    o("v_readfirstlane_b32 s64, v28")
    o("s_lshr_b32 s65, s64, 16"); o("s_and_b32 s64, s64, 0xffff")
    o("v_mov_b32 v28, s64"); o("v_mov_b32 v29, s65")
    for i in range(4):
        mv = 74 + 4*i; mb = mv + 2
        o(f"v_cndmask_b32 v30, v28, v29, s[{mb}:{mb+1}]")
        o(f"v_add_u32 v30, v30, v{20+i}")
        o("v_lshrrev_b32 v31, 5, v30"); o("v_and_b32 v30, 31, v30")
        o(f"v_sub_u32 v48, {TOPT}, v31")
        o(f"v_cndmask_b32 v31, v31, v48, s[{mb}:{mb+1}]")
        o("v_lshlrev_b32 v31, 9, v31")
        o("v_lshl_add_u32 v48, v30, 2, v31")
        o(f"v_add_u32 v49, v48, v{44+i}")
        o("v_lshrrev_b32 v50, 3, v30"); o("v_and_b32 v51, 3, v30")
        o("v_lshl_or_b32 v50, v50, 2, v51"); o("v_add_u32 v50, 16, v50")
        o("v_bfm_b32 v50, 1, v50")
        o("v_bfe_u32 v51, v30, 2, 1"); o("v_lshl_add_u32 v51, v51, 7, v31")
        o(f"v_lshl_add_u32 v51, v{16+i}, 2, v51")
        o(f"s_mov_b64 exec, s[{mv}:{mv+1}]")
        o(f"ds_write2_b32 v48, v{32+2*i}, v{33+2*i} offset0:0 offset1:32")
        o(f"ds_or_b32 v49, v{40+i} offset:256")
        o("ds_or_b32 v51, v50 offset:256")
        o("s_mov_b64 exec, -1")
    o("s_waitcnt lgkmcnt(0)"); o("s_barrier")
    o(f"v_mov_b32 v29, {CNT}")
    o("ds_read_b128 v[24:27], v29")
    o("s_cmp_eq_u32 s60, 0")
    o(f"s_cselect_b32 s66, 0, {TOPT*512}"); o("s_movk_i32 s67, 512"); o("s_cselect_b32 s67, s67, -512")
    o("v_add_u32 v4, s66, v3")
    o("v_lshl_add_u32 v5, v6, 2, s66")
    o("v_lshl_add_u32 v16, v1, 2, s66")
    o("s_waitcnt lgkmcnt(0)")
    o("v_readfirstlane_b32 s64, v24")
    o("v_readfirstlane_b32 s68, v26"); o("v_readfirstlane_b32 s69, v27")
    o("s_lshl_b32 s65, s60, 4"); o("s_lshr_b32 s64, s64, s65"); o("s_and_b32 s64, s64, 0xffff")
    o("s_add_u32 s64, s64, 31"); o("s_lshr_b32 s64, s64, 5")
    o("s_cmp_eq_u32 s72, 0"); o("s_cselect_b32 s70, s68, s70"); o("s_cselect_b32 s71, s69, s71")
    G = [200, 220, 240 - 4 + 0]; G = [196, 216, 236]
    MK = [17, 18, 19]
    RO = 20
    Z, ACC, PF, FR, BB = 40, 56, 72, 80, 20
    def issue(k):
        for c in range(4):
            o(f"ds_read_b128 {vr(RO+4*c,4)}, v4 offset:{32*c}")
        o("ds_read_b32 v36, v5 offset:128")
        o(f"ds_read_b32 v{MK[k]}, v16 offset:256")
        o("v_add_u32 v4, s67, v4"); o("v_add_u32 v5, s67, v5"); o("v_add_u32 v16, s67, v16")
        for c in range(4):
            o(f"s_waitcnt lgkmcnt({5-c})")
            for i in range(4):
                o(f"v_add_u32 v{RO+4*c+i}, v{RO+4*c+i}, v2")
            for i in range(4):
                o(f"buffer_load_dword v{G[k]+4*c+i}, v{RO+4*c+i}, s[{sT}:{sT+3}], 0 offen")
        o("s_waitcnt lgkmcnt(0)")
        o("v_add_u32 v36, v36, v3")
        o(f"buffer_load_dwordx4 {vr(G[k]+16,4)}, v36, s[{sE}:{sE+3}], 0 offen")
    stamp(2)
    issue(0); issue(1)
    o("s_cmp_eq_u32 s72, 0"); o("s_cbranch_scc0 K2_LOOP0")
    o("s_waitcnt vmcnt(34)")
    for s in range(8):
        mfma(Z, XF+4*s, WA+4*s, None if s == 0 else Z)
        mfma(ACC, XF+4*s, WU+4*s, None if s == 0 else ACC)
    o(f"s_mov_b32 s65, {hex(NLOG2E)}")
    o("s_nop 9")
    for v in range(16): o(f"v_mul_f32 v{Z+v}, s65, v{Z+v}")
    for i in range(8): o(f"v_cvt_pk_bf16_f32 v{PF+i}, v{Z+2*i}, v{Z+2*i+1}")
    stamp(3)
    def compute(k):
        g = G[k]
        for i in range(4):
            o(f"v_lshlrev_b32_sdwa v{37}, 4, v{MK[k]} dst_sel:DWORD dst_unused:UNUSED_PAD src0_sel:DWORD src1_sel:BYTE_{i}")
            o(f"ds_read_b128 {vr(FR+4*i,4)}, v37 offset:{LUT}")
        o("s_waitcnt vmcnt(34)")
        for v in range(16): o(f"v_lshlrev_b32 v{Z+v}, 16, v{g+v}")
        o("s_nop 1")
        mfma(Z, g+16, CF, Z)
        o("s_waitcnt lgkmcnt(2)")
        mfma(Z, FR, PF, Z); mfma(Z, FR+4, PF+4, Z)
        o("s_nop 11")
        for v in range(16): o(f"v_exp_f32 v{Z+v}, v{Z+v}")
        for v in range(16): o(f"v_add_f32 v{Z+v}, 1.0, v{Z+v}")
        for v in range(16): o(f"v_rcp_f32 v{Z+v}, v{Z+v}")
        for v in range(16): o(f"v_mul_f32 v{Z+v}, v{Z+v}, v{g+v}")
        for i in range(8): o(f"v_cvt_pk_bf16_f32 v{BB+i}, v{Z+2*i}, v{Z+2*i+1}")
        o("s_waitcnt lgkmcnt(0)")
        o("s_nop 0")
        mfma(ACC, FR+8, BB, ACC); mfma(ACC, FR+12, BB+4, ACC)
    for k in range(3):
        lab(f"K2_LOOP{k}")
        o("s_cmp_eq_u32 s64, 0"); o("s_cbranch_scc1 K2_BATCH_DONE")
        o("s_sub_u32 s64, s64, 1")
        issue((k + 2) % 3)
        compute(k)
    o("s_branch K2_LOOP0")
    lab("K2_BATCH_DONE")
    o("s_cmp_eq_u32 s72, 1"); o("s_cbranch_scc1 K2_HALF2")
    o("s_cmp_eq_u64 s[70:71], 0"); o("s_cbranch_scc1 K2_EPI")
    o("s_ff1_i32_b64 s73, s[70:71]"); o("s_bitset0_b64 s[70:71], s73")
    o("s_mov_b32 s72, 1"); o("s_mov_b32 s58, 0"); o("s_branch K2_RESCAN")
    lab("K2_HALF2")
    o("s_mov_b32 s72, 2"); o("s_mov_b32 s58, 2048")
    lab("K2_RESCAN")
    o("s_waitcnt vmcnt(0) lgkmcnt(0)")
    o(f"s_mul_i32 s59, s73, {CH}")
    o("s_add_u32 s57, s59, s58"); o("s_lshl_b32 s57, s57, 2")
    o(f"buffer_load_dwordx4 v[40:43], v8, s[{sD}:{sD+3}], s57 offen")
    o(f"buffer_load_dwordx4 v[44:47], v8, s[{sS}:{sS+3}], s57 offen")
    o("s_barrier")
    pool_init()
    o("v_mov_b32 v24, 0"); o(f"v_mov_b32 v20, {CNT}"); o("ds_write_b32 v20, v24")
    o("v_mov_b32 v11, s59")
    o("s_waitcnt vmcnt(0)")
    o(f"s_movk_i32 s57, {CH}")
    for i in range(4):
        o("v_lshlrev_b32 v20, 2, v0"); o("v_add_u32 v20, s58, v20"); o(f"v_add_u32 v20, {i}, v20")
        o(f"v_and_b32 v21, 0xff, v{40+i}")
        o("v_cmp_eq_u32 vcc, s2, v21"); o("v_cmp_gt_u32 s[66:67], s57, v20")
        o("s_and_b64 vcc, vcc, s[66:67]")
        o(f"v_lshrrev_b32 v21, 8, v{40+i}")
        o(f"v_lshl_or_b32 v21, v{44+i}, 6, v21"); o("v_lshl_or_b32 v21, v20, 20, v21")
        o(f"v_cndmask_b32 v{EN+i}, -1, v21, vcc")
    o("s_waitcnt lgkmcnt(0)"); o("s_barrier")
    o("s_branch K2_COMPACT")
    lab("K2_EPI")
    stamp(4)
    o(f"s_mov_b32 s65, {hex(NLOG2E)}")
    o("v_lshlrev_b32 v9, 18, v7"); o("v_lshl_add_u32 v9, v6, 1, v9")
    o("s_lshl_b32 s63, s61, 6"); o("s_add_u32 s62, s62, s63")
    o("s_nop 7")
    for v in range(12): o(f"v_mul_f32 v{Z+v}, s65, v{ACC+v}")
    for v in range(12): o(f"v_exp_f32 v{Z+v}, v{Z+v}")
    for v in range(12): o(f"v_add_f32 v{Z+v}, 1.0, v{Z+v}")
    for v in range(12): o(f"v_rcp_f32 v{Z+v}, v{Z+v}")
    for v in range(12): o(f"v_mul_f32 v{Z+v}, v{Z+v}, v{ACC+v}")
    for v in range(12): o(f"v_cvt_pk_bf16_f32 v{Z+v}, v{Z+v}, v{Z+v}")
    for v in range(12):
        if v == 8: o("s_mov_b32 exec_hi, 0")
        o(f"s_add_u32 s63, s62, {((v&3) + 8*(v>>2)) << 16}")
        o(f"buffer_store_short v{Z+v}, v9, s[{sO}:{sO+3}], s63 offen")
    stamp_out(1, 0)
    lab("K2_END")
    o("s_endpgm")

header(); k1(); k2()
L.append('.section .rodata,"a"')
kdesc("prep_kernel", 144, 102 if STAMPS else 56); kdesc(NAME + "_kernel", 256, 102 if STAMPS else 96)
out = sys.argv[1] if len(sys.argv) > 1 else "cdna_kernels/%s.s" % NAME
open(out, "w").write("\n".join(x for x in L if x is not None) + "\n")
```

```python
import sys
NAME = "standalone__edge_featured_mpnn_egc__graph"
N, E = 10000, 160000
NPROD, CH = 64, 2500
CELLS_OFF, TABLE_OFF, WPACK_OFF = 0, 0x200000, 0x800000
TABLE_BYTES = N * 512
NG = 157
NLOG2E = 0xBFB8AA3B
OOB = 0x7FFFF000
L = []
def o(s): L.append("    " + s)
def lab(s): L.append(s + ":")
def srd(d, b, nbytes, off=0):
    if off:
        o(f"s_add_u32 s{d}, s{b}, {hex(off)}"); o(f"s_addc_u32 s{d+1}, s{b+1}, 0")
    else:
        o(f"s_mov_b32 s{d}, s{b}"); o(f"s_mov_b32 s{d+1}, s{b+1}")
    o(f"s_mov_b32 s{d+2}, {hex(nbytes)}"); o(f"s_mov_b32 s{d+3}, 0x00020000")
def vr(a, n): return f"v[{a}:{a+n-1}]"
def mfma(d, a, b, c):
    cs = "0" if c is None else vr(c, 16)
    o(f"v_mfma_f32_32x32x16_bf16 {vr(d,16)}, {vr(a,4)}, {vr(b,4)}, {cs}")

STAMPS = "stamps" in sys.argv
def stamp(i):
    if STAMPS: o(f"s_memrealtime s[{90+2*i}:{91+2*i}]")
def stamp_init():
    if STAMPS:
        for i in range(1, 6): o(f"s_mov_b32 s{90+2*i}, 0")
        o("v_lshrrev_b32 v255, 6, v0") if False else None
        stamp(0)
def stamp_out(kid, role):
    if not STAMPS: return
    o("s_waitcnt vmcnt(0)")
    stamp(5)
    o("s_waitcnt lgkmcnt(0)")
    o("s_mov_b64 exec, -1")
    o("v_lshrrev_b32 v1, 6, v0"); o("v_and_b32 v2, 63, v0")
    o("v_lshlrev_b32 v1, 5, v1"); o("v_lshl_add_u32 v1, v2, 2, v1")
    for i in range(6): o(f"v_writelane_b32 v3, s{90+2*i}, {i}")
    o(f"s_mov_b32 s4, {role}"); o("v_writelane_b32 v3, s4, 6")
    o("s_mov_b32 s4, 0xC0FFEE"); o("v_writelane_b32 v3, s4, 7")
    if "dbg" in sys.argv:
        wg, slot, msk = {(0,0): (5, 12, 0xf), (0,1): (100, 0, 0x3f), (1,0): (77, 6, 0x3f)}[(kid, role)]
        o("v_readfirstlane_b32 s5, v1"); o("s_load_dwordx2 s[12:13], s[0:1], 64")
        o("s_waitcnt lgkmcnt(0)")
        o(f"s_add_u32 s8, s12, {512*(1-kid)}"); o("s_addc_u32 s9, s13, 0"); o("s_mov_b32 s10, 256"); o("s_mov_b32 s11, 0x00020000")
        o(f"s_xor_b32 s4, s2, {wg}"); o("s_or_b32 s4, s4, s5"); o("s_cmp_eq_u32 s4, 0"); o(f"s_cbranch_scc0 DBG{kid}{role}")
        o(f"v_lshlrev_b32 v1, 2, v2"); o(f"s_mov_b64 exec, {msk}")
        o(f"buffer_store_dword v3, v1, s[8:11], 0 offen offset:{4*slot}")
        lab(f"DBG{kid}{role}")
        return
    srd(8, 20, 0x100000, 0x4000000 + kid * 512 * 512)
    o("s_lshl_b32 s4, s2, 9")
    o("s_mov_b64 exec, 0xff")
    o("buffer_store_dword v3, v1, s[8:11], s4 offen")

def header():
    src = open("cdna_kernels/%s.s.ref" % NAME).read().split("\n")
    for l in src:
        if l.startswith("; Override"): break
        L.append(l)
    L.append("; @launch kernel=prep_kernel grid=(%d,1,1) block=(512,1,1) lds=%d" % (NPROD + NG + 1, K1_LDS))
    L.append("; @launch kernel=%s_kernel grid=(256,1,1) block=(1024,1,1) lds=%d" % (NAME, K2_LDS))
    L.append('.amdgcn_target "amdgcn-amd-amdhsa--gfx950"')
    L.append(".text")

def kstart(n):
    L.append(f".globl {n}"); L.append(".p2align 8"); L.append(f".type {n},@function"); lab(n)

def kdesc(n, vg, sg):
    L.append(".p2align 6")
    L.append(f".amdhsa_kernel {n}")
    for k, v in [("next_free_vgpr", vg), ("next_free_sgpr", sg), ("accum_offset", (vg + 3) // 4 * 4),
                 ("group_segment_fixed_size", 0), ("kernarg_size", 80), ("user_sgpr_count", 2),
                 ("user_sgpr_kernarg_segment_ptr", 1), ("system_sgpr_workgroup_id_x", 1)]:
        L.append(f"  .amdhsa_{k} {v}")
    L.append(".end_amdhsa_kernel")

NPF = 0 if "nopf" in sys.argv else 3
K1_LDS = 81920 + 64 * 272
def prefetch_e(va="v1"):
    if not NPF: return
    srd(48, 6, E * 32)
    o("s_mul_i32 s52, s2, 24576")
    for i in range(3):
        o(f"buffer_load_dwordx4 {vr(144+4*i,4)}, {va}, s[48:51], s52 offen")
        if i < 2: o("s_add_u32 s52, s52, 8192")
def k1():
    kstart("prep_kernel")
    o(f"s_cmp_ge_u32 s2, {NPROD + NG + 1}"); o("s_cbranch_scc1 K1_END")
    o("s_load_dwordx16 s[4:19], s[0:1], 0")
    o("s_load_dwordx2 s[20:21], s[0:1], 72")
    stamp_init()
    o(f"s_cmp_ge_u32 s2, {NPROD}"); o("s_cbranch_scc1 K1_GEMM")
    o("v_lshlrev_b32 v1, 2, v0")
    o(f"s_mul_i32 s22, s2, {CH*4}")
    o("v_mov_b32 v20, -1"); o("v_mov_b32 v21, -1"); o("v_mov_b32 v22, -1"); o("v_mov_b32 v23, -1")
    o("v_lshlrev_b32 v2, 4, v0")
    o("v_mov_b32 v24, 0")
    o("s_waitcnt lgkmcnt(0)")
    srd(24, 8, E * 4); srd(28, 10, E * 4); srd(32, 20, 0x200000, CELLS_OFF)
    for i in range(5):
        o(f"s_add_u32 s23, s22, {i*2048}")
        o(f"buffer_load_dword v{4+i}, v1, s[28:31], s23 offen")
        o(f"buffer_load_dword v{10+i}, v1, s[24:27], s23 offen")
    o("v_lshlrev_b32 v19, 2, v1"); prefetch_e("v19")
    for i in range(4):
        o(f"ds_write_b128 v2, v[20:23] offset:{i*8192}")
    o("ds_write_b32 v1, v24 offset:32768")
    o("v_mov_b32 v25, 1")
    o("s_waitcnt lgkmcnt(0)"); o("s_barrier")
    o(f"v_cmp_gt_u32 s[36:37], {CH - 2048}, v0") if False else None
    o(f"s_movk_i32 s23, {CH - 2048}")
    o("v_cmp_gt_u32 s[36:37], s23, v0")
    for i in range(5):
        o(f"s_waitcnt vmcnt({2*(4-i)+1+NPF})")
        if i == 4: o("s_mov_b64 exec, s[36:37]")
        o(f"v_and_b32 v{26+i}, 0xff, v{4+i}")
        o(f"v_lshlrev_b32 v16, 2, v{26+i}")
        o(f"ds_add_rtn_u32 v{32+i}, v16, v25 offset:32768")
    o("s_mov_b64 exec, -1")
    o(f"s_waitcnt vmcnt({NPF})")
    stamp(1)
    for i in range(5):
        o(f"v_lshrrev_b32 v{4+i}, 8, v{4+i}")
        o(f"v_lshl_or_b32 v{4+i}, v{10+i}, 6, v{4+i}")
        o(f"v_add_u32 v16, {i*512}, v0")
        o(f"v_lshl_or_b32 v{4+i}, v16, 20, v{4+i}")
    for i in range(5):
        o(f"s_waitcnt lgkmcnt({4-i})") if i == 0 or True else None
        o(f"v_cmp_gt_u32 vcc, 32, v{32+i}")
        o(f"v_lshlrev_b32 v16, 2, v{32+i}")
        o(f"v_lshl_add_u32 v{38+i}, v{26+i}, 7, v16")
        if i == 4: o("s_and_b64 vcc, vcc, s[36:37]")
        o(f"s_mov_b64 s[{40+2*i}:{41+2*i}], vcc")
    for i in range(5):
        o(f"s_mov_b64 exec, s[{40+2*i}:{41+2*i}]")
        o(f"ds_write_b32 v{38+i}, v{4+i}")
    o("s_mov_b64 exec, -1")
    o("s_waitcnt lgkmcnt(0)"); o("s_barrier")
    stamp(2)
    o("v_lshrrev_b32 v3, 3, v0")
    o("v_lshlrev_b32 v16, 2, v3")
    for i in range(4):
        o(f"ds_read_b128 {vr(44+4*i,4)}, v2 offset:{i*8192}")
        o(f"ds_read_b32 v{60+i}, v16 offset:{32768 + i*256}")
    o("v_and_b32 v17, 7, v0")
    o("v_cmp_eq_u32 vcc, 0, v17")
    o("v_lshlrev_b32 v17, 4, v17")
    o("v_lshl_add_u32 v17, v3, 13, v17")
    o("v_cndmask_b32 v18, -1, -2, vcc") if False else None
    o("v_mov_b32 v18, -2")
    o("v_cndmask_b32 v18, -1, v18, vcc")
    o("s_lshl_b32 s22, s2, 7")
    for i in range(4):
        o(f"s_waitcnt lgkmcnt({2*(3-i)})")
        o(f"v_cmp_lt_u32 vcc, 32, v{60+i}")
        o(f"s_add_u32 s23, s22, {i*64*8192}")
        o("s_nop 0")
        o(f"v_cndmask_b32 v{44+4*i}, v{44+4*i}, v18, vcc")
        for c in range(1, 4):
            o(f"v_cndmask_b32 v{44+4*i+c}, v{44+4*i+c}, v20, vcc")
        o(f"buffer_store_dwordx4 {vr(44+4*i,4)}, v17, s[32:35], s23 offen")
    stamp(3); stamp_out(0, 0)
    o("s_endpgm")
    lab("K1_GEMM")
    o(f"s_sub_u32 s3, s2, {NPROD}")
    o("v_lshlrev_b32 v1, 4, v0")
    o("v_lshrrev_b32 v2, 4, v0")
    o("v_mul_u32_u24 v2, 320, v2")
    o("v_and_b32 v3, 15, v0")
    o("v_lshl_add_u32 v2, v3, 4, v2")
    o("v_lshrrev_b32 v4, 6, v0")
    o("v_and_b32 v5, 63, v0")
    o("v_readfirstlane_b32 s36, v4")
    o("s_waitcnt lgkmcnt(0)")
    o(f"s_cmp_eq_u32 s3, {NG}")
    o("s_cselect_b32 s22, 0, 32768")
    o("s_cselect_b32 s28, s12, s14"); o("s_cselect_b32 s29, s13, s15")
    o("s_mov_b32 s30, 32768"); o("s_mov_b32 s31, 0x00020000")
    srd(24, 16, 272 * 256)
    srd(32, 4, N * 256)
    for i in range(4):
        o(f"s_add_u32 s23, s22, {i*8192}")
        o(f"buffer_load_dwordx4 {vr(16+4*i,4)}, v1, s[24:27], s23 offen")
    for i in range(4):
        o(f"s_mov_b32 s23, {i*8192}")
        o(f"buffer_load_dwordx4 {vr(32+4*i,4)}, v1, s[28:31], s23 offen")
    o("s_lshr_b32 s37, s36, 2"); o("s_and_b32 s38, s36, 3")
    o("s_lshl_b32 s39, s3, 1"); o("s_add_u32 s39, s39, s37")
    o("s_lshl_b32 s40, s3, 14")
    o("v_and_b32 v6, 31, v5"); o("v_lshrrev_b32 v7, 5, v5")
    o("s_add_u32 s41, s40, 8192")
    o("buffer_load_dwordx4 v[48:51], v1, s[32:35], s40 offen")
    o("buffer_load_dwordx4 v[52:55], v1, s[32:35], s41 offen")
    prefetch_e()
    o("v_lshrrev_b32 v12, 4, v0"); o("v_mul_u32_u24 v12, 272, v12"); o("v_lshl_add_u32 v12, v3, 4, v12")
    o("v_add_u32 v12, 81920, v12")
    o("s_lshl_b32 s41, s37, 5"); o("v_add_u32 v8, s41, v6"); o("v_mul_u32_u24 v8, 272, v8")
    o("v_lshl_add_u32 v8, v7, 4, v8"); o("v_add_u32 v8, 81920, v8")
    o("v_bfe_u32 v9, v5, 2, 2")
    o("v_lshl_add_u32 v9, v7, 3, v9")
    o("v_mul_u32_u24 v9, 320, v9")
    o("v_bfe_u32 v10, v5, 4, 1"); o("v_lshl_add_u32 v9, v10, 5, v9")
    o("v_and_b32 v10, 3, v5"); o("v_lshl_add_u32 v9, v10, 3, v9")
    o("s_lshl_b32 s41, s38, 6"); o("v_add_u32 v9, s41, v9")
    o("v_add_u32 v10, 40960, v9")
    o("v_add_u32 v11, 40960, v2")
    for i in range(4):
        o(f"s_waitcnt vmcnt({9-i+NPF})")
        o(f"ds_write_b128 v2, {vr(16+4*i,4)} offset:{i*10240}")
    for i in range(4):
        o(f"s_waitcnt vmcnt({5-i+NPF})")
        o(f"ds_write_b128 v11, {vr(32+4*i,4)} offset:{i*10240}")
    o(f"s_waitcnt vmcnt({1+NPF})"); o("ds_write_b128 v12, v[48:51]")
    o(f"s_waitcnt vmcnt({NPF})"); o(f"ds_write_b128 v12, v[52:55] offset:{32*272}")
    o("s_waitcnt lgkmcnt(0)"); o("s_barrier")
    stamp(1)
    for s in range(8): o(f"ds_read_b128 {vr(48+4*s,4)}, v8 offset:{32*s}")
    o("s_waitcnt lgkmcnt(4)")
    W1, W2 = 80, 112
    for s in range(8):
        for u in range(2):
            o(f"ds_read_b64_tr_b16 {vr(W1+4*s+2*u,2)}, v9 offset:{(16*s+4*u)*320}")
        for u in range(2):
            o(f"ds_read_b64_tr_b16 {vr(W2+4*s+2*u,2)}, v10 offset:{(16*s+4*u)*320}")
        if s % 2 == 1: o("s_waitcnt lgkmcnt(0)")
    o(f"s_cmp_eq_u32 s3, {NG}"); o("s_cbranch_scc1 K1_PACK")
    stamp(2)
    AQ, AH = 16, 32
    for s in range(8):
        mfma(AQ, 48+4*s, W1+4*s, None if s == 0 else AQ)
        mfma(AH, 48+4*s, W2+4*s, None if s == 0 else AH)
    srd(24, 20, TABLE_BYTES, TABLE_OFF)
    o("s_lshl_b32 s40, s39, 14")
    o("s_lshl_b32 s41, s38, 7"); o("s_add_u32 s40, s40, s41")
    o("v_lshlrev_b32 v8, 11, v7"); o("v_lshl_add_u32 v8, v6, 2, v8")
    o(f"s_mov_b32 s42, {hex(NLOG2E)}"); o("s_mov_b32 s43, 0x7fffffff"); o("s_mov_b32 s44, 0xffff")
    o("s_mov_b32 s45, 0x8000"); o("s_mov_b32 s46, 0x7fff0000")
    o("s_nop 7")
    for v in range(16):
        o(f"v_mul_f32 v{AQ+v}, s42, v{AQ+v}")
    for v in range(16):
        o(f"v_cvt_pk_bf16_f32 v{AQ+v}, v{AQ+v}, v{AQ+v}")
    for v in range(16):
        o(f"v_and_b32 v{AQ+v}, s44, v{AQ+v}")
        o(f"v_and_b32 v48, s43, v{AH+v}")
        o(f"v_sub_u32 v48, v48, v{AQ+v}")
        o("v_add_u32 v48, s45, v48")
        o("v_max_i32 v48, 0, v48")
        o(f"v_bfi_b32 v{AH+v}, s46, v48, v{AH+v}")
        o(f"v_bfi_b32 v{AH+v}, s44, v{AQ+v}, v{AH+v}")
        if v % 4 == 0: o(f"s_add_u32 s41, s40, {4096*(v//4)}")
        o(f"buffer_store_dword v{AH+v}, v8, s[24:27], s41 offen offset:{512*(v%4)}")
    stamp(3); stamp_out(0, 1)
    o("s_endpgm")
    lab("K1_PACK")
    srd(28, 20, 0x11000, WPACK_OFF)
    o("v_lshlrev_b32 v8, 4, v5")
    o("s_cmp_eq_u32 s37, 0"); o("s_cbranch_scc0 K1_PACKC")
    o("s_lshl_b32 s40, s38, 13")
    for s in range(8):
        if s % 4 == 0:
            o(f"s_add_u32 s41, s40, {s*1024}"); o(f"s_add_u32 s42, s40, {s*1024 + 32768}")
        o(f"buffer_store_dwordx4 {vr(W1+4*s,4)}, v8, s[28:31], s41 offen offset:{(s%4)*1024}")
        o(f"buffer_store_dwordx4 {vr(W2+4*s,4)}, v8, s[28:31], s42 offen offset:{(s%4)*1024}")
    o("s_endpgm")
    lab("K1_PACKC")
    o("v_lshlrev_b32 v12, 11, v7"); o("v_lshl_add_u32 v12, v6, 1, v12")
    o("s_lshl_b32 s40, s38, 6"); o("s_add_u32 s40, s40, 65536")
    for i in range(8):
        o(f"buffer_load_ushort v{16+i}, v12, s[24:27], s40 offen offset:{256*i}")
    o(f"s_mov_b32 s42, {hex(NLOG2E)}")
    o("s_waitcnt vmcnt(0)")
    for i in range(8):
        o(f"v_lshlrev_b32 v{16+i}, 16, v{16+i}")
        o(f"v_mul_f32 v{16+i}, s42, v{16+i}")
    for i in range(4):
        o(f"v_cvt_pk_bf16_f32 v{24+i}, v{16+2*i}, v{17+2*i}")
    o("s_lshl_b32 s40, s38, 10"); o("s_add_u32 s40, s40, 65536")
    o("buffer_store_dwordx4 v[24:27], v8, s[28:31], s40 offen")
    lab("K1_END")
    o("s_endpgm")

CAP = 12
POOL = 0; POOL_BYTES = 32768
LUT = 32768; CNT = LUT + 4096; XS = CNT + 64
PX = XS + 40 * 272; UX = PX + 16384; EB = UX + 32768; K2_LDS = EB + 4 * CAP * 1024
def k2():
    kn = NAME + "_kernel"
    kstart(kn)
    o("s_cmp_ge_u32 s2, 256"); o("s_cbranch_scc1 K2_END")
    o("s_load_dwordx16 s[4:19], s[0:1], 0")
    o("s_load_dwordx2 s[20:21], s[0:1], 72")
    stamp_init()
    o("v_lshlrev_b32 v9, 3, v0")
    o("v_lshrrev_b32 v4, 6, v0"); o("v_and_b32 v1, 63, v0")
    o("v_lshlrev_b32 v8, 4, v0")
    o("v_readfirstlane_b32 s3, v4")
    o("v_and_b32 v6, 31, v1"); o("v_lshrrev_b32 v7, 5, v1")
    o("s_lshr_b32 s60, s3, 2"); o("s_and_b32 s61, s3, 3")
    o("s_lshl_b32 s22, s2, 13")
    o("s_waitcnt lgkmcnt(0)")
    sW, sX, sE, sT, sO = 24, 28, 32, 36, 40
    srd(sW, 20, WPACK_OFF + 0x11000)
    EN = 12
    G = [80, 96, 112]; Z, ACC, RO, FR, EF, PF, CF = 16, 32, 48, 56, 68, 72, 76
    WF = [112 + 4*s for s in range(4)] + [56 + 4*s for s in range(4)]
    o(f"buffer_load_dwordx2 {vr(EN,2)}, v9, s[{sW}:{sW+3}], s22 offen")
    srd(sX, 4, N * 256)
    o("v_lshrrev_b32 v10, 4, v0"); o("v_and_b32 v11, 15, v0")
    o("v_lshlrev_b32 v5, 16, v10"); o("v_lshl_add_u32 v5, v11, 4, v5")
    o("s_lshl_b32 s62, s2, 8")
    o("s_cmp_ge_u32 s3, 10"); o("s_cbranch_scc1 K2_NOX")
    o(f"buffer_load_dwordx4 {vr(ACC,4)}, v5, s[{sX}:{sX+3}], s62 offen")
    lab("K2_NOX")
    o("v_lshlrev_b32 v14, 4, v1")
    o("s_lshl_b32 s63, s61, 10"); o(f"s_add_u32 s63, s63, {hex(WPACK_OFF+65536)}")
    o(f"buffer_load_dwordx4 {vr(CF,4)}, v14, s[{sW}:{sW+3}], s63 offen")
    o("s_cmp_ge_u32 s3, 8"); o("s_cbranch_scc1 K2_NOW")
    o("s_lshl_b32 s63, s3, 13"); o(f"s_add_u32 s63, s63, {hex(WPACK_OFF)}"); o("s_add_u32 s64, s63, 4096")
    for s in range(8):
        o(f"buffer_load_dwordx4 {vr(WF[s],4)}, v14, s[{sW}:{sW+3}], s{63 + s//4} offen offset:{(s%4)*1024}")
    lab("K2_NOW")
    srd(sE, 6, E * 32); srd(sT, 20, TABLE_BYTES, TABLE_OFF); srd(sO, 18, N * 256)
    for i in range(4):
        o(f"v_bfe_u32 v{16+i}, v0, {2*i}, 1"); o(f"v_bfe_u32 v20, v0, {2*i+1}, 1")
        o(f"v_lshl_or_b32 v{16+i}, v20, 16, v{16+i}")
        o(f"v_mul_u32_u24 v{16+i}, 0x3f80, v{16+i}")
    o("s_cmp_ge_u32 s3, 4"); o("s_cbranch_scc1 K2_NOLUT")
    o(f"ds_write_b128 v8, v[16:19] offset:{LUT}")
    lab("K2_NOLUT")
    o("s_lshl_b32 s63, s61, 7")
    o("v_lshlrev_b32 v2, 2, v6"); o("v_add_u32 v2, s63, v2")
    o("v_lshlrev_b32 v3, 4, v7")
    o(f"v_mul_u32_u24 v15, {CH}, v10")
    o("s_mov_b32 s72, 0")
    o("s_mov_b32 s73, 0")
    def pool_init():
        o("v_and_b32 v20, 16, v0"); o("v_cmp_eq_u32 vcc, 0, v20")
        o(f"v_mov_b32 v21, {hex(OOB)}"); o("v_mov_b32 v28, 0")
        o("v_cndmask_b32 v24, 0, v21, vcc")
        o("v_mov_b32 v29, 0"); o("v_mov_b32 v30, 0"); o("v_mov_b32 v31, 0")
        o("v_mov_b32 v25, v24"); o("v_mov_b32 v26, v24"); o("v_mov_b32 v27, v24")
        o(f"v_mov_b32 v20, {CNT}")
        for i in range(2):
            o(f"ds_write_b128 v8, v[24:27] offset:{POOL + i*16384}")
        o("ds_write_b128 v20, v[28:31]")
    pool_init()
    o("s_cmp_ge_u32 s3, 10"); o("s_cbranch_scc1 K2_NOX2")
    o("v_mul_u32_u24 v5, 272, v10"); o("v_lshl_add_u32 v5, v11, 4, v5")
    o("s_cmp_ge_u32 s3, 8"); o("s_cbranch_scc1 K2_XW1")
    o("s_waitcnt vmcnt(9)"); o("s_branch K2_XW2")
    lab("K2_XW1"); o("s_waitcnt vmcnt(1)")
    lab("K2_XW2")
    o(f"ds_write_b128 v5, {vr(ACC,4)} offset:{XS}")
    o("s_branch K2_B1")
    lab("K2_NOX2"); o("s_waitcnt vmcnt(1)")
    lab("K2_B1")
    o("s_waitcnt lgkmcnt(0)"); o("s_barrier")
    stamp(1)
    o(f"v_cmp_eq_u32 vcc, -2, v{EN}")
    o("s_cbranch_vccz K2_COMPACT")
    o(f"v_mov_b32 v20, {CNT}"); o("v_mov_b32 v21, 1"); o("ds_write_b32 v20, v21 offset:8")
    lab("K2_COMPACT")
    for i in range(2):
        e = EN + i
        o(f"v_cmp_gt_u32 s[{74+2*i}:{75+2*i}], -2, v{e}")
        o(f"v_and_b32 v{16+i}, 3, v{e}")
        o(f"v_lshlrev_b32 v{18+i}, 3, v{16+i}")
        o(f"v_bfm_b32 v{20+i}, 1, v{18+i}")
        o(f"v_cndmask_b32 v{20+i}, 0, v{20+i}, s[{74+2*i}:{75+2*i}]")
    o("v_add_u32 v22, v20, v21"); o("v_mov_b32 v23, v22")
    fill = []
    for i in range(2):
        e = EN + i
        fill += [f"v_bfe_u32 v{24+2*i}, v{e}, 6, 14", f"v_lshlrev_b32 v{24+2*i}, 9, v{24+2*i}",
                 f"v_lshrrev_b32 v{25+2*i}, 20, v{e}", f"v_add_lshl_u32 v{25+2*i}, v{25+2*i}, v15, 5",
                 f"v_bfe_u32 v{28+i}, v{e}, 2, 4", f"v_bfe_u32 v{30+i}, v{e}, 5, 1"]
    dpp = ["row_shr:1", "row_shr:2", "row_shr:4", "row_shr:8"]
    for j, d in enumerate(dpp):
        o(fill[2*j]); o(fill[2*j+1])
        o(f"v_add_u32_dpp v23, v23, v23 {d} row_mask:0xf bank_mask:0xf bound_ctrl:0")
    o(fill[8]); o(fill[9])
    o("v_add_u32_dpp v23, v23, v23 row_bcast:15 row_mask:0xa bank_mask:0xf")
    o(fill[10]); o(fill[11])
    o("v_add_u32_dpp v23, v23, v23 row_bcast:31 row_mask:0xc bank_mask:0xf")
    o("s_nop 0")
    o("v_readlane_b32 s64, v23, 63")
    o("v_sub_u32 v23, v23, v22")
    o("s_and_b32 s65, s64, 0xff"); o("s_bfe_u32 s66, s64, 0x80008"); o("s_lshl_b32 s66, s66, 16"); o("s_or_b32 s65, s65, s66")
    o("s_bfe_u32 s66, s64, 0x80010"); o("s_lshr_b32 s67, s64, 24"); o("s_lshl_b32 s67, s67, 16"); o("s_or_b32 s66, s66, s67")
    o("v_mov_b32 v48, s65"); o("v_mov_b32 v49, s66"); o(f"v_mov_b32 v50, {CNT}")
    o("s_mov_b64 exec, 1")
    o("ds_add_rtn_u64 v[48:49], v50, v[48:49]")
    o("s_mov_b64 exec, -1")
    o("v_add_u32 v22, v23, v20")
    o("v_bfe_u32 v20, v23, v18, 8"); o("v_bfe_u32 v21, v22, v19, 8")
    for i in range(2):
        o(f"v_and_b32 v51, 3, v{28+i}"); o(f"v_lshl_or_b32 v51, v{30+i}, 2, v51")
        o(f"v_bfm_b32 v{30+i}, 1, v51")
        o(f"v_bfe_u32 v{22+i}, v{28+i}, 2, 1"); o(f"v_lshlrev_b32 v{22+i}, 7, v{22+i}")
        o(f"v_lshlrev_b32 v{18+i}, 1, v{18+i}")
        o(f"v_mul_u32_u24 v{16+i}, {CAP*512}, v{16+i}")
    o(f"s_movk_i32 s68, {CAP*32}")
    o("s_waitcnt lgkmcnt(0)")
    o("v_readfirstlane_b32 s64, v48"); o("v_readfirstlane_b32 s65, v49")
    o("s_nop 1")
    for i in range(2):
        o(f"v_lshrrev_b64 v[48:49], v{18+i}, s[64:65]")
        o("v_and_b32 v48, 0xffff, v48"); o(f"v_add_u32 v48, v48, v{20+i}")
        o("v_cmp_gt_u32 vcc, s68, v48")
        o("v_lshrrev_b32 v49, 5, v48"); o("v_and_b32 v48, 31, v48")
        o(f"v_lshl_add_u32 v49, v49, 9, v{16+i}")
        o("v_lshl_add_u32 v50, v48, 2, v49")
        o(f"v_add_u32 v51, v50, v{22+i}")
        o("v_lshrrev_b32 v52, 3, v48"); o("v_and_b32 v53, 3, v48")
        o("v_lshl_or_b32 v52, v52, 2, v53"); o("v_lshlrev_b32 v52, v52, v0") if False else None
        o("v_lshl_or_b32 v52, v52, 2, v53") if False else None
        o("v_add_u32 v52, 8, v52"); o("v_bfm_b32 v52, 1, v52")
        o("v_bfe_u32 v53, v48, 2, 1"); o("v_lshl_add_u32 v53, v53, 7, v49")
        o(f"v_lshl_add_u32 v53, v{28+i}, 2, v53")
        o(f"s_and_b64 exec, vcc, s[{74+2*i}:{75+2*i}]")
        o(f"ds_write2_b32 v50, v{24+2*i}, v{25+2*i} offset0:0 offset1:32")
        o(f"ds_or_b32 v51, v{30+i} offset:256")
        o("ds_or_b32 v53, v52 offset:256")
        o("s_mov_b64 exec, -1")
    o("s_waitcnt lgkmcnt(0)"); o("s_barrier")
    o(f"v_mov_b32 v29, {CNT}")
    o("ds_read_b128 v[24:27], v29")
    o(f"s_mul_i32 s66, s60, {CAP*512}")
    o("v_add_u32 v4, s66, v3")
    o("v_lshl_add_u32 v5, v1, 2, s66")
    o("s_lshl_b32 s67, s61, 9"); o("s_add_u32 s67, s67, s66")
    o("v_lshl_add_u32 v28, v6, 2, s67")
    for i in range(3): o(f"ds_read_b32 v{20+i}, v28 offset:{128 + i*2048}")
    o(f"s_lshl_b32 s66, s66, 1"); o(f"s_add_u32 s66, s66, {EB}")
    o("v_add_u32 v10, s66, v14")
    o("s_lshl_b32 s67, s61, 10"); o("s_add_u32 s67, s67, s66")
    o("s_waitcnt lgkmcnt(3)")
    o("v_readfirstlane_b32 s64, v24"); o("v_readfirstlane_b32 s65, v25"); o("v_readfirstlane_b32 s69, v26")
    o("s_and_b32 s70, s64, 0xffff"); o("s_lshr_b32 s71, s64, 16"); o("s_max_u32 s70, s70, s71")
    o("s_and_b32 s71, s65, 0xffff"); o("s_max_u32 s70, s70, s71"); o("s_lshr_b32 s71, s65, 16"); o("s_max_u32 s70, s70, s71")
    o("s_cmp_gt_u32 s70, s68"); o("s_cselect_b32 s69, 1, s69")
    o("s_cmp_lg_u32 s69, 0"); o("s_cbranch_scc1 K2_BAD")
    o("s_lshl_b32 s70, s60, 4"); o("s_lshr_b64 s[64:65], s[64:65], s70"); o("s_and_b32 s64, s64, 0xffff")
    o("s_add_u32 s64, s64, 31"); o("s_lshr_b32 s64, s64, 5")
    stamp(2)
    o("s_waitcnt lgkmcnt(0)")
    for i in range(3):
        o(f"s_add_u32 s70, s61, {4*i}"); o("s_cmp_ge_u32 s70, s64"); o("s_cbranch_scc1 K2_EDONE")
        o(f"s_add_u32 m0, s67, {i*4096}")
        o(f"v_add_u32 v{20+i}, v{20+i}, v3")
        o(f"buffer_load_dwordx4 v{20+i}, s[{sE}:{sE+3}], 0 offen lds")
    lab("K2_EDONE")
    MK = [11, 12, 13]
    def issue(k):
        for hf in range(2):
            for c in range(2):
                o(f"ds_read_b128 {vr(RO+4*c,4)}, v4 offset:{32*(2*hf+c)}")
            if hf == 1: o(f"ds_read_b32 v{MK[k]}, v5 offset:256")
            for c in range(2):
                o(f"s_waitcnt lgkmcnt({1-c+hf})")
                for i in range(4):
                    o(f"v_add_u32 v{RO+4*c+i}, v{RO+4*c+i}, v2")
                for i in range(4):
                    o(f"buffer_load_dword v{G[k]+8*hf+4*c+i}, v{RO+4*c+i}, s[{sT}:{sT+3}], 0 offen")
        o("v_add_u32 v4, 512, v4"); o("v_add_u32 v5, 512, v5")
    issue(0); issue(1)
    o("s_cmp_lg_u32 s73, 0"); o("s_cbranch_scc1 K2_B3")
    o("s_cmp_ge_u32 s3, 8"); o("s_cbranch_scc1 K2_B3")
    o("v_and_b32 v72, 15, v1"); o("v_min_u32 v72, 9, v72"); o("v_bfe_u32 v73, v1, 4, 1")
    o("v_lshl_add_u32 v72, v72, 2, v73"); o("v_mul_u32_u24 v72, 272, v72"); o("v_add_u32 v72, v72, v3")
    o("s_waitcnt vmcnt(32)")
    for s in range(8):
        o(f"ds_read_b128 {vr(RO,4)}, v72 offset:{XS + 32*s}")
        o(f"ds_read_b128 {vr(RO+4,4)}, v72 offset:{XS + 32*s + 544}")
        o("s_waitcnt lgkmcnt(1)")
        mfma(Z, RO, WF[s], None if s == 0 else Z)
        o("s_waitcnt lgkmcnt(0)")
        mfma(ACC, RO+4, WF[s], None if s == 0 else ACC)
    o("s_cmp_ge_u32 s3, 4"); o("s_cbranch_scc1 K2_UOUT")
    o(f"s_mov_b32 s65, {hex(NLOG2E)}")
    o("s_lshl_b32 s70, s61, 10"); o("v_add_u32 v72, s70, v14")
    o("s_nop 7")
    for v in range(32): o(f"v_mul_f32 v{Z+v}, s65, v{Z+v}")
    for i in range(16): o(f"v_cvt_pk_bf16_f32 v{Z+i}, v{Z+2*i}, v{Z+2*i+1}")
    for l in range(4): o(f"ds_write_b128 v72, {vr(Z+4*l,4)} offset:{PX + l*4096}")
    o("s_branch K2_B3")
    lab("K2_UOUT")
    o("s_lshl_b32 s70, s61, 11"); o(f"s_add_u32 s70, s70, {UX}"); o("v_add_u32 v72, s70, v14")
    o("s_nop 8")
    for l in range(4):
        for hf in range(2): o(f"ds_write_b128 v72, {vr(Z+8*l+4*hf,4)} offset:{l*8192 + hf*1024}")
    lab("K2_B3")
    o("s_waitcnt vmcnt(32) lgkmcnt(0)"); o("s_barrier")
    o("s_cmp_lg_u32 s73, 0"); o("s_cbranch_scc1 K2_LOOP0")
    o("s_mov_b32 s73, 1")
    o("s_lshl_b32 s70, s3, 10"); o("v_add_u32 v48, s70, v14")
    o(f"ds_read_b128 {vr(PF,4)}, v48 offset:{PX}")
    o("s_lshl_b32 s70, s3, 11"); o(f"s_add_u32 s70, s70, {UX}"); o("v_add_u32 v48, s70, v14")
    o(f"ds_read_b128 {vr(ACC,4)}, v48"); o(f"ds_read_b128 {vr(ACC+4,4)}, v48 offset:1024")
    for v in range(8, 16): o(f"v_mov_b32 v{ACC+v}, 0")
    o("s_waitcnt lgkmcnt(0)")
    stamp(3)
    def compute(k):
        g = G[k]
        o(f"ds_read_b128 {vr(EF,4)}, v10")
        for i in range(3):
            o(f"v_lshlrev_b32_sdwa v9, 4, v{MK[k]} dst_sel:DWORD dst_unused:UNUSED_PAD src0_sel:DWORD src1_sel:BYTE_{i}")
            o(f"ds_read_b128 {vr(FR+4*i,4)}, v9 offset:{LUT}")
        o("v_add_u32 v10, 1024, v10")
        o("s_waitcnt vmcnt(32)")
        for v in range(16): o(f"v_lshlrev_b32 v{Z+v}, 16, v{g+v}")
        o("s_waitcnt lgkmcnt(2)")
        o("s_nop 0")
        mfma(Z, EF, CF, Z); mfma(Z, FR, PF, Z)
        o("s_nop 11")
        for v in range(16): o(f"v_exp_f32 v{Z+v}, v{Z+v}")
        for v in range(16): o(f"v_add_f32 v{Z+v}, 1.0, v{Z+v}")
        for v in range(16): o(f"v_rcp_f32 v{Z+v}, v{Z+v}")
        for v in range(16): o(f"v_mul_f32 v{Z+v}, v{Z+v}, v{g+v}")
        for i in range(8): o(f"v_cvt_pk_bf16_f32 v{Z+i}, v{Z+2*i}, v{Z+2*i+1}")
        o("s_waitcnt lgkmcnt(0)")
        o("s_nop 0")
        mfma(ACC, FR+4, Z, ACC); mfma(ACC, FR+8, Z+4, ACC)
    for k in range(3):
        lab(f"K2_LOOP{k}")
        o("s_cmp_eq_u32 s64, 0"); o("s_cbranch_scc1 K2_BATCH_DONE")
        o("s_sub_u32 s64, s64, 1")
        issue((k + 2) % 3)
        compute(k)
    o("s_branch K2_LOOP0")
    lab("K2_BAD")
    o("s_cmp_eq_u32 s72, 0"); o("s_cselect_b32 s58, 0, s58"); o("s_movk_i32 s59, 2048"); o("s_cselect_b32 s59, s59, 256")
    o("s_mov_b32 s72, 1"); o("s_branch K2_SCAN")
    lab("K2_BATCH_DONE")
    o("s_cmp_eq_u32 s72, 0"); o("s_cbranch_scc1 K2_EPI")
    o("s_add_u32 s58, s58, s59"); o("s_movk_i32 s59, 2048")
    o(f"s_cmp_ge_u32 s58, {E}"); o("s_cbranch_scc1 K2_EPI")
    lab("K2_SCAN")
    o("s_waitcnt vmcnt(0) lgkmcnt(0)")
    srd(44, 8, E * 4); srd(48, 10, E * 4)
    o("s_lshl_b32 s57, s58, 2"); o("v_lshlrev_b32 v9, 3, v0")
    o("buffer_load_dwordx2 v[48:49], v9, s[48:51], s57 offen")
    o("buffer_load_dwordx2 v[50:51], v9, s[44:47], s57 offen")
    o("s_barrier")
    pool_init()
    o("v_mov_b32 v15, s58")
    o(f"s_sub_u32 s57, {E}, s58"); o("s_min_u32 s57, s57, s59")
    o("s_waitcnt vmcnt(0)")
    for i in range(2):
        o(f"v_lshl_add_u32 v20, v0, 1, {i}")
        o(f"v_and_b32 v21, 0xff, v{48+i}")
        o("v_cmp_eq_u32 vcc, s2, v21"); o("v_cmp_gt_u32 s[66:67], s57, v20")
        o("s_and_b64 vcc, vcc, s[66:67]")
        o(f"v_lshrrev_b32 v21, 8, v{48+i}")
        o(f"v_lshl_or_b32 v21, v{50+i}, 6, v21"); o("v_lshl_or_b32 v21, v20, 20, v21")
        o(f"v_cndmask_b32 v{EN+i}, -1, v21, vcc")
    o("s_waitcnt lgkmcnt(0)"); o("s_barrier")
    o("s_branch K2_COMPACT")
    lab("K2_EPI")
    stamp(4)
    o(f"s_mov_b32 s65, {hex(NLOG2E)}")
    o("v_lshlrev_b32 v9, 20, v7"); o("v_lshl_add_u32 v9, v6, 1, v9")
    o("s_lshl_b32 s63, s61, 6"); o("s_add_u32 s62, s62, s63"); o("s_lshl_b32 s63, s60, 16"); o("s_add_u32 s62, s62, s63")
    o("s_nop 7")
    for v in range(6): o(f"v_mul_f32 v{Z+v}, s65, v{ACC+v}")
    for v in range(6): o(f"v_exp_f32 v{Z+v}, v{Z+v}")
    for v in range(6): o(f"v_add_f32 v{Z+v}, 1.0, v{Z+v}")
    for v in range(6): o(f"v_rcp_f32 v{Z+v}, v{Z+v}")
    for v in range(6): o(f"v_mul_f32 v{Z+v}, v{Z+v}, v{ACC+v}")
    for v in range(6): o(f"v_cvt_pk_bf16_f32 v{Z+v}, v{Z+v}, v{Z+v}")
    for v in range(6):
        if v == 4: o("s_mov_b32 exec_hi, 0")
        o(f"s_add_u32 s63, s62, {((v&3) + 8*(v>>2)) << 18}")
        o(f"buffer_store_short v{Z+v}, v9, s[{sO}:{sO+3}], s63 offen")
    stamp_out(1, 0)
    lab("K2_END")
    o("s_endpgm")

header(); k1(); k2()
L.append('.section .rodata,"a"')
kdesc("prep_kernel", 156, 102 if STAMPS else 56); kdesc(NAME + "_kernel", 128, 102 if STAMPS else 80)
out = sys.argv[1] if len(sys.argv) > 1 else "cdna_kernels/%s.s" % NAME
open(out, "w").write("\n".join(x for x in L if x is not None) + "\n")
```

```python
import sys
NAME = "standalone__edge_featured_mpnn_egc__graph"
N, E = 10000, 160000
NPROD, CH = 64, 2500
CELLS_OFF, TABLE_OFF, WPACK_OFF = 0, 0x200000, 0x800000
TABLE_BYTES = N * 512
NG = 157
NLOG2E = 0xBFB8AA3B
OOB = 0x7FFFF000
L = []
def o(s): L.append("    " + s)
def lab(s): L.append(s + ":")
def srd(d, b, nbytes, off=0):
    if off:
        o(f"s_add_u32 s{d}, s{b}, {hex(off)}"); o(f"s_addc_u32 s{d+1}, s{b+1}, 0")
    else:
        o(f"s_mov_b32 s{d}, s{b}"); o(f"s_mov_b32 s{d+1}, s{b+1}")
    o(f"s_mov_b32 s{d+2}, {hex(nbytes)}"); o(f"s_mov_b32 s{d+3}, 0x00020000")
def vr(a, n): return f"v[{a}:{a+n-1}]"
def mfma(d, a, b, c):
    cs = "0" if c is None else vr(c, 16)
    o(f"v_mfma_f32_32x32x16_bf16 {vr(d,16)}, {vr(a,4)}, {vr(b,4)}, {cs}")

STAMPS = "stamps" in sys.argv
def stamp(i):
    if STAMPS: o(f"s_memrealtime s[{90+2*i}:{91+2*i}]")
def stamp_init():
    if STAMPS:
        for i in range(1, 6): o(f"s_mov_b32 s{90+2*i}, 0")
        o("v_lshrrev_b32 v255, 6, v0") if False else None
        stamp(0)
def stamp_out(kid, role):
    if not STAMPS: return
    o("s_waitcnt vmcnt(0)")
    stamp(5)
    o("s_waitcnt lgkmcnt(0)")
    o("s_mov_b64 exec, -1")
    o("v_lshrrev_b32 v1, 6, v0"); o("v_and_b32 v2, 63, v0")
    o("v_lshlrev_b32 v1, 5, v1"); o("v_lshl_add_u32 v1, v2, 2, v1")
    for i in range(6): o(f"v_writelane_b32 v3, s{90+2*i}, {i}")
    o(f"s_mov_b32 s4, {role}"); o("v_writelane_b32 v3, s4, 6")
    o("s_mov_b32 s4, 0xC0FFEE"); o("v_writelane_b32 v3, s4, 7")
    if "dbg" in sys.argv:
        wg, slot, msk = {(0,0): (5, 12, 0xf), (0,1): (100, 0, 0x3f), (1,0): (77, 6, 0x3f)}[(kid, role)]
        o("v_readfirstlane_b32 s5, v1"); o("s_load_dwordx2 s[12:13], s[0:1], 64")
        o("s_waitcnt lgkmcnt(0)")
        o(f"s_add_u32 s8, s12, {512*(1-kid)}"); o("s_addc_u32 s9, s13, 0"); o("s_mov_b32 s10, 256"); o("s_mov_b32 s11, 0x00020000")
        o(f"s_xor_b32 s4, s2, {wg}"); o("s_or_b32 s4, s4, s5"); o("s_cmp_eq_u32 s4, 0"); o(f"s_cbranch_scc0 DBG{kid}{role}")
        o(f"v_lshlrev_b32 v1, 2, v2"); o(f"s_mov_b64 exec, {msk}")
        o(f"buffer_store_dword v3, v1, s[8:11], 0 offen offset:{4*slot}")
        lab(f"DBG{kid}{role}")
        return
    srd(8, 20, 0x100000, 0x4000000 + kid * 512 * 512)
    o("s_lshl_b32 s4, s2, 9")
    o("s_mov_b64 exec, 0xff")
    o("buffer_store_dword v3, v1, s[8:11], s4 offen")

def header():
    src = open("cdna_kernels/%s.s.ref" % NAME).read().split("\n")
    for l in src:
        if l.startswith("; Override"): break
        L.append(l)
    L.append("; @launch kernel=prep_kernel grid=(%d,1,1) block=(512,1,1) lds=%d" % (NPROD + NG + 1 + globals().get("NXW", 0), K1_LDS))
    L.append("; @launch kernel=%s_kernel grid=(256,1,1) block=(1024,1,1) lds=%d" % (NAME, K2_LDS))
    L.append('.amdgcn_target "amdgcn-amd-amdhsa--gfx950"')
    L.append(".text")

def kstart(n):
    L.append(f".globl {n}"); L.append(".p2align 8"); L.append(f".type {n},@function"); lab(n)

def kdesc(n, vg, sg):
    L.append(".p2align 6")
    L.append(f".amdhsa_kernel {n}")
    for k, v in [("next_free_vgpr", vg), ("next_free_sgpr", sg), ("accum_offset", (vg + 3) // 4 * 4),
                 ("group_segment_fixed_size", 0), ("kernarg_size", 80), ("user_sgpr_count", 2),
                 ("user_sgpr_kernarg_segment_ptr", 1), ("system_sgpr_workgroup_id_x", 1)]:
        L.append(f"  .amdhsa_{k} {v}")
    L.append(".end_amdhsa_kernel")

NPF = 0
WARM = "nowarm" not in sys.argv
NXW = 34 if WARM else 0
XR, PR = 11, 4
K1_LDS = 81920 + 64 * 272
def prefetch_e(va="v1"):
    if not NPF: return
    srd(48, 6, E * 32)
    o("s_mul_i32 s52, s2, 24576")
    for i in range(3):
        o(f"buffer_load_dwordx4 {vr(144+4*i,4)}, {va}, s[48:51], s52 offen")
        if i < 2: o("s_add_u32 s52, s52, 8192")
def k1():
    kstart("prep_kernel")
    o(f"s_cmp_ge_u32 s2, {NPROD + NG + 1 + NXW}"); o("s_cbranch_scc1 K1_END")
    o("s_load_dwordx16 s[4:19], s[0:1], 0")
    o("s_load_dwordx2 s[20:21], s[0:1], 72")
    stamp_init()
    if WARM: o(f"s_cmp_ge_u32 s2, {NPROD + NG + 1}"); o("s_cbranch_scc1 K1_WARM")
    o(f"s_cmp_ge_u32 s2, {NPROD}"); o("s_cbranch_scc1 K1_GEMM")
    o("v_lshlrev_b32 v1, 2, v0")
    o(f"s_mul_i32 s22, s2, {CH*4}")
    o("v_mov_b32 v20, -1"); o("v_mov_b32 v21, -1"); o("v_mov_b32 v22, -1"); o("v_mov_b32 v23, -1")
    o("v_lshlrev_b32 v2, 4, v0")
    o("v_mov_b32 v24, 0")
    o("s_waitcnt lgkmcnt(0)")
    srd(24, 8, E * 4); srd(28, 10, E * 4); srd(32, 20, 0x200000, CELLS_OFF)
    for i in range(5):
        o(f"s_add_u32 s23, s22, {i*2048}")
        o(f"buffer_load_dword v{4+i}, v1, s[28:31], s23 offen")
        o(f"buffer_load_dword v{10+i}, v1, s[24:27], s23 offen")
    o("v_lshlrev_b32 v19, 2, v1"); prefetch_e("v19")
    for i in range(4):
        o(f"ds_write_b128 v2, v[20:23] offset:{i*8192}")
    o("ds_write_b32 v1, v24 offset:32768")
    o("v_mov_b32 v25, 1")
    o("s_waitcnt lgkmcnt(0)"); o("s_barrier")
    o(f"v_cmp_gt_u32 s[36:37], {CH - 2048}, v0") if False else None
    o(f"s_movk_i32 s23, {CH - 2048}")
    o("v_cmp_gt_u32 s[36:37], s23, v0")
    for i in range(5):
        o(f"s_waitcnt vmcnt({2*(4-i)+1+NPF})")
        if i == 4: o("s_mov_b64 exec, s[36:37]")
        o(f"v_and_b32 v{26+i}, 0xff, v{4+i}")
        o(f"v_lshlrev_b32 v16, 2, v{26+i}")
        o(f"ds_add_rtn_u32 v{32+i}, v16, v25 offset:32768")
    o("s_mov_b64 exec, -1")
    o(f"s_waitcnt vmcnt({NPF})")
    stamp(1)
    for i in range(5):
        o(f"v_lshrrev_b32 v{4+i}, 8, v{4+i}")
        o(f"v_lshl_or_b32 v{4+i}, v{10+i}, 6, v{4+i}")
        o(f"v_add_u32 v16, {i*512}, v0")
        o(f"v_lshl_or_b32 v{4+i}, v16, 20, v{4+i}")
    for i in range(5):
        o(f"s_waitcnt lgkmcnt({4-i})") if i == 0 or True else None
        o(f"v_cmp_gt_u32 vcc, 32, v{32+i}")
        o(f"v_lshlrev_b32 v16, 2, v{32+i}")
        o(f"v_lshl_add_u32 v{38+i}, v{26+i}, 7, v16")
        if i == 4: o("s_and_b64 vcc, vcc, s[36:37]")
        o(f"s_mov_b64 s[{40+2*i}:{41+2*i}], vcc")
    for i in range(5):
        o(f"s_mov_b64 exec, s[{40+2*i}:{41+2*i}]")
        o(f"ds_write_b32 v{38+i}, v{4+i}")
    o("s_mov_b64 exec, -1")
    o("s_waitcnt lgkmcnt(0)"); o("s_barrier")
    if WARM:
        srd(48, 6, E * 32); o(f"s_mul_i32 s52, s2, {PR*8192}")
        for i in range(PR):
            o(f"buffer_load_dwordx4 {vr(64+4*i,4)}, v2, s[48:51], s52 offen")
            o("s_add_u32 s52, s52, 8192")
    stamp(2)
    o("v_lshrrev_b32 v3, 3, v0")
    o("v_lshlrev_b32 v16, 2, v3")
    for i in range(4):
        o(f"ds_read_b128 {vr(44+4*i,4)}, v2 offset:{i*8192}")
        o(f"ds_read_b32 v{60+i}, v16 offset:{32768 + i*256}")
    o("v_and_b32 v17, 7, v0")
    o("v_cmp_eq_u32 vcc, 0, v17")
    o("v_lshlrev_b32 v17, 4, v17")
    o("v_lshl_add_u32 v17, v3, 13, v17")
    o("v_cndmask_b32 v18, -1, -2, vcc") if False else None
    o("v_mov_b32 v18, -2")
    o("v_cndmask_b32 v18, -1, v18, vcc")
    o("s_lshl_b32 s22, s2, 7")
    for i in range(4):
        o(f"s_waitcnt lgkmcnt({2*(3-i)})")
        o(f"v_cmp_lt_u32 vcc, 32, v{60+i}")
        o(f"s_add_u32 s23, s22, {i*64*8192}")
        o("s_nop 0")
        o(f"v_cndmask_b32 v{44+4*i}, v{44+4*i}, v18, vcc")
        for c in range(1, 4):
            o(f"v_cndmask_b32 v{44+4*i+c}, v{44+4*i+c}, v20, vcc")
        o(f"buffer_store_dwordx4 {vr(44+4*i,4)}, v17, s[32:35], s23 offen")
    stamp(3); stamp_out(0, 0)
    o("s_endpgm")
    lab("K1_GEMM")
    o(f"s_sub_u32 s3, s2, {NPROD}")
    o("v_lshlrev_b32 v1, 4, v0")
    o("v_lshrrev_b32 v2, 4, v0")
    o("v_mul_u32_u24 v2, 320, v2")
    o("v_and_b32 v3, 15, v0")
    o("v_lshl_add_u32 v2, v3, 4, v2")
    o("v_lshrrev_b32 v4, 6, v0")
    o("v_and_b32 v5, 63, v0")
    o("v_readfirstlane_b32 s36, v4")
    o("s_waitcnt lgkmcnt(0)")
    o(f"s_cmp_eq_u32 s3, {NG}")
    o("s_cselect_b32 s22, 0, 32768")
    o("s_cselect_b32 s28, s12, s14"); o("s_cselect_b32 s29, s13, s15")
    o("s_mov_b32 s30, 32768"); o("s_mov_b32 s31, 0x00020000")
    srd(24, 16, 272 * 256)
    srd(32, 4, N * 256)
    for i in range(4):
        o(f"s_add_u32 s23, s22, {i*8192}")
        o(f"buffer_load_dwordx4 {vr(16+4*i,4)}, v1, s[24:27], s23 offen")
    for i in range(4):
        o(f"s_mov_b32 s23, {i*8192}")
        o(f"buffer_load_dwordx4 {vr(32+4*i,4)}, v1, s[28:31], s23 offen")
    o("s_lshr_b32 s37, s36, 2"); o("s_and_b32 s38, s36, 3")
    o("s_lshl_b32 s39, s3, 1"); o("s_add_u32 s39, s39, s37")
    o("s_lshl_b32 s40, s3, 14")
    o("v_and_b32 v6, 31, v5"); o("v_lshrrev_b32 v7, 5, v5")
    o("s_add_u32 s41, s40, 8192")
    o("buffer_load_dwordx4 v[48:51], v1, s[32:35], s40 offen")
    o("buffer_load_dwordx4 v[52:55], v1, s[32:35], s41 offen")
    prefetch_e()
    o("v_lshrrev_b32 v12, 4, v0"); o("v_mul_u32_u24 v12, 272, v12"); o("v_lshl_add_u32 v12, v3, 4, v12")
    o("v_add_u32 v12, 81920, v12")
    o("s_lshl_b32 s41, s37, 5"); o("v_add_u32 v8, s41, v6"); o("v_mul_u32_u24 v8, 272, v8")
    o("v_lshl_add_u32 v8, v7, 4, v8"); o("v_add_u32 v8, 81920, v8")
    o("v_bfe_u32 v9, v5, 2, 2")
    o("v_lshl_add_u32 v9, v7, 3, v9")
    o("v_mul_u32_u24 v9, 320, v9")
    o("v_bfe_u32 v10, v5, 4, 1"); o("v_lshl_add_u32 v9, v10, 5, v9")
    o("v_and_b32 v10, 3, v5"); o("v_lshl_add_u32 v9, v10, 3, v9")
    o("s_lshl_b32 s41, s38, 6"); o("v_add_u32 v9, s41, v9")
    o("v_add_u32 v10, 40960, v9")
    o("v_add_u32 v11, 40960, v2")
    for i in range(4):
        o(f"s_waitcnt vmcnt({9-i+NPF})")
        o(f"ds_write_b128 v2, {vr(16+4*i,4)} offset:{i*10240}")
    for i in range(4):
        o(f"s_waitcnt vmcnt({5-i+NPF})")
        o(f"ds_write_b128 v11, {vr(32+4*i,4)} offset:{i*10240}")
    o(f"s_waitcnt vmcnt({1+NPF})"); o("ds_write_b128 v12, v[48:51]")
    o(f"s_waitcnt vmcnt({NPF})"); o(f"ds_write_b128 v12, v[52:55] offset:{32*272}")
    o("s_waitcnt lgkmcnt(0)"); o("s_barrier")
    stamp(1)
    for s in range(8): o(f"ds_read_b128 {vr(48+4*s,4)}, v8 offset:{32*s}")
    o("s_waitcnt lgkmcnt(4)")
    W1, W2 = 80, 112
    for s in range(8):
        for u in range(2):
            o(f"ds_read_b64_tr_b16 {vr(W1+4*s+2*u,2)}, v9 offset:{(16*s+4*u)*320}")
        for u in range(2):
            o(f"ds_read_b64_tr_b16 {vr(W2+4*s+2*u,2)}, v10 offset:{(16*s+4*u)*320}")
        if s % 2 == 1: o("s_waitcnt lgkmcnt(0)")
    o(f"s_cmp_eq_u32 s3, {NG}"); o("s_cbranch_scc1 K1_PACK")
    stamp(2)
    AQ, AH = 16, 32
    for s in range(8):
        mfma(AQ, 48+4*s, W1+4*s, None if s == 0 else AQ)
        mfma(AH, 48+4*s, W2+4*s, None if s == 0 else AH)
    srd(24, 20, TABLE_BYTES, TABLE_OFF)
    o("s_lshl_b32 s40, s39, 14")
    o("s_lshl_b32 s41, s38, 7"); o("s_add_u32 s40, s40, s41")
    o("v_lshlrev_b32 v8, 11, v7"); o("v_lshl_add_u32 v8, v6, 2, v8")
    o(f"s_mov_b32 s42, {hex(NLOG2E)}"); o("s_mov_b32 s43, 0x7fffffff"); o("s_mov_b32 s44, 0xffff")
    o("s_mov_b32 s45, 0x8000"); o("s_mov_b32 s46, 0x7fff0000")
    o("s_nop 7")
    for v in range(16):
        o(f"v_mul_f32 v{AQ+v}, s42, v{AQ+v}")
    for v in range(16):
        o(f"v_cvt_pk_bf16_f32 v{AQ+v}, v{AQ+v}, v{AQ+v}")
    for v in range(16):
        o(f"v_and_b32 v{AQ+v}, s44, v{AQ+v}")
        o(f"v_and_b32 v48, s43, v{AH+v}")
        o(f"v_sub_u32 v48, v48, v{AQ+v}")
        o("v_add_u32 v48, s45, v48")
        o("v_max_i32 v48, 0, v48")
        o(f"v_bfi_b32 v{AH+v}, s46, v48, v{AH+v}")
        o(f"v_bfi_b32 v{AH+v}, s44, v{AQ+v}, v{AH+v}")
        if v % 4 == 0: o(f"s_add_u32 s41, s40, {4096*(v//4)}")
        o(f"buffer_store_dword v{AH+v}, v8, s[24:27], s41 offen offset:{512*(v%4)}")
    stamp(3); stamp_out(0, 1)
    o("s_endpgm")
    lab("K1_PACK")
    srd(28, 20, 0x11000, WPACK_OFF)
    o("v_lshlrev_b32 v8, 4, v5")
    o("s_cmp_eq_u32 s37, 0"); o("s_cbranch_scc0 K1_PACKC")
    o("s_lshl_b32 s40, s38, 13")
    for s in range(8):
        if s % 4 == 0:
            o(f"s_add_u32 s41, s40, {s*1024}"); o(f"s_add_u32 s42, s40, {s*1024 + 32768}")
        o(f"buffer_store_dwordx4 {vr(W1+4*s,4)}, v8, s[28:31], s41 offen offset:{(s%4)*1024}")
        o(f"buffer_store_dwordx4 {vr(W2+4*s,4)}, v8, s[28:31], s42 offen offset:{(s%4)*1024}")
    o("s_endpgm")
    lab("K1_PACKC")
    o("v_lshlrev_b32 v12, 11, v7"); o("v_lshl_add_u32 v12, v6, 1, v12")
    o("s_lshl_b32 s40, s38, 6"); o("s_add_u32 s40, s40, 65536")
    for i in range(8):
        o(f"buffer_load_ushort v{16+i}, v12, s[24:27], s40 offen offset:{256*i}")
    o(f"s_mov_b32 s42, {hex(NLOG2E)}")
    o("s_waitcnt vmcnt(0)")
    for i in range(8):
        o(f"v_lshlrev_b32 v{16+i}, 16, v{16+i}")
        o(f"v_mul_f32 v{16+i}, s42, v{16+i}")
    for i in range(4):
        o(f"v_cvt_pk_bf16_f32 v{24+i}, v{16+2*i}, v{17+2*i}")
    o("s_lshl_b32 s40, s38, 10"); o("s_add_u32 s40, s40, 65536")
    o("buffer_store_dwordx4 v[24:27], v8, s[28:31], s40 offen")
    o("s_endpgm")
    if WARM:
        lab("K1_WARM")
        o("v_lshlrev_b32 v2, 4, v0")
        o(f"s_sub_u32 s3, s2, {NPROD + NG + 1}"); o(f"s_mul_i32 s52, s3, {XR*8192}"); o(f"s_add_u32 s52, s52, {NPROD*PR*8192}")
        o("s_waitcnt lgkmcnt(0)")
        srd(48, 6, E * 32)
        for i in range(XR):
            o(f"buffer_load_dwordx4 {vr(64+4*i,4)}, v2, s[48:51], s52 offen")
            o("s_add_u32 s52, s52, 8192")
        o("s_waitcnt vmcnt(0)")
        stamp_out(0, 2)
    lab("K1_END")
    o("s_endpgm")

CAP = 12
POOL = 0; POOL_BYTES = 32768
LUT = 32768; CNT = LUT + 4096; XS = CNT + 64
PX = XS + 40 * 272; UX = PX + 16384; EB = UX + 32768; K2_LDS = EB + 4 * CAP * 1024
ALT = "alt" in sys.argv
PFT = ([int(a[3:]) for a in sys.argv if a.startswith("pft")] + [0])[0]
PRIO = ([int(a[4:]) for a in sys.argv if a.startswith("prio")] + [0])[0]
def k2():
    kn = NAME + "_kernel"
    kstart(kn)
    o("s_cmp_ge_u32 s2, 256"); o("s_cbranch_scc1 K2_END")
    o("s_load_dwordx16 s[4:19], s[0:1], 0")
    o("s_load_dwordx2 s[20:21], s[0:1], 72")
    stamp_init()
    o("v_lshlrev_b32 v9, 3, v0")
    o("v_lshrrev_b32 v4, 6, v0"); o("v_and_b32 v1, 63, v0")
    o("v_lshlrev_b32 v8, 4, v0")
    o("v_readfirstlane_b32 s3, v4")
    o("v_and_b32 v6, 31, v1"); o("v_lshrrev_b32 v7, 5, v1")
    o("s_lshr_b32 s60, s3, 2"); o("s_and_b32 s61, s3, 3")
    o("s_lshl_b32 s22, s2, 13")
    o("s_waitcnt lgkmcnt(0)")
    sW, sX, sE, sT, sO = 24, 28, 32, 36, 40
    srd(sW, 20, WPACK_OFF + 0x11000)
    EN = 12
    G = [80, 96, 112]; Z, ACC, RO, FR, EF, PF, CF = 16, 32, 48, 56, 68, 72, 76
    WF = [112 + 4*s for s in range(4)] + [56 + 4*s for s in range(4)]
    o(f"buffer_load_dwordx2 {vr(EN,2)}, v9, s[{sW}:{sW+3}], s22 offen")
    srd(sX, 4, N * 256)
    o("v_lshrrev_b32 v10, 4, v0"); o("v_and_b32 v11, 15, v0")
    o("v_lshlrev_b32 v5, 16, v10"); o("v_lshl_add_u32 v5, v11, 4, v5")
    o("s_lshl_b32 s62, s2, 8")
    o("s_cmp_ge_u32 s3, 10"); o("s_cbranch_scc1 K2_NOX")
    o(f"buffer_load_dwordx4 {vr(ACC,4)}, v5, s[{sX}:{sX+3}], s62 offen")
    lab("K2_NOX")
    o("v_lshlrev_b32 v14, 4, v1")
    o("s_lshl_b32 s63, s61, 10"); o(f"s_add_u32 s63, s63, {hex(WPACK_OFF+65536)}")
    o(f"buffer_load_dwordx4 {vr(CF,4)}, v14, s[{sW}:{sW+3}], s63 offen")
    def wload():
        o("s_cmp_ge_u32 s3, 8"); o("s_cbranch_scc1 K2_NOW")
        o("s_lshl_b32 s63, s3, 13"); o(f"s_add_u32 s63, s63, {hex(WPACK_OFF)}"); o("s_add_u32 s64, s63, 4096")
        for s in range(8):
            o(f"buffer_load_dwordx4 {vr(WF[s],4)}, v14, s[{sW}:{sW+3}], s{63 + s//4} offen offset:{(s%4)*1024}")
        lab("K2_NOW")
    WP = ([int(a[2:]) for a in sys.argv if a.startswith("wp")] + [0])[0]
    if WP == 0: wload()
    srd(sE, 6, E * 32); srd(sT, 20, TABLE_BYTES, TABLE_OFF); srd(sO, 18, N * 256)
    PW = ([int(a[2:]) for a in sys.argv if a.startswith("pw")] + [12])[0]
    if PFT:
        o(f"s_cmp_lt_u32 s3, {PW}"); o("s_cbranch_scc1 K2_NOPF")
        o("v_lshlrev_b32 v23, 7, v1")
        o("s_lshr_b32 s63, s2, 3"); o(f"s_mul_i32 s63, s63, {16-PW}"); o("s_add_u32 s63, s63, s3"); o(f"s_sub_u32 s63, s63, {PW}")
        o(f"s_mul_i32 s63, s63, {PFT*8192}")
        for i in range(PFT):
            o(f"buffer_load_dword v{G[2]}, v23, s[{sT}:{sT+3}], s63 offen")
            if i < PFT-1: o("s_add_u32 s63, s63, 8192")
        lab("K2_NOPF")
    for i in range(4):
        o(f"v_bfe_u32 v{16+i}, v0, {2*i}, 1"); o(f"v_bfe_u32 v20, v0, {2*i+1}, 1")
        o(f"v_lshl_or_b32 v{16+i}, v20, 16, v{16+i}")
        o(f"v_mul_u32_u24 v{16+i}, 0x3f80, v{16+i}")
    o("s_cmp_ge_u32 s3, 4"); o("s_cbranch_scc1 K2_NOLUT")
    o(f"ds_write_b128 v8, v[16:19] offset:{LUT}")
    lab("K2_NOLUT")
    o("s_lshl_b32 s63, s61, 7")
    o("v_lshlrev_b32 v2, 2, v6"); o("v_add_u32 v2, s63, v2")
    o("v_mov_b32 v3, v2")
    o(f"v_mul_u32_u24 v15, {CH}, v10")
    if 'xb' in sys.argv: o("s_lshl_b32 s63, s2, 9"); o("v_mov_b32 v15, s63")
    o("s_mov_b32 s72, 0")
    o("s_mov_b32 s73, 0")
    def pool_init():
        o("v_and_b32 v20, 16, v0"); o("v_cmp_eq_u32 vcc, 0, v20")
        o(f"v_mov_b32 v21, {hex(OOB)}"); o("v_mov_b32 v28, 0")
        o("v_cndmask_b32 v24, 0, v21, vcc")
        o("v_mov_b32 v29, 0"); o("v_mov_b32 v30, 0"); o("v_mov_b32 v31, 0")
        o("v_mov_b32 v25, v24"); o("v_mov_b32 v26, v24"); o("v_mov_b32 v27, v24")
        o(f"v_mov_b32 v20, {CNT}")
        for i in range(2):
            o(f"ds_write_b128 v8, v[24:27] offset:{POOL + i*16384}")
        o("ds_write_b128 v20, v[28:31]")
        o(f"v_add_u32 v21, {EB}, v8")
        for i in range(3): o(f"ds_write_b128 v21, v[28:31] offset:{i*16384}")
    if WP == 1: wload()
    pool_init()
    if WP == 2: wload()
    o("ds_write_b32 v20, v28 offset:16")
    o("v_mov_b32 v22, 1")
    o("v_mul_u32_u24 v5, 272, v10"); o("v_lshl_add_u32 v5, v11, 4, v5")
    o("s_mov_b32 s78, 1.0"); o("s_mov_b32 s79, 1.0")
    o("s_waitcnt lgkmcnt(0)"); o("s_barrier")
    if WP == 3: wload()
    o("s_cmp_ge_u32 s3, 8"); o("s_cbranch_scc1 K2_XW1")
    o("s_waitcnt vmcnt(9)"); o("s_branch K2_XW2")
    lab("K2_XW1"); o(f"s_waitcnt vmcnt({1+PFT})")
    if PFT: o(f"s_cmp_ge_u32 s3, {PW}"); o("s_cbranch_scc1 K2_B1"); o("s_waitcnt vmcnt(1)")
    o("s_cmp_ge_u32 s3, 10"); o("s_cbranch_scc1 K2_B1")
    lab("K2_XW2")
    o(f"ds_write_b128 v5, {vr(ACC,4)} offset:{XS}")
    o("s_mov_b64 exec, 1"); o("ds_add_u32 v20, v22 offset:16"); o("s_mov_b64 exec, -1")
    lab("K2_B1")
    if not ALT: stamp(1)
    o(f"v_cmp_eq_u32 vcc, -2, v{EN}")
    o("s_cbranch_vccz K2_COMPACT")
    o(f"v_mov_b32 v20, {CNT}"); o("v_mov_b32 v21, 1"); o("ds_write_b32 v20, v21 offset:8")
    lab("K2_COMPACT")
    o("s_setprio 3")
    o("v_and_b32 v20, 1, v0"); o("v_lshlrev_b32 v20, 4, v20"); o(f"v_mov_b32 v21, {hex(OOB)}")
    for i in range(2):
        e = EN + i
        o(f"v_cmp_gt_u32 s[{74+2*i}:{75+2*i}], -2, v{e}")
        o(f"v_lshrrev_b32 v{22+i}, 20, v{e}"); o(f"v_add_lshl_u32 v{22+i}, v{22+i}, v15, 5")
    for i in range(2):
        o(f"v_cndmask_b32 v{22+i}, v21, v{22+i}, s[{74+2*i}:{75+2*i}]")
    o("s_nop 0")
    for i in range(2):
        for p, qp in enumerate(["[0,0,2,2]", "[1,1,3,3]"]):
            o(f"v_add_u32_dpp v{G[1]+4*(2*i+p)}, v{22+i}, v20 quad_perm:{qp} row_mask:0xf bank_mask:0xf")
    def eload():
        for i in range(4):
            o(f"buffer_load_dwordx4 {vr(G[1]+4*i,4)}, v{G[1]+4*i}, s[{sE}:{sE+3}], 0 offen")
    EW = ([int(a[2:]) for a in sys.argv if a.startswith("ew")] + [8])[0]
    o(f"s_cmp_ge_u32 s3, {EW}"); o("s_cbranch_scc1 K2_ELATE")
    eload()
    lab("K2_ELATE")
    if not ALT: stamp(2)
    for i in range(2):
        e = EN + i
        o(f"v_and_b32 v{16+i}, 3, v{e}")
        o(f"v_lshlrev_b32 v{18+i}, 3, v{16+i}")
        o(f"v_bfm_b32 v{20+i}, 1, v{18+i}")
        o(f"v_cndmask_b32 v{20+i}, 0, v{20+i}, s[{74+2*i}:{75+2*i}]")
    o("v_add_u32 v22, v20, v21"); o("v_mov_b32 v23, v22")
    fill = []
    for i in range(2):
        e = EN + i
        fill += [f"v_bfe_u32 v{24+2*i}, v{e}, 6, 14", f"v_lshlrev_b32 v{24+2*i}, 9, v{24+2*i}",
                 f"v_bfe_u32 v{28+i}, v{e}, 2, 4", f"v_bfe_u32 v{30+i}, v{e}, 5, 1",
                 f"v_and_b32 v{25+2*i}, 3, v{28+i}", f"v_lshl_or_b32 v{25+2*i}, v{30+i}, 2, v{25+2*i}"]
    dpp = ["row_shr:1", "row_shr:2", "row_shr:4", "row_shr:8"]
    for j, d in enumerate(dpp):
        o(fill[2*j]); o(fill[2*j+1])
        o(f"v_add_u32_dpp v23, v23, v23 {d} row_mask:0xf bank_mask:0xf bound_ctrl:0")
    o(fill[8]); o(fill[9])
    o("v_add_u32_dpp v23, v23, v23 row_bcast:15 row_mask:0xa bank_mask:0xf")
    o(fill[10]); o(fill[11])
    o("v_add_u32_dpp v23, v23, v23 row_bcast:31 row_mask:0xc bank_mask:0xf")
    o("s_nop 0")
    o("v_readlane_b32 s64, v23, 63")
    o("v_sub_u32 v23, v23, v22")
    o("s_and_b32 s65, s64, 0xff"); o("s_bfe_u32 s66, s64, 0x80008"); o("s_lshl_b32 s66, s66, 16"); o("s_or_b32 s65, s65, s66")
    o("s_bfe_u32 s66, s64, 0x80010"); o("s_lshr_b32 s67, s64, 24"); o("s_lshl_b32 s67, s67, 16"); o("s_or_b32 s66, s66, s67")
    o("v_mov_b32 v48, s65"); o("v_mov_b32 v49, s66"); o(f"v_mov_b32 v50, {CNT}")
    o("s_mov_b64 exec, 1")
    o("ds_add_rtn_u64 v[48:49], v50, v[48:49]")
    o("s_mov_b64 exec, -1")
    o("v_add_u32 v22, v23, v20")
    o("v_bfe_u32 v20, v23, v18, 8"); o("v_bfe_u32 v21, v22, v19, 8")
    for i in range(2):
        o(f"v_bfm_b32 v{30+i}, 1, v{25+2*i}")
        o(f"v_bfe_u32 v{22+i}, v{28+i}, 2, 1"); o(f"v_lshlrev_b32 v{22+i}, 7, v{22+i}")
        o(f"v_lshlrev_b32 v{18+i}, 1, v{18+i}")
        o(f"v_mul_u32_u24 v{16+i}, {CAP*512}, v{16+i}")
    o(f"s_movk_i32 s68, {CAP*32}")
    o("s_waitcnt lgkmcnt(0)")
    o("v_readfirstlane_b32 s64, v48"); o("v_readfirstlane_b32 s65, v49")
    o("s_nop 1")
    for i in range(2):
        o(f"v_lshrrev_b64 v[48:49], v{18+i}, s[64:65]")
        o("v_and_b32 v48, 0xffff, v48"); o(f"v_add_u32 v48, v48, v{20+i}")
        o("v_cmp_gt_u32 vcc, s68, v48")
        o("v_lshrrev_b32 v49, 5, v48"); o("v_and_b32 v48, 31, v48")
        o(f"v_lshl_add_u32 v49, v49, 9, v{16+i}")
        o("v_lshl_add_u32 v50, v48, 2, v49")
        o(f"v_add_u32 v51, v50, v{22+i}")
        o("v_lshrrev_b32 v52, 3, v48"); o("v_and_b32 v53, 3, v48")
        o("v_lshl_or_b32 v52, v52, 2, v53"); o("v_lshlrev_b32 v52, v52, v0") if False else None
        o("v_lshl_or_b32 v52, v52, 2, v53") if False else None
        o("v_add_u32 v52, 8, v52"); o("v_bfm_b32 v52, 1, v52")
        o("v_bfe_u32 v53, v48, 2, 1"); o("v_lshl_add_u32 v53, v53, 7, v49")
        o(f"v_lshl_add_u32 v53, v{28+i}, 2, v53")
        o(f"v_bfrev_b32 v{EN+i}, 1")
        o("v_lshlrev_b32 v48, 4, v48")
        o(f"s_and_b64 exec, vcc, s[{74+2*i}:{75+2*i}]")
        o(f"v_lshl_add_u32 v{EN+i}, v49, 1, v48")
        o(f"ds_write_b32 v50, v{24+2*i}")
        o(f"ds_or_b32 v51, v{30+i} offset:256")
        o("ds_or_b32 v53, v52 offset:256")
        o("s_mov_b64 exec, -1")
    o(f"v_mov_b32 v17, {CNT}"); o("v_mov_b32 v16, 0x10000")
    o("s_mov_b64 exec, 1")
    o("ds_add_u32 v17, v16 offset:12")
    o("s_mov_b64 exec, -1")
    if not ALT: stamp(3)
    o(f"s_cmp_lt_u32 s3, {EW}"); o("s_cbranch_scc1 K2_EEARLY")
    eload()
    lab("K2_EEARLY")
    o("s_setprio 0")
    o("s_cmp_lg_u32 s72, 0"); o("s_cbranch_scc1 K2_B2")
    o("s_cmp_ge_u32 s3, 8"); o("s_cbranch_scc1 K2_B2")
    o("v_and_b32 v9, 15, v1"); o("v_min_u32 v9, 9, v9"); o("v_bfe_u32 v73, v1, 4, 1")
    o("v_lshl_add_u32 v9, v9, 2, v73"); o("v_mul_u32_u24 v9, 272, v9"); o("v_lshl_add_u32 v9, v7, 4, v9")
    lab("K2_SPINX")
    o("ds_read_b32 v16, v17 offset:16")
    o("s_waitcnt lgkmcnt(0)")
    o("v_readfirstlane_b32 s70, v16")
    o("s_cmp_lg_u32 s70, 10"); o("s_cbranch_scc1 K2_SPINX")
    XB = [G[0], G[0]+4, G[0]+8, G[0]+12, RO, RO+4, PF]
    def xrd(i): o(f"ds_read_b128 {vr(XB[i%7],4)}, v9 offset:{XS + 32*(i>>1) + 544*(i&1)}")
    for i in range(6): xrd(i)
    o("s_waitcnt vmcnt(4)")
    for i in range(16):
        if i + 6 < 16: xrd(i + 6)
        o(f"s_waitcnt lgkmcnt({min(6, 15-i)})")
        D = ACC if i & 1 else Z
        mfma(D, XB[i%7], WF[i>>1], None if i < 2 else D)
    o("s_cmp_ge_u32 s3, 4"); o("s_cbranch_scc1 K2_UOUT")
    o(f"s_mov_b32 s65, {hex(NLOG2E)}")
    o("s_lshl_b32 s70, s61, 10"); o("v_add_u32 v72, s70, v14")
    o("s_nop 7")
    for v in range(32): o(f"v_mul_f32 v{Z+v}, s65, v{Z+v}")
    for i in range(16): o(f"v_cvt_pk_bf16_f32 v{Z+i}, v{Z+2*i}, v{Z+2*i+1}")
    for l in range(4): o(f"ds_write_b128 v72, {vr(Z+4*l,4)} offset:{PX + l*4096}")
    o("s_branch K2_B2")
    lab("K2_UOUT")
    o("s_lshl_b32 s70, s61, 11"); o(f"s_add_u32 s70, s70, {UX}"); o("v_add_u32 v72, s70, v14")
    o("s_nop 8")
    for l in range(4):
        for hf in range(2): o(f"ds_write_b128 v72, {vr(Z+8*l+4*hf,4)} offset:{l*8192 + hf*1024}")
    lab("K2_B2")
    if not ALT: stamp(4)
    o(f"v_mov_b32 v48, {CNT}")
    o(f"s_mul_i32 s66, s60, {CAP*512}")
    o("v_lshl_add_u32 v4, v7, 4, s66")
    o("v_lshl_add_u32 v5, v1, 2, s66")
    o(f"s_lshl_b32 s66, s66, 1"); o(f"s_add_u32 s66, s66, {EB}")
    o("v_add_u32 v10, s66, v14")
    lab("K2_SPINA")
    o("ds_read_b128 v[52:55], v48")
    o("s_waitcnt lgkmcnt(0)")
    o("v_readfirstlane_b32 s70, v55")
    o("s_cmp_lt_u32 s70, 0x100000"); o("s_cbranch_scc1 K2_SPINA")
    o("v_readfirstlane_b32 s64, v52"); o("v_readfirstlane_b32 s65, v53"); o("v_readfirstlane_b32 s69, v54")
    o("s_and_b32 s70, s64, 0xffff"); o("s_lshr_b32 s71, s64, 16"); o("s_max_u32 s70, s70, s71")
    o("s_and_b32 s71, s65, 0xffff"); o("s_max_u32 s70, s70, s71"); o("s_lshr_b32 s71, s65, 16"); o("s_max_u32 s70, s70, s71")
    o("s_cmp_gt_u32 s70, s68"); o("s_cselect_b32 s69, 1, s69")
    o("s_cmp_lg_u32 s69, 0"); o("s_cbranch_scc1 K2_BAD")
    o("s_lshl_b32 s70, s60, 4"); o("s_lshr_b64 s[64:65], s[64:65], s70"); o("s_and_b32 s64, s64, 0xffff")
    o("s_add_u32 s64, s64, 31"); o("s_lshr_b32 s64, s64, 5")
    if ALT: stamp(1)
    if PRIO and PRIO < 4: o("s_setprio 3")
    if PRIO in (4, 5, 7, 8): o("s_setprio 2")
    if PRIO == 6: o("s_setprio 3")
    MK = [11, 12, 13]
    def issue_a():
        for c in range(2): o(f"ds_read_b128 {vr(RO+4*c,4)}, v4 offset:{32*c}")
    def issue_b(k, first):
        for hf in range(2):
            if hf == 1:
                for c in range(2):
                    o(f"ds_read_b128 {vr(RO+4*c,4)}, v4 offset:{32*(2+c)}")
                o(f"ds_read_b32 v{MK[k]}, v5 offset:256")
            for c in range(2):
                if hf == 1 or first: o(f"s_waitcnt lgkmcnt({1-c+hf})")
                for i in range(0, 4, 2):
                    o(f"v_lshl_add_u64 {vr(RO+4*c+i,2)}, {vr(RO+4*c+i,2)}, 0, v[2:3]")
                for i in range(0 if 'nold' in sys.argv else 4):
                    o(f"buffer_load_dword v{G[k]+8*hf+4*c+i}, v{RO+4*c+i}, s[{sT}:{sT+3}], 0 offen")
        o("v_add_u32 v4, 512, v4"); o("v_add_u32 v5, 512, v5")
    ER = ([int(a[2:]) for a in sys.argv if a.startswith("er")] + [2])[0]
    o("v_and_b32 v16, 1, v0"); o("v_lshlrev_b32 v16, 9, v16"); o(f"v_add_u32 v16, {EB}, v16")
    o(f"v_mov_b32 v17, {CNT}")
    for i in range(2):
        for p, qp in enumerate(["[0,0,2,2]", "[1,1,3,3]"]):
            o(f"v_add_u32_dpp v{18+2*i+p}, v{EN+i}, v16 quad_perm:{qp} row_mask:0xf bank_mask:0xf")
    o("v_mov_b32 v16, 1")
    o(f"s_cmp_lt_u32 s60, {ER}"); o("s_cselect_b32 s69, s64, 0")
    o("s_cmp_eq_u32 s69, 0"); o("s_cbranch_scc1 K2_EW0")
    lab("K2_I0")
    issue_a(); issue_b(0, True)
    if ALT: stamp(2)
    o("s_cmp_eq_u32 s69, 0"); o("s_cbranch_scc1 K2_I1")
    o("s_waitcnt vmcnt(16)"); o("s_branch K2_EW")
    lab("K2_EW0")
    o("s_waitcnt vmcnt(0)")
    lab("K2_EW")
    for i in range(4):
        o(f"v_cmpx_le_i32 vcc, 0, v{18+i}")
        o(f"ds_write_b128 v{18+i}, {vr(G[1]+4*i,4)}")
        o("s_mov_b64 exec, -1")
    o("s_mov_b64 exec, 1")
    o("s_waitcnt lgkmcnt(0)")
    o("ds_add_u32 v17, v16 offset:12")
    o("s_mov_b64 exec, -1")
    if ALT: stamp(3)
    o("s_cmp_lg_u32 s69, s64"); o("s_cbranch_scc1 K2_I0")
    lab("K2_I1")
    if PRIO in (2, 3): o("s_setprio 2")
    if PRIO == 4: o("s_setprio 1")
    o("s_cmp_lt_u32 s64, 2"); o("s_cbranch_scc1 K2_SPIN")
    issue_a(); issue_b(1, True)
    lab("K2_SPIN")
    if PRIO in (1, 2): o("s_setprio 1")
    lab("K2_SPINE")
    o("ds_read_b32 v16, v17 offset:12")
    o("s_waitcnt lgkmcnt(0)")
    o("v_readfirstlane_b32 s70, v16")
    o("s_cmp_lg_u32 s70, 0x100010"); o("s_cbranch_scc1 K2_SPINE")
    o("s_cmp_lg_u32 s73, 0"); o("s_cbranch_scc1 K2_LOOP0")
    o("s_mov_b32 s73, 1")
    o("s_lshl_b32 s70, s3, 10"); o("v_add_u32 v18, s70, v14")
    o(f"ds_read_b128 {vr(PF,4)}, v18 offset:{PX}")
    o("s_lshl_b32 s70, s3, 11"); o(f"s_add_u32 s70, s70, {UX}"); o("v_add_u32 v18, s70, v14")
    o(f"ds_read_b128 {vr(ACC,4)}, v18"); o(f"ds_read_b128 {vr(ACC+4,4)}, v18 offset:1024")
    for v in range(8, 16): o(f"v_mov_b32 v{ACC+v}, 0")
    if ALT: stamp(4)
    PK = "nopk" not in sys.argv
    def body(k):
        g = G[k]
        lab(f"K2_LOOP{k}")
        o("s_cmp_eq_u32 s64, 0"); o("s_cbranch_scc1 K2_BATCH_DONE")
        o(f"ds_read_b128 {vr(EF,4)}, v10")
        for i in range(3):
            o(f"v_lshlrev_b32_sdwa v9, 4, v{MK[k]} dst_sel:DWORD dst_unused:UNUSED_PAD src0_sel:DWORD src1_sel:BYTE_{i}")
            if 'nolut' not in sys.argv: o(f"ds_read_b128 {vr(FR+4*i,4)}, v9 offset:{LUT}")
        issue_a()
        o("v_add_u32 v10, 1024, v10")
        o("s_cmp_eq_u32 s64, 1"); o(f"s_cbranch_scc1 K2_W{k}")
        o("s_waitcnt vmcnt(16)")
        lab(f"K2_C{k}")
        for v in range(0, 16, 2): o(f"v_lshlrev_b64 {vr(Z+v,2)}, 16, {vr(g+v,2)}")
        o("s_sub_u32 s64, s64, 1")
        o("s_waitcnt lgkmcnt(0)")
        mfma(Z, EF, CF, Z); mfma(Z, FR, PF, Z)
        o("s_cmp_lt_u32 s64, 2"); o(f"s_cbranch_scc1 K2_N{k}")
        issue_b((k + 2) % 3, False)
        lab(f"K2_X{k}")
        for v in range(0 if 'notr' in sys.argv else 16): o(f"v_exp_f32 v{Z+v}, v{Z+v}")
        if PK:
            for v in range(0, 16, 2): o(f"v_pk_add_f32 {vr(Z+v,2)}, {vr(Z+v,2)}, s[78:79]")
        else:
            for v in range(16): o(f"v_add_f32 v{Z+v}, 1.0, v{Z+v}")
        for v in range(0 if 'notr' in sys.argv else 16): o(f"v_rcp_f32 v{Z+v}, v{Z+v}")
        if PK:
            for v in range(0, 16, 2): o(f"v_pk_mul_f32 {vr(Z+v,2)}, {vr(Z+v,2)}, {vr(g+v,2)}")
        else:
            for v in range(16): o(f"v_mul_f32 v{Z+v}, v{Z+v}, v{g+v}")
        for i in range(8): o(f"v_cvt_pk_bf16_f32 v{Z+i}, v{Z+2*i}, v{Z+2*i+1}")
        o("s_waitcnt lgkmcnt(0)")
        o("s_nop 0")
        mfma(ACC, FR+4, Z, ACC); mfma(ACC, FR+8, Z+4, ACC)
        if PRIO in (1, 2) and k == 0: o("s_setprio 0")
        if PRIO == 4:
            o("s_cmp_gt_u32 s64, 2"); o(f"s_cbranch_scc1 K2_PR{k}"); o("s_setprio 0")
            lab(f"K2_PR{k}")
        if PRIO == 6: o("s_setprio 2")
        if PRIO == 7:
            o("s_setprio 1"); o("s_cmp_gt_u32 s64, 2"); o(f"s_cbranch_scc1 K2_PR{k}"); o("s_setprio 0")
            lab(f"K2_PR{k}")
        if PRIO == 8:
            o("s_cmp_gt_u32 s64, 4"); o(f"s_cbranch_scc1 K2_PR{k}"); o("s_setprio 1")
            o("s_cmp_gt_u32 s64, 2"); o(f"s_cbranch_scc1 K2_PR{k}"); o("s_setprio 0")
            lab(f"K2_PR{k}")
        if PRIO in (3, 5, 6):
            o("s_cmp_gt_u32 s64, 3"); o(f"s_cbranch_scc1 K2_PR{k}"); o("s_setprio 1")
            o("s_cmp_gt_u32 s64, 1"); o(f"s_cbranch_scc1 K2_PR{k}"); o("s_setprio 0")
            lab(f"K2_PR{k}")
    for k in range(3): body(k)
    o("s_branch K2_LOOP0")
    for k in range(3):
        lab(f"K2_W{k}"); o("s_waitcnt vmcnt(0)"); o(f"s_branch K2_C{k}")
        lab(f"K2_N{k}"); o("s_nop 10"); o(f"s_branch K2_X{k}")
    lab("K2_BAD")
    o("s_cmp_eq_u32 s72, 0"); o("s_cselect_b32 s58, 0, s58"); o("s_movk_i32 s59, 2048"); o("s_cselect_b32 s59, s59, 256")
    o("s_mov_b32 s72, 1"); o("s_branch K2_SCAN")
    lab("K2_BATCH_DONE")
    o("s_cmp_eq_u32 s72, 0"); o("s_cbranch_scc1 K2_EPI")
    o("s_add_u32 s58, s58, s59"); o("s_movk_i32 s59, 2048")
    o(f"s_cmp_ge_u32 s58, {E}"); o("s_cbranch_scc1 K2_EPI")
    lab("K2_SCAN")
    o("s_waitcnt vmcnt(0) lgkmcnt(0)")
    srd(44, 8, E * 4); srd(48, 10, E * 4)
    o("s_lshl_b32 s57, s58, 2"); o("v_lshlrev_b32 v9, 3, v0")
    o("buffer_load_dwordx2 v[48:49], v9, s[48:51], s57 offen")
    o("buffer_load_dwordx2 v[50:51], v9, s[44:47], s57 offen")
    o("s_barrier")
    pool_init()
    o("v_mov_b32 v15, s58")
    o(f"s_sub_u32 s57, {E}, s58"); o("s_min_u32 s57, s57, s59")
    o("s_waitcnt vmcnt(0)")
    for i in range(2):
        o(f"v_lshl_add_u32 v20, v0, 1, {i}")
        o(f"v_and_b32 v21, 0xff, v{48+i}")
        o("v_cmp_eq_u32 vcc, s2, v21"); o("v_cmp_gt_u32 s[66:67], s57, v20")
        o("s_and_b64 vcc, vcc, s[66:67]")
        o(f"v_lshrrev_b32 v21, 8, v{48+i}")
        o(f"v_lshl_or_b32 v21, v{50+i}, 6, v21"); o("v_lshl_or_b32 v21, v20, 20, v21")
        o(f"v_cndmask_b32 v{EN+i}, -1, v21, vcc")
    o("s_waitcnt lgkmcnt(0)"); o("s_barrier")
    o("s_branch K2_COMPACT")
    lab("K2_EPI")
    o("s_waitcnt vmcnt(0) lgkmcnt(0)")
    o(f"s_mov_b32 s65, {hex(NLOG2E)}")
    o("v_lshlrev_b32 v9, 20, v7"); o("v_lshl_add_u32 v9, v6, 1, v9")
    o("s_lshl_b32 s63, s61, 6"); o("s_add_u32 s62, s62, s63"); o("s_lshl_b32 s63, s60, 16"); o("s_add_u32 s62, s62, s63")
    o("s_nop 7")
    for v in range(6): o(f"v_mul_f32 v{Z+v}, s65, v{ACC+v}")
    for v in range(6): o(f"v_exp_f32 v{Z+v}, v{Z+v}")
    for v in range(6): o(f"v_add_f32 v{Z+v}, 1.0, v{Z+v}")
    for v in range(6): o(f"v_rcp_f32 v{Z+v}, v{Z+v}")
    for v in range(6): o(f"v_mul_f32 v{Z+v}, v{Z+v}, v{ACC+v}")
    for v in range(6): o(f"v_cvt_pk_bf16_f32 v{Z+v}, v{Z+v}, v{Z+v}")
    for v in range(6):
        if v == 4: o("s_mov_b32 exec_hi, 0")
        o(f"s_add_u32 s63, s62, {((v&3) + 8*(v>>2)) << 18}")
        o(f"buffer_store_short v{Z+v}, v9, s[{sO}:{sO+3}], s63 offen")
    o("s_lshr_b32 s89, s3, 2") if STAMPS else None
    stamp_out(1, "s89")
    lab("K2_END")
    o("s_endpgm")

header(); k1(); k2()
L.append('.section .rodata,"a"')
kdesc("prep_kernel", 156, 102 if STAMPS else 56); kdesc(NAME + "_kernel", 128, 102 if STAMPS else 80)
out = sys.argv[1] if len(sys.argv) > 1 else "cdna_kernels/%s.s" % NAME
open(out, "w").write("\n".join(x for x in L if x is not None) + "\n")
```

```python
import sys
NAME = "standalone__edge_featured_mpnn_egc__graph"
N, E = 10000, 160000
NPROD, CH = 64, 2500
CELLS_OFF, TABLE_OFF, WPACK_OFF = 0, 0x200000, 0x800000
TABLE_BYTES = N * 512
NG = 157
NLOG2E = 0xBFB8AA3B
OOB = 0x7FFFF000
L = []
def o(s): L.append("    " + s)
def lab(s): L.append(s + ":")
def srd(d, b, nbytes, off=0):
    if off:
        o(f"s_add_u32 s{d}, s{b}, {hex(off)}"); o(f"s_addc_u32 s{d+1}, s{b+1}, 0")
    else:
        o(f"s_mov_b32 s{d}, s{b}"); o(f"s_mov_b32 s{d+1}, s{b+1}")
    o(f"s_mov_b32 s{d+2}, {hex(nbytes)}"); o(f"s_mov_b32 s{d+3}, 0x00020000")
def vr(a, n): return f"v[{a}:{a+n-1}]"
def mfma(d, a, b, c):
    cs = "0" if c is None else vr(c, 16)
    o(f"v_mfma_f32_32x32x16_bf16 {vr(d,16)}, {vr(a,4)}, {vr(b,4)}, {cs}")

STAMPS = "stamps" in sys.argv
def stamp(i):
    if STAMPS: o(f"s_memrealtime s[{90+2*i}:{91+2*i}]")
def stamp_init():
    if STAMPS:
        for i in range(1, 6): o(f"s_mov_b32 s{90+2*i}, 0")
        o("v_lshrrev_b32 v255, 6, v0") if False else None
        stamp(0)
def stamp_out(kid, role):
    if not STAMPS: return
    o("s_waitcnt vmcnt(0)")
    stamp(5)
    o("s_waitcnt lgkmcnt(0)")
    o("s_mov_b64 exec, -1")
    o("v_lshrrev_b32 v1, 6, v0"); o("v_and_b32 v2, 63, v0")
    o("v_lshlrev_b32 v1, 5, v1"); o("v_lshl_add_u32 v1, v2, 2, v1")
    for i in range(6): o(f"v_writelane_b32 v3, s{90+2*i}, {i}")
    o(f"s_mov_b32 s4, {role}"); o("v_writelane_b32 v3, s4, 6")
    o("s_mov_b32 s4, 0xC0FFEE"); o("v_writelane_b32 v3, s4, 7")
    if "dbg" in sys.argv:
        wg, slot, msk = {(0,0): (5, 12, 0xf), (0,1): (100, 0, 0x3f), (1,0): (77, 6, 0x3f)}[(kid, role)]
        o("v_readfirstlane_b32 s5, v1"); o("s_load_dwordx2 s[12:13], s[0:1], 64")
        o("s_waitcnt lgkmcnt(0)")
        o(f"s_add_u32 s8, s12, {512*(1-kid)}"); o("s_addc_u32 s9, s13, 0"); o("s_mov_b32 s10, 256"); o("s_mov_b32 s11, 0x00020000")
        o(f"s_xor_b32 s4, s2, {wg}"); o("s_or_b32 s4, s4, s5"); o("s_cmp_eq_u32 s4, 0"); o(f"s_cbranch_scc0 DBG{kid}{role}")
        o(f"v_lshlrev_b32 v1, 2, v2"); o(f"s_mov_b64 exec, {msk}")
        o(f"buffer_store_dword v3, v1, s[8:11], 0 offen offset:{4*slot}")
        lab(f"DBG{kid}{role}")
        return
    srd(8, 20, 0x100000, 0x4000000 + kid * 512 * 512)
    o("s_lshl_b32 s4, s2, 9")
    o("s_mov_b64 exec, 0xff")
    o("buffer_store_dword v3, v1, s[8:11], s4 offen")

def header():
    src = open("cdna_kernels/%s.s.ref" % NAME).read().split("\n")
    for l in src:
        if l.startswith("; Override"): break
        L.append(l)
    L.append("; @launch kernel=prep_kernel grid=(%d,1,1) block=(512,1,1) lds=%d" % (NPROD + NG + 1 + globals().get("NXW", 0), K1_LDS))
    L.append("; @launch kernel=%s_kernel grid=(256,1,1) block=(1024,1,1) lds=%d" % (NAME, K2_LDS))
    L.append('.amdgcn_target "amdgcn-amd-amdhsa--gfx950"')
    L.append(".text")

def kstart(n):
    L.append(f".globl {n}"); L.append(".p2align 8"); L.append(f".type {n},@function"); lab(n)

def kdesc(n, vg, sg):
    L.append(".p2align 6")
    L.append(f".amdhsa_kernel {n}")
    for k, v in [("next_free_vgpr", vg), ("next_free_sgpr", sg), ("accum_offset", (vg + 3) // 4 * 4),
                 ("group_segment_fixed_size", 0), ("kernarg_size", 80), ("user_sgpr_count", 2),
                 ("user_sgpr_kernarg_segment_ptr", 1), ("system_sgpr_workgroup_id_x", 1)]:
        L.append(f"  .amdhsa_{k} {v}")
    L.append(".end_amdhsa_kernel")

NPF = 0
TFLG = ([a[2:].replace("_", " ") for a in sys.argv if a.startswith("tf")] + [""])[0]
CFLG = ([a[2:].replace("_", " ") for a in sys.argv if a.startswith("cf")] + [""])[0]
WARM = "nowarm" not in sys.argv
NXW = 34 if WARM else 0
XR, PR = 11, 4
K1_LDS = 81920 + 64 * 272
def prefetch_e(va="v1"):
    if not NPF: return
    srd(48, 6, E * 32)
    o("s_mul_i32 s52, s2, 24576")
    for i in range(3):
        o(f"buffer_load_dwordx4 {vr(144+4*i,4)}, {va}, s[48:51], s52 offen")
        if i < 2: o("s_add_u32 s52, s52, 8192")
TLB = "tlb" in sys.argv
def touch(tag, vt, table):
    if not TLB: return
    o(f"v_readfirstlane_b32 s52, v0"); o("s_cmp_lg_u32 s52, 0"); o(f"s_cbranch_scc1 K1_T{tag}")
    srd(48, 6, E * 32)
    o(f"v_mul_u32_u24 v{vt}, 80000, v0")
    o(f"buffer_load_dword v{vt+1}, v{vt}, s[48:51], 0 offen")
    srd(48, 18, N * 256)
    o(f"v_lshrrev_b32 v{vt}, 1, v{vt}")
    o(f"buffer_load_dword v{vt+1}, v{vt}, s[48:51], 0 offen")
    if table:
        o("s_mov_b64 exec, 1")
        o(f"buffer_load_dword v{vt+1}, v{vt}, s[44:47], s40 offen")
        o("s_mov_b64 exec, -1")
    lab(f"K1_T{tag}")
def k1():
    kstart("prep_kernel")
    o(f"s_cmp_ge_u32 s2, {NPROD + NG + 1 + NXW}"); o("s_cbranch_scc1 K1_END")
    o("s_load_dwordx16 s[4:19], s[0:1], 0")
    o("s_load_dwordx2 s[20:21], s[0:1], 72")
    stamp_init()
    if WARM: o(f"s_cmp_ge_u32 s2, {NPROD + NG + 1}"); o("s_cbranch_scc1 K1_WARM")
    o(f"s_cmp_ge_u32 s2, {NPROD}"); o("s_cbranch_scc1 K1_GEMM")
    o("v_lshlrev_b32 v1, 2, v0")
    o(f"s_mul_i32 s22, s2, {CH*4}")
    o("v_mov_b32 v20, -1"); o("v_mov_b32 v21, -1"); o("v_mov_b32 v22, -1"); o("v_mov_b32 v23, -1")
    o("v_lshlrev_b32 v2, 4, v0")
    o("v_mov_b32 v24, 0")
    o("s_waitcnt lgkmcnt(0)")
    srd(24, 8, E * 4); srd(28, 10, E * 4); srd(32, 20, 0x200000, CELLS_OFF)
    for i in range(5):
        o(f"s_add_u32 s23, s22, {i*2048}")
        o(f"buffer_load_dword v{4+i}, v1, s[28:31], s23 offen")
        o(f"buffer_load_dword v{10+i}, v1, s[24:27], s23 offen")
    o("v_lshlrev_b32 v19, 2, v1"); prefetch_e("v19")
    for i in range(4):
        o(f"ds_write_b128 v2, v[20:23] offset:{i*8192}")
    o("ds_write_b32 v1, v24 offset:32768")
    o("v_mov_b32 v25, 0x10000"); o(f"s_movk_i32 s38, {N//2}")
    o("s_waitcnt lgkmcnt(0)"); o("s_barrier")
    o(f"v_cmp_gt_u32 s[36:37], {CH - 2048}, v0") if False else None
    o(f"s_movk_i32 s23, {CH - 2048}")
    o("v_cmp_gt_u32 s[36:37], s23, v0")
    for i in range(5):
        o(f"s_waitcnt vmcnt({2*(4-i)+NPF})")
        o(f"v_cmp_le_u32 s[{40+2*i}:{41+2*i}], s38, v{10+i}")
        if i == 4: o("s_mov_b64 exec, s[36:37]")
        o(f"v_and_b32 v{26+i}, 0xff, v{4+i}")
        o(f"v_lshlrev_b32 v16, 2, v{26+i}")
        o(f"v_cndmask_b32 v17, 1, v25, s[{40+2*i}:{41+2*i}]")
        o(f"ds_add_rtn_u32 v{32+i}, v16, v17 offset:32768")
    o("s_mov_b64 exec, -1")
    o(f"s_waitcnt vmcnt({NPF})")
    stamp(1)
    for i in range(5):
        o(f"v_lshrrev_b32 v{4+i}, 8, v{4+i}")
        o(f"v_lshl_or_b32 v{4+i}, v{10+i}, 6, v{4+i}")
        o(f"v_add_u32 v16, {i*512}, v0")
        o(f"v_lshl_or_b32 v{4+i}, v16, 20, v{4+i}")
    for i in range(5):
        o(f"s_waitcnt lgkmcnt({4-i})") if i == 0 or True else None
        o(f"v_and_b32 v16, 0xffff, v{32+i}"); o(f"v_lshrrev_b32 v17, 16, v{32+i}"); o("v_sub_u32 v17, 31, v17")
        o(f"v_cndmask_b32 v16, v16, v17, s[{40+2*i}:{41+2*i}]")
        o(f"v_cmp_gt_u32 vcc, 32, v16")
        o(f"v_lshlrev_b32 v16, 2, v16")
        o(f"v_lshl_add_u32 v{38+i}, v{26+i}, 7, v16")
        if i == 4: o("s_and_b64 vcc, vcc, s[36:37]")
        o(f"s_mov_b64 s[{40+2*i}:{41+2*i}], vcc")
    for i in range(5):
        o(f"s_mov_b64 exec, s[{40+2*i}:{41+2*i}]")
        o(f"ds_write_b32 v{38+i}, v{4+i}")
    o("s_mov_b64 exec, -1")
    o("s_waitcnt lgkmcnt(0)"); o("s_barrier")
    if WARM:
        srd(48, 6, E * 32); o(f"s_mul_i32 s52, s2, {PR*8192}")
        for i in range(PR):
            o(f"buffer_load_dwordx4 {vr(64+4*i,4)}, v2, s[48:51], s52 offen")
            o("s_add_u32 s52, s52, 8192")
    stamp(2)
    o("v_lshrrev_b32 v3, 3, v0")
    o("v_lshlrev_b32 v16, 2, v3")
    for i in range(4):
        o(f"ds_read_b128 {vr(44+4*i,4)}, v2 offset:{i*8192}")
        o(f"ds_read_b32 v{60+i}, v16 offset:{32768 + i*256}")
    o("v_and_b32 v17, 7, v0")
    o("v_cmp_eq_u32 vcc, 0, v17")
    o("v_lshlrev_b32 v17, 4, v17")
    o("v_lshl_add_u32 v17, v3, 13, v17")
    o("v_cndmask_b32 v18, -1, -2, vcc") if False else None
    o("v_mov_b32 v18, -2")
    o("v_cndmask_b32 v18, -1, v18, vcc")
    o("s_lshl_b32 s22, s2, 7")
    for i in range(4):
        o(f"s_waitcnt lgkmcnt({2*(3-i)})")
        o(f"v_add_u32_sdwa v{60+i}, v{60+i}, v{60+i} dst_sel:DWORD dst_unused:UNUSED_PAD src0_sel:WORD_0 src1_sel:WORD_1")
        o(f"v_cmp_lt_u32 vcc, 32, v{60+i}")
        o(f"s_add_u32 s23, s22, {i*64*8192}")
        o("s_nop 0")
        o(f"v_cndmask_b32 v{44+4*i}, v{44+4*i}, v18, vcc")
        for c in range(1, 4):
            o(f"v_cndmask_b32 v{44+4*i+c}, v{44+4*i+c}, v20, vcc")
        o(f"buffer_store_dwordx4 {vr(44+4*i,4)}, v17, s[32:35], s23 offen {CFLG}")
    touch("P", 66, False)
    stamp(3); stamp_out(0, 0)
    o("s_endpgm")
    lab("K1_GEMM")
    o(f"s_sub_u32 s3, s2, {NPROD}")
    o("v_lshlrev_b32 v1, 4, v0")
    o("v_lshrrev_b32 v2, 4, v0")
    o("v_mul_u32_u24 v2, 320, v2")
    o("v_and_b32 v3, 15, v0")
    o("v_lshl_add_u32 v2, v3, 4, v2")
    o("v_lshrrev_b32 v4, 6, v0")
    o("v_and_b32 v5, 63, v0")
    o("v_readfirstlane_b32 s36, v4")
    o("s_waitcnt lgkmcnt(0)")
    o(f"s_cmp_eq_u32 s3, {NG}")
    o("s_cselect_b32 s22, 0, 32768")
    o("s_cselect_b32 s28, s12, s14"); o("s_cselect_b32 s29, s13, s15")
    o("s_mov_b32 s30, 32768"); o("s_mov_b32 s31, 0x00020000")
    srd(24, 16, 272 * 256)
    srd(32, 4, N * 256)
    o("s_lshr_b32 s37, s36, 2"); o("s_and_b32 s38, s36, 3")
    o("s_lshl_b32 s39, s3, 1"); o("s_add_u32 s39, s39, s37")
    o("s_lshl_b32 s40, s3, 14")
    o("v_and_b32 v6, 31, v5"); o("v_lshrrev_b32 v7, 5, v5")
    o("s_add_u32 s41, s40, 8192")
    o("buffer_load_dwordx4 v[48:51], v1, s[32:35], s40 offen")
    o("buffer_load_dwordx4 v[52:55], v1, s[32:35], s41 offen")
    for i in range(4):
        o(f"s_add_u32 s23, s22, {i*8192}")
        o(f"buffer_load_dwordx4 {vr(16+4*i,4)}, v1, s[24:27], s23 offen")
    for i in range(4):
        o(f"s_mov_b32 s23, {i*8192}")
        o(f"buffer_load_dwordx4 {vr(32+4*i,4)}, v1, s[28:31], s23 offen")
    o("v_lshrrev_b32 v12, 4, v0"); o("v_mul_u32_u24 v12, 272, v12"); o("v_lshl_add_u32 v12, v3, 4, v12")
    o("v_add_u32 v12, 81920, v12")
    o("s_lshl_b32 s41, s37, 5"); o("v_add_u32 v8, s41, v6"); o("v_mul_u32_u24 v8, 272, v8")
    o("v_lshl_add_u32 v8, v7, 4, v8"); o("v_add_u32 v8, 81920, v8")
    o("v_bfe_u32 v9, v5, 2, 2")
    o("v_lshl_add_u32 v9, v7, 3, v9")
    o("v_mul_u32_u24 v9, 320, v9")
    o("v_bfe_u32 v10, v5, 4, 1"); o("v_lshl_add_u32 v9, v10, 5, v9")
    o("v_and_b32 v10, 3, v5"); o("v_lshl_add_u32 v9, v10, 3, v9")
    o("s_lshl_b32 s41, s38, 6"); o("v_add_u32 v9, s41, v9")
    o("v_add_u32 v10, 40960, v9")
    o("v_add_u32 v11, 40960, v2")
    o("s_waitcnt vmcnt(9)"); o("ds_write_b128 v12, v[48:51]")
    o("s_waitcnt vmcnt(8)"); o(f"ds_write_b128 v12, v[52:55] offset:{32*272}")
    for i in range(4):
        o(f"s_waitcnt vmcnt({7-i})")
        o(f"ds_write_b128 v2, {vr(16+4*i,4)} offset:{i*10240}")
    o("s_waitcnt lgkmcnt(0)"); o("s_barrier")
    stamp(1)
    W1, W2 = 80, 112
    AQ, AH = 16, 144
    def frags(W, va, xs):
        for s in range(8):
            if xs: o(f"ds_read_b128 {vr(48+4*s,4)}, v8 offset:{32*s}")
            for u in range(2):
                o(f"ds_read_b64_tr_b16 {vr(W+4*s+2*u,2)}, {va} offset:{(16*s+4*u)*320}")
            n = 3 if xs else 2
            if s >= 3:
                o(f"s_waitcnt lgkmcnt({3*n})"); yield s - 3
        for s in range(5, 8):
            o(f"s_waitcnt lgkmcnt({(7-s)*n})"); yield s
    for s in frags(W1, "v9", True): mfma(AQ, 48+4*s, W1+4*s, None if s == 0 else AQ)
    for i in range(4):
        o(f"s_waitcnt vmcnt({3-i})")
        o(f"ds_write_b128 v11, {vr(32+4*i,4)} offset:{i*10240}")
    srd(44, 20, TABLE_BYTES, TABLE_OFF)
    o("s_lshl_b32 s40, s39, 14")
    o("s_lshl_b32 s41, s38, 7"); o("s_add_u32 s40, s40, s41")
    o(f"s_mov_b32 s42, {hex(NLOG2E)}"); o("s_mov_b32 s43, 0xffff0000")
    touch("G", 13, True)
    o("s_waitcnt lgkmcnt(0)"); o("s_barrier")
    stamp(2)
    for s in frags(W2, "v10", False):
        mfma(AH, 48+4*s, W2+4*s, None if s == 0 else AH)
        for v in range(2*s, 2*s+2): o(f"v_mul_f32 v{AQ+v}, s42, v{AQ+v}")
    o(f"s_cmp_eq_u32 s3, {NG}"); o("s_cbranch_scc1 K1_PACK")
    o("v_lshlrev_b32 v8, 11, v7"); o("v_lshl_add_u32 v8, v6, 2, v8")
    o("s_nop 5")
    for v in range(16):
        t = 32 + 2 * (v % 4)
        o(f"v_cvt_pk_bf16_f32 v{t}, v{AQ+v}, v{AH+v}")
        o(f"v_and_b32 v{t+1}, s43, v{t}")
        o(f"v_sub_f32 v{t}, v{t+1}, v{t}")
        o(f"v_add_f32 v{AH+v}, v{AH+v}, v{t}")
        o(f"v_cvt_pk_bf16_f32 v{AH+v}, v{AQ+v}, v{AH+v}")
        if v % 4 == 0: o(f"s_add_u32 s41, s40, {4096*(v//4)}")
        o(f"buffer_store_dword v{AH+v}, v8, s[44:47], s41 offen offset:{512*(v%4)} {TFLG}")
    stamp(3); stamp_out(0, 1)
    o("s_endpgm")
    lab("K1_PACK")
    srd(28, 20, 0x11000, WPACK_OFF)
    o("v_lshlrev_b32 v8, 4, v5")
    o("s_cmp_eq_u32 s37, 0"); o("s_cbranch_scc0 K1_PACKC")
    o("s_lshl_b32 s40, s38, 13")
    for s in range(8):
        if s % 4 == 0:
            o(f"s_add_u32 s41, s40, {s*1024}"); o(f"s_add_u32 s42, s40, {s*1024 + 32768}")
        o(f"buffer_store_dwordx4 {vr(W1+4*s,4)}, v8, s[28:31], s41 offen offset:{(s%4)*1024}")
        o(f"buffer_store_dwordx4 {vr(W2+4*s,4)}, v8, s[28:31], s42 offen offset:{(s%4)*1024}")
    o("s_endpgm")
    lab("K1_PACKC")
    o("v_lshlrev_b32 v12, 11, v7"); o("v_lshl_add_u32 v12, v6, 1, v12")
    o("s_lshl_b32 s40, s38, 6"); o("s_add_u32 s40, s40, 65536")
    for i in range(8):
        o(f"buffer_load_ushort v{16+i}, v12, s[24:27], s40 offen offset:{256*i}")
    o(f"s_mov_b32 s42, {hex(NLOG2E)}")
    o("s_waitcnt vmcnt(0)")
    for i in range(8):
        o(f"v_lshlrev_b32 v{16+i}, 16, v{16+i}")
        o(f"v_mul_f32 v{16+i}, s42, v{16+i}")
    for i in range(4):
        o(f"v_cvt_pk_bf16_f32 v{24+i}, v{16+2*i}, v{17+2*i}")
    o("s_lshl_b32 s40, s38, 10"); o("s_add_u32 s40, s40, 65536")
    o("buffer_store_dwordx4 v[24:27], v8, s[28:31], s40 offen")
    o("s_endpgm")
    if WARM:
        lab("K1_WARM")
        o("v_lshlrev_b32 v2, 4, v0")
        o(f"s_sub_u32 s3, s2, {NPROD + NG + 1}"); o(f"s_mul_i32 s52, s3, {XR*8192}"); o(f"s_add_u32 s52, s52, {NPROD*PR*8192}")
        o("s_waitcnt lgkmcnt(0)")
        srd(48, 6, E * 32)
        for i in range(XR):
            o(f"buffer_load_dwordx4 {vr(64+4*i,4)}, v2, s[48:51], s52 offen")
            o("s_add_u32 s52, s52, 8192")
        o("s_waitcnt vmcnt(0)")
        stamp_out(0, 2)
    lab("K1_END")
    o("s_endpgm")

CAP = 12
POOL = 0; POOL_BYTES = 32768
LUT = 32768; CNT = LUT + 4096; XS = CNT + 64
PX = XS + 40 * 272; UX = PX + 16384; EB = UX + 32768; K2_LDS = EB + 4 * CAP * 1024
ALT = "alt" in sys.argv
OFLG = ([a[2:].replace("_", " ") for a in sys.argv if a.startswith("of")] + [""])[0]
EFLG = ([a[2:].replace("_", " ") for a in sys.argv if a.startswith("ef")] + [""])[0]
GFLG = ([a[2:].replace("_", " ") for a in sys.argv if a.startswith("gf")] + [""])[0]
PFT = ([int(a[3:]) for a in sys.argv if a.startswith("pft")] + [0])[0]
PRIO = ([int(a[4:]) for a in sys.argv if a.startswith("prio")] + [0])[0]
def k2():
    kn = NAME + "_kernel"
    kstart(kn)
    o("s_cmp_ge_u32 s2, 256"); o("s_cbranch_scc1 K2_END")
    o("s_load_dwordx16 s[4:19], s[0:1], 0")
    o("s_load_dwordx2 s[20:21], s[0:1], 72")
    stamp_init()
    o("v_bfe_u32 v15, v0, 3, 6"); o("v_and_b32 v9, 7, v0"); o("v_lshlrev_b32 v9, 3, v9")
    o("v_lshl_add_u32 v9, v15, 7, v9"); o("v_lshrrev_b32 v4, 9, v0"); o("v_lshl_add_u32 v9, v4, 6, v9")
    o("v_lshrrev_b32 v4, 6, v0"); o("v_and_b32 v1, 63, v0")
    o("v_lshlrev_b32 v8, 4, v0")
    o("v_readfirstlane_b32 s3, v4")
    o("v_and_b32 v6, 31, v1"); o("v_lshrrev_b32 v7, 5, v1")
    o("s_lshr_b32 s60, s3, 2"); o("s_and_b32 s61, s3, 3")
    o("s_lshl_b32 s22, s2, 13")
    o("s_waitcnt lgkmcnt(0)")
    sW, sX, sE, sT, sO = 24, 28, 32, 36, 40
    srd(sW, 20, WPACK_OFF + 0x11000)
    EN = 12
    G = [80, 96, 112]; Z, ACC, RO, FR, EF, PF, CF = 16, 32, 48, 56, 68, 72, 76
    WF = [112 + 4*s for s in range(4)] + [56 + 4*s for s in range(4)]
    o(f"buffer_load_dwordx2 {vr(EN,2)}, v9, s[{sW}:{sW+3}], s22 offen")
    srd(sX, 4, N * 256)
    o("v_lshrrev_b32 v10, 4, v0"); o("v_and_b32 v11, 15, v0")
    o("v_lshlrev_b32 v5, 16, v10"); o("v_lshl_add_u32 v5, v11, 4, v5")
    o("s_lshl_b32 s62, s2, 8")
    o("s_cmp_ge_u32 s3, 10"); o("s_cbranch_scc1 K2_NOX")
    o(f"buffer_load_dwordx4 {vr(ACC,4)}, v5, s[{sX}:{sX+3}], s62 offen")
    lab("K2_NOX")
    o("v_lshlrev_b32 v14, 4, v1")
    o("s_lshl_b32 s63, s61, 10"); o(f"s_add_u32 s63, s63, {hex(WPACK_OFF+65536)}")
    o(f"buffer_load_dwordx4 {vr(CF,4)}, v14, s[{sW}:{sW+3}], s63 offen")
    def wload():
        o("s_cmp_ge_u32 s3, 8"); o("s_cbranch_scc1 K2_NOW")
        o("s_lshl_b32 s63, s3, 13"); o(f"s_add_u32 s63, s63, {hex(WPACK_OFF)}"); o("s_add_u32 s64, s63, 4096")
        for s in range(8):
            o(f"buffer_load_dwordx4 {vr(WF[s],4)}, v14, s[{sW}:{sW+3}], s{63 + s//4} offen offset:{(s%4)*1024}")
        lab("K2_NOW")
    WP = ([int(a[2:]) for a in sys.argv if a.startswith("wp")] + [0])[0]
    if WP == 0: wload()
    srd(sE, 6, E * 32); srd(sT, 20, TABLE_BYTES, TABLE_OFF); srd(sO, 18, N * 256)
    PW = ([int(a[2:]) for a in sys.argv if a.startswith("pw")] + [12])[0]
    if PFT:
        o(f"s_cmp_lt_u32 s3, {PW}"); o("s_cbranch_scc1 K2_NOPF")
        o("v_lshlrev_b32 v23, 7, v1")
        o("s_lshr_b32 s63, s2, 3"); o(f"s_mul_i32 s63, s63, {16-PW}"); o("s_add_u32 s63, s63, s3"); o(f"s_sub_u32 s63, s63, {PW}")
        o(f"s_mul_i32 s63, s63, {PFT*8192}")
        for i in range(PFT):
            o(f"buffer_load_dword v{G[2]}, v23, s[{sT}:{sT+3}], s63 offen")
            if i < PFT-1: o("s_add_u32 s63, s63, 8192")
        lab("K2_NOPF")
    for i in range(4):
        o(f"v_bfe_u32 v{16+i}, v0, {2*i}, 1"); o(f"v_bfe_u32 v20, v0, {2*i+1}, 1")
        o(f"v_lshl_or_b32 v{16+i}, v20, 16, v{16+i}")
        o(f"v_mul_u32_u24 v{16+i}, 0x3f80, v{16+i}")
    o("s_cmp_ge_u32 s3, 4"); o("s_cbranch_scc1 K2_NOLUT")
    o(f"ds_write_b128 v8, v[16:19] offset:{LUT}")
    lab("K2_NOLUT")
    o("s_lshl_b32 s63, s61, 7")
    o("v_lshlrev_b32 v2, 2, v6"); o("v_add_u32 v2, s63, v2")
    o("v_mov_b32 v3, v2")
    o(f"v_mul_u32_u24 v15, {CH}, v15")
    if 'xb' in sys.argv: o("s_lshl_b32 s63, s2, 9"); o("v_mov_b32 v15, s63")
    o("s_mov_b32 s72, 0")
    o("s_mov_b32 s73, 0")
    def pool_init():
        o("v_and_b32 v20, 16, v0"); o("v_cmp_eq_u32 vcc, 0, v20")
        o(f"v_mov_b32 v21, {hex(OOB)}"); o("v_mov_b32 v28, 0")
        o("v_cndmask_b32 v24, 0, v21, vcc")
        o("v_mov_b32 v29, 0"); o("v_mov_b32 v30, 0"); o("v_mov_b32 v31, 0")
        o("v_mov_b32 v25, v24"); o("v_mov_b32 v26, v24"); o("v_mov_b32 v27, v24")
        o(f"v_mov_b32 v20, {CNT}")
        for i in range(2):
            o(f"ds_write_b128 v8, v[24:27] offset:{POOL + i*16384}")
        o("ds_write_b128 v20, v[28:31]")
        o(f"v_add_u32 v21, {EB}, v8")
        for i in range(3): o(f"ds_write_b128 v21, v[28:31] offset:{i*16384}")
    if WP == 1: wload()
    pool_init()
    if WP == 2: wload()
    o("ds_write_b32 v20, v28 offset:16")
    o("v_mov_b32 v22, 1")
    o("v_mul_u32_u24 v5, 272, v10"); o("v_lshl_add_u32 v5, v11, 4, v5")
    o("s_mov_b32 s78, 1.0"); o("s_mov_b32 s79, 1.0")
    o("s_waitcnt lgkmcnt(0)"); o("s_barrier")
    if WP == 3: wload()
    o("s_cmp_ge_u32 s3, 8"); o("s_cbranch_scc1 K2_XW1")
    o("s_waitcnt vmcnt(9)"); o("s_branch K2_XW2")
    lab("K2_XW1"); o(f"s_waitcnt vmcnt({1+PFT})")
    if PFT: o(f"s_cmp_ge_u32 s3, {PW}"); o("s_cbranch_scc1 K2_B1"); o("s_waitcnt vmcnt(1)")
    o("s_cmp_ge_u32 s3, 10"); o("s_cbranch_scc1 K2_B1")
    lab("K2_XW2")
    o(f"ds_write_b128 v5, {vr(ACC,4)} offset:{XS}")
    o("s_mov_b64 exec, 1"); o("ds_add_u32 v20, v22 offset:16"); o("s_mov_b64 exec, -1")
    lab("K2_B1")
    if not ALT: stamp(1)
    o(f"v_cmp_eq_u32 vcc, -2, v{EN}")
    o("s_cbranch_vccz K2_COMPACT")
    o(f"v_mov_b32 v20, {CNT}"); o("v_mov_b32 v21, 1"); o("ds_write_b32 v20, v21 offset:8")
    lab("K2_COMPACT")
    o("s_setprio 3")
    o("v_and_b32 v20, 1, v0"); o("v_lshlrev_b32 v20, 4, v20"); o(f"v_mov_b32 v21, {hex(OOB)}")
    for i in range(2):
        e = EN + i
        o(f"v_cmp_gt_u32 s[{74+2*i}:{75+2*i}], -2, v{e}")
        o(f"v_lshrrev_b32 v{22+i}, 20, v{e}"); o(f"v_add_lshl_u32 v{22+i}, v{22+i}, v15, 5")
    for i in range(2):
        o(f"v_cndmask_b32 v{22+i}, v21, v{22+i}, s[{74+2*i}:{75+2*i}]")
    o("s_nop 0")
    for i in range(2):
        for p, qp in enumerate(["[0,0,2,2]", "[1,1,3,3]"]):
            o(f"v_add_u32_dpp v{G[1]+4*(2*i+p)}, v{22+i}, v20 quad_perm:{qp} row_mask:0xf bank_mask:0xf")
    def eload():
        for i in range(4):
            o(f"buffer_load_dwordx4 {vr(G[1]+4*i,4)}, v{G[1]+4*i}, s[{sE}:{sE+3}], 0 offen {EFLG}")
    EW = ([int(a[2:]) for a in sys.argv if a.startswith("ew")] + [8])[0]
    o(f"s_cmp_ge_u32 s3, {EW}"); o("s_cbranch_scc1 K2_ELATE")
    eload()
    lab("K2_ELATE")
    if not ALT: stamp(2)
    for i in range(2):
        e = EN + i
        o(f"v_and_b32 v{16+i}, 3, v{e}")
        o(f"v_lshlrev_b32 v{18+i}, 3, v{16+i}")
        o(f"v_bfm_b32 v{20+i}, 1, v{18+i}")
        o(f"v_cndmask_b32 v{20+i}, 0, v{20+i}, s[{74+2*i}:{75+2*i}]")
    o("v_add_u32 v22, v20, v21"); o("v_mov_b32 v23, v22")
    fill = []
    for i in range(2):
        e = EN + i
        fill += [f"v_bfe_u32 v{24+2*i}, v{e}, 6, 14", f"v_lshlrev_b32 v{24+2*i}, 9, v{24+2*i}",
                 f"v_bfe_u32 v{28+i}, v{e}, 2, 4", f"v_bfe_u32 v{30+i}, v{e}, 5, 1",
                 f"v_and_b32 v{25+2*i}, 3, v{28+i}", f"v_lshl_or_b32 v{25+2*i}, v{30+i}, 2, v{25+2*i}"]
    dpp = ["row_shr:1", "row_shr:2", "row_shr:4", "row_shr:8"]
    for j, d in enumerate(dpp):
        o(fill[2*j]); o(fill[2*j+1])
        o(f"v_add_u32_dpp v23, v23, v23 {d} row_mask:0xf bank_mask:0xf bound_ctrl:0")
    o(fill[8]); o(fill[9])
    o("v_add_u32_dpp v23, v23, v23 row_bcast:15 row_mask:0xa bank_mask:0xf")
    o(fill[10]); o(fill[11])
    o("v_add_u32_dpp v23, v23, v23 row_bcast:31 row_mask:0xc bank_mask:0xf")
    o("s_nop 0")
    o("v_readlane_b32 s64, v23, 63")
    o("v_sub_u32 v23, v23, v22")
    o("s_and_b32 s65, s64, 0xff"); o("s_bfe_u32 s66, s64, 0x80008"); o("s_lshl_b32 s66, s66, 16"); o("s_or_b32 s65, s65, s66")
    o("s_bfe_u32 s66, s64, 0x80010"); o("s_lshr_b32 s67, s64, 24"); o("s_lshl_b32 s67, s67, 16"); o("s_or_b32 s66, s66, s67")
    o("v_mov_b32 v48, s65"); o("v_mov_b32 v49, s66"); o(f"v_mov_b32 v50, {CNT}")
    o("s_mov_b64 exec, 1")
    o("ds_add_rtn_u64 v[48:49], v50, v[48:49]")
    o("s_mov_b64 exec, -1")
    o("v_add_u32 v22, v23, v20")
    o("v_bfe_u32 v20, v23, v18, 8"); o("v_bfe_u32 v21, v22, v19, 8")
    for i in range(2):
        o(f"v_bfm_b32 v{30+i}, 1, v{25+2*i}")
        o(f"v_bfe_u32 v{22+i}, v{28+i}, 2, 1"); o(f"v_lshlrev_b32 v{22+i}, 7, v{22+i}")
        o(f"v_lshlrev_b32 v{18+i}, 1, v{18+i}")
        o(f"v_mul_u32_u24 v{16+i}, {CAP*512}, v{16+i}")
    o(f"s_movk_i32 s68, {CAP*32}")
    o("s_waitcnt lgkmcnt(0)")
    o("v_readfirstlane_b32 s64, v48"); o("v_readfirstlane_b32 s65, v49")
    o("s_nop 1")
    for i in range(2):
        o(f"v_lshrrev_b64 v[48:49], v{18+i}, s[64:65]")
        o("v_and_b32 v48, 0xffff, v48"); o(f"v_add_u32 v48, v48, v{20+i}")
        o("v_cmp_gt_u32 vcc, s68, v48")
        o("v_lshrrev_b32 v49, 5, v48"); o("v_and_b32 v48, 31, v48")
        o(f"v_lshl_add_u32 v49, v49, 9, v{16+i}")
        o("v_lshl_add_u32 v50, v48, 2, v49")
        o(f"v_add_u32 v51, v50, v{22+i}")
        o("v_lshrrev_b32 v52, 3, v48"); o("v_and_b32 v53, 3, v48")
        o("v_lshl_or_b32 v52, v52, 2, v53"); o("v_lshlrev_b32 v52, v52, v0") if False else None
        o("v_lshl_or_b32 v52, v52, 2, v53") if False else None
        o("v_add_u32 v52, 8, v52"); o("v_bfm_b32 v52, 1, v52")
        o("v_bfe_u32 v53, v48, 2, 1"); o("v_lshl_add_u32 v53, v53, 7, v49")
        o(f"v_lshl_add_u32 v53, v{28+i}, 2, v53")
        o(f"v_bfrev_b32 v{EN+i}, 1")
        o("v_lshlrev_b32 v48, 4, v48")
        o(f"s_and_b64 exec, vcc, s[{74+2*i}:{75+2*i}]")
        o(f"v_lshl_add_u32 v{EN+i}, v49, 1, v48")
        o(f"ds_write_b32 v50, v{24+2*i}")
        o(f"ds_or_b32 v51, v{30+i} offset:256")
        o("ds_or_b32 v53, v52 offset:256")
        o("s_mov_b64 exec, -1")
    o(f"v_mov_b32 v17, {CNT}"); o("v_mov_b32 v16, 0x10000")
    o("s_mov_b64 exec, 1")
    o("ds_add_u32 v17, v16 offset:12")
    o("s_mov_b64 exec, -1")
    if not ALT: stamp(3)
    o(f"s_cmp_lt_u32 s3, {EW}"); o("s_cbranch_scc1 K2_EEARLY")
    eload()
    lab("K2_EEARLY")
    o("s_setprio 0")
    o("s_cmp_lg_u32 s72, 0"); o("s_cbranch_scc1 K2_B2")
    o("s_cmp_ge_u32 s3, 8"); o("s_cbranch_scc1 K2_B2")
    o("v_and_b32 v9, 15, v1"); o("v_min_u32 v9, 9, v9"); o("v_bfe_u32 v73, v1, 4, 1")
    o("v_lshl_add_u32 v9, v9, 2, v73"); o("v_mul_u32_u24 v9, 272, v9"); o("v_lshl_add_u32 v9, v7, 4, v9")
    lab("K2_SPINX")
    o("ds_read_b32 v16, v17 offset:16")
    o("s_waitcnt lgkmcnt(0)")
    o("v_readfirstlane_b32 s70, v16")
    o("s_cmp_lg_u32 s70, 10"); o("s_cbranch_scc1 K2_SPINX")
    XB = [G[0], G[0]+4, G[0]+8, G[0]+12, RO, RO+4, PF]
    def xrd(i): o(f"ds_read_b128 {vr(XB[i%7],4)}, v9 offset:{XS + 32*(i>>1) + 544*(i&1)}")
    for i in range(6): xrd(i)
    o("s_waitcnt vmcnt(4)")
    for i in range(16):
        if i + 6 < 16: xrd(i + 6)
        o(f"s_waitcnt lgkmcnt({min(6, 15-i)})")
        D = ACC if i & 1 else Z
        mfma(D, XB[i%7], WF[i>>1], None if i < 2 else D)
    o("s_cmp_ge_u32 s3, 4"); o("s_cbranch_scc1 K2_UOUT")
    o(f"s_mov_b32 s65, {hex(NLOG2E)}")
    o("s_lshl_b32 s70, s61, 10"); o("v_add_u32 v72, s70, v14")
    o("s_nop 7")
    for v in range(32): o(f"v_mul_f32 v{Z+v}, s65, v{Z+v}")
    for i in range(16): o(f"v_cvt_pk_bf16_f32 v{Z+i}, v{Z+2*i}, v{Z+2*i+1}")
    for l in range(4): o(f"ds_write_b128 v72, {vr(Z+4*l,4)} offset:{PX + l*4096}")
    o("s_branch K2_B2")
    lab("K2_UOUT")
    o("s_lshl_b32 s70, s61, 11"); o(f"s_add_u32 s70, s70, {UX}"); o("v_add_u32 v72, s70, v14")
    o("s_nop 8")
    for l in range(4):
        for hf in range(2): o(f"ds_write_b128 v72, {vr(Z+8*l+4*hf,4)} offset:{l*8192 + hf*1024}")
    lab("K2_B2")
    if not ALT: stamp(4)
    o(f"v_mov_b32 v48, {CNT}")
    o(f"s_mul_i32 s66, s60, {CAP*512}")
    o("v_lshl_add_u32 v4, v7, 4, s66")
    o("v_lshl_add_u32 v5, v1, 2, s66")
    o(f"s_lshl_b32 s66, s66, 1"); o(f"s_add_u32 s66, s66, {EB}")
    o("v_add_u32 v10, s66, v14")
    lab("K2_SPINA")
    o("ds_read_b128 v[52:55], v48")
    o("s_waitcnt lgkmcnt(0)")
    o("v_readfirstlane_b32 s70, v55")
    o("s_cmp_lt_u32 s70, 0x100000"); o("s_cbranch_scc1 K2_SPINA")
    o("v_readfirstlane_b32 s64, v52"); o("v_readfirstlane_b32 s65, v53"); o("v_readfirstlane_b32 s69, v54")
    o("s_and_b32 s70, s64, 0xffff"); o("s_lshr_b32 s71, s64, 16"); o("s_max_u32 s70, s70, s71")
    o("s_and_b32 s71, s65, 0xffff"); o("s_max_u32 s70, s70, s71"); o("s_lshr_b32 s71, s65, 16"); o("s_max_u32 s70, s70, s71")
    o("s_cmp_gt_u32 s70, s68"); o("s_cselect_b32 s69, 1, s69")
    o("s_cmp_lg_u32 s69, 0"); o("s_cbranch_scc1 K2_BAD")
    o("s_lshl_b32 s70, s60, 4"); o("s_lshr_b64 s[64:65], s[64:65], s70"); o("s_and_b32 s64, s64, 0xffff")
    o("s_add_u32 s64, s64, 31"); o("s_lshr_b32 s64, s64, 5")
    if ALT: stamp(1)
    if PRIO and PRIO < 4: o("s_setprio 3")
    if PRIO in (4, 5, 7, 8): o("s_setprio 2")
    if PRIO == 6: o("s_setprio 3")
    MK = [11, 12, 13]
    def issue_a():
        for c in range(2): o(f"ds_read_b128 {vr(RO+4*c,4)}, v4 offset:{32*c}")
    def issue_b(k, first):
        for hf in range(2):
            if hf == 1:
                for c in range(2):
                    o(f"ds_read_b128 {vr(RO+4*c,4)}, v4 offset:{32*(2+c)}")
                o(f"ds_read_b32 v{MK[k]}, v5 offset:256")
            for c in range(2):
                if hf == 1 or first: o(f"s_waitcnt lgkmcnt({1-c+hf})")
                for i in range(0, 4, 2):
                    o(f"v_lshl_add_u64 {vr(RO+4*c+i,2)}, {vr(RO+4*c+i,2)}, 0, v[2:3]")
                for i in range(0 if 'nold' in sys.argv else 4):
                    o(f"buffer_load_dword v{G[k]+8*hf+4*c+i}, v{RO+4*c+i}, s[{sT}:{sT+3}], 0 offen {GFLG}")
        o("v_add_u32 v4, 512, v4"); o("v_add_u32 v5, 512, v5")
    ER = ([int(a[2:]) for a in sys.argv if a.startswith("er")] + [2])[0]
    o("v_and_b32 v16, 1, v0"); o("v_lshlrev_b32 v16, 9, v16"); o(f"v_add_u32 v16, {EB}, v16")
    o(f"v_mov_b32 v17, {CNT}")
    for i in range(2):
        for p, qp in enumerate(["[0,0,2,2]", "[1,1,3,3]"]):
            o(f"v_add_u32_dpp v{18+2*i+p}, v{EN+i}, v16 quad_perm:{qp} row_mask:0xf bank_mask:0xf")
    o("v_mov_b32 v16, 1")
    o(f"s_cmp_lt_u32 s60, {ER}"); o("s_cselect_b32 s69, s64, 0")
    o("s_cmp_eq_u32 s69, 0"); o("s_cbranch_scc1 K2_EW0")
    lab("K2_I0")
    issue_a(); issue_b(0, True)
    if ALT: stamp(2)
    o("s_cmp_eq_u32 s69, 0"); o("s_cbranch_scc1 K2_I1")
    o("s_waitcnt vmcnt(16)"); o("s_branch K2_EW")
    lab("K2_EW0")
    o("s_waitcnt vmcnt(0)")
    lab("K2_EW")
    for i in range(4):
        o(f"v_cmpx_le_i32 vcc, 0, v{18+i}")
        o(f"ds_write_b128 v{18+i}, {vr(G[1]+4*i,4)}")
        o("s_mov_b64 exec, -1")
    o("s_mov_b64 exec, 1")
    o("s_waitcnt lgkmcnt(0)")
    o("ds_add_u32 v17, v16 offset:12")
    o("s_mov_b64 exec, -1")
    if ALT: stamp(3)
    o("s_cmp_lg_u32 s69, s64"); o("s_cbranch_scc1 K2_I0")
    lab("K2_I1")
    if PRIO in (2, 3): o("s_setprio 2")
    if PRIO == 4: o("s_setprio 1")
    o("s_cmp_lt_u32 s64, 2"); o("s_cbranch_scc1 K2_SPIN")
    issue_a(); issue_b(1, True)
    lab("K2_SPIN")
    if PRIO in (1, 2): o("s_setprio 1")
    lab("K2_SPINE")
    o("ds_read_b32 v16, v17 offset:12")
    o("s_waitcnt lgkmcnt(0)")
    o("v_readfirstlane_b32 s70, v16")
    o("s_cmp_lg_u32 s70, 0x100010"); o("s_cbranch_scc1 K2_SPINE")
    o("s_cmp_lg_u32 s73, 0"); o("s_cbranch_scc1 K2_LOOP0")
    o("s_mov_b32 s73, 1")
    o("s_lshl_b32 s70, s3, 10"); o("v_add_u32 v18, s70, v14")
    o(f"ds_read_b128 {vr(PF,4)}, v18 offset:{PX}")
    o("s_lshl_b32 s70, s3, 11"); o(f"s_add_u32 s70, s70, {UX}"); o("v_add_u32 v18, s70, v14")
    o(f"ds_read_b128 {vr(ACC,4)}, v18"); o(f"ds_read_b128 {vr(ACC+4,4)}, v18 offset:1024")
    for v in range(8, 16): o(f"v_mov_b32 v{ACC+v}, 0")
    if ALT: stamp(4)
    PK = "nopk" not in sys.argv
    def body(k):
        g = G[k]
        lab(f"K2_LOOP{k}")
        o("s_cmp_eq_u32 s64, 0"); o("s_cbranch_scc1 K2_BATCH_DONE")
        o(f"ds_read_b128 {vr(EF,4)}, v10")
        for i in range(3):
            o(f"v_lshlrev_b32_sdwa v9, 4, v{MK[k]} dst_sel:DWORD dst_unused:UNUSED_PAD src0_sel:DWORD src1_sel:BYTE_{i}")
            if 'nolut' not in sys.argv: o(f"ds_read_b128 {vr(FR+4*i,4)}, v9 offset:{LUT}")
        issue_a()
        o("v_add_u32 v10, 1024, v10")
        o("s_cmp_eq_u32 s64, 1"); o(f"s_cbranch_scc1 K2_W{k}")
        o("s_waitcnt vmcnt(16)")
        lab(f"K2_C{k}")
        for v in range(0, 16, 2): o(f"v_lshlrev_b64 {vr(Z+v,2)}, 16, {vr(g+v,2)}")
        o("s_sub_u32 s64, s64, 1")
        o("s_waitcnt lgkmcnt(0)")
        mfma(Z, EF, CF, Z); mfma(Z, FR, PF, Z)
        o("s_cmp_lt_u32 s64, 2"); o(f"s_cbranch_scc1 K2_N{k}")
        issue_b((k + 2) % 3, False)
        lab(f"K2_X{k}")
        for v in range(0 if 'notr' in sys.argv else 16): o(f"v_exp_f32 v{Z+v}, v{Z+v}")
        if PK:
            for v in range(0, 16, 2): o(f"v_pk_add_f32 {vr(Z+v,2)}, {vr(Z+v,2)}, s[78:79]")
        else:
            for v in range(16): o(f"v_add_f32 v{Z+v}, 1.0, v{Z+v}")
        for v in range(0 if 'notr' in sys.argv else 16): o(f"v_rcp_f32 v{Z+v}, v{Z+v}")
        if PK:
            for v in range(0, 16, 2): o(f"v_pk_mul_f32 {vr(Z+v,2)}, {vr(Z+v,2)}, {vr(g+v,2)}")
        else:
            for v in range(16): o(f"v_mul_f32 v{Z+v}, v{Z+v}, v{g+v}")
        for i in range(8): o(f"v_cvt_pk_bf16_f32 v{Z+i}, v{Z+2*i}, v{Z+2*i+1}")
        o("s_waitcnt lgkmcnt(0)")
        o("s_nop 0")
        mfma(ACC, FR+4, Z, ACC); mfma(ACC, FR+8, Z+4, ACC)
        if PRIO in (1, 2) and k == 0: o("s_setprio 0")
        if PRIO == 4:
            o("s_cmp_gt_u32 s64, 2"); o(f"s_cbranch_scc1 K2_PR{k}"); o("s_setprio 0")
            lab(f"K2_PR{k}")
        if PRIO == 6: o("s_setprio 2")
        if PRIO == 7:
            o("s_setprio 1"); o("s_cmp_gt_u32 s64, 2"); o(f"s_cbranch_scc1 K2_PR{k}"); o("s_setprio 0")
            lab(f"K2_PR{k}")
        if PRIO == 8:
            o("s_cmp_gt_u32 s64, 4"); o(f"s_cbranch_scc1 K2_PR{k}"); o("s_setprio 1")
            o("s_cmp_gt_u32 s64, 2"); o(f"s_cbranch_scc1 K2_PR{k}"); o("s_setprio 0")
            lab(f"K2_PR{k}")
        if PRIO in (3, 5, 6):
            o("s_cmp_gt_u32 s64, 3"); o(f"s_cbranch_scc1 K2_PR{k}"); o("s_setprio 1")
            o("s_cmp_gt_u32 s64, 1"); o(f"s_cbranch_scc1 K2_PR{k}"); o("s_setprio 0")
            lab(f"K2_PR{k}")
    for k in range(3): body(k)
    o("s_branch K2_LOOP0")
    for k in range(3):
        lab(f"K2_W{k}"); o("s_waitcnt vmcnt(0)"); o(f"s_branch K2_C{k}")
        lab(f"K2_N{k}"); o("s_nop 10"); o(f"s_branch K2_X{k}")
    lab("K2_BAD")
    o("s_cmp_eq_u32 s72, 0"); o("s_cselect_b32 s58, 0, s58"); o("s_movk_i32 s59, 2048"); o("s_cselect_b32 s59, s59, 256")
    o("s_mov_b32 s72, 1"); o("s_branch K2_SCAN")
    lab("K2_BATCH_DONE")
    o("s_cmp_eq_u32 s72, 0"); o("s_cbranch_scc1 K2_EPI")
    o("s_add_u32 s58, s58, s59"); o("s_movk_i32 s59, 2048")
    o(f"s_cmp_ge_u32 s58, {E}"); o("s_cbranch_scc1 K2_EPI")
    lab("K2_SCAN")
    o("s_waitcnt vmcnt(0) lgkmcnt(0)")
    srd(44, 8, E * 4); srd(48, 10, E * 4)
    o("s_lshl_b32 s57, s58, 2"); o("v_lshlrev_b32 v9, 3, v0")
    o("buffer_load_dwordx2 v[48:49], v9, s[48:51], s57 offen")
    o("buffer_load_dwordx2 v[50:51], v9, s[44:47], s57 offen")
    o("s_barrier")
    pool_init()
    o("v_mov_b32 v15, s58")
    o(f"s_sub_u32 s57, {E}, s58"); o("s_min_u32 s57, s57, s59")
    o("s_waitcnt vmcnt(0)")
    for i in range(2):
        o(f"v_lshl_add_u32 v20, v0, 1, {i}")
        o(f"v_and_b32 v21, 0xff, v{48+i}")
        o("v_cmp_eq_u32 vcc, s2, v21"); o("v_cmp_gt_u32 s[66:67], s57, v20")
        o("s_and_b64 vcc, vcc, s[66:67]")
        o(f"v_lshrrev_b32 v21, 8, v{48+i}")
        o(f"v_lshl_or_b32 v21, v{50+i}, 6, v21"); o("v_lshl_or_b32 v21, v20, 20, v21")
        o(f"v_cndmask_b32 v{EN+i}, -1, v21, vcc")
    o("s_waitcnt lgkmcnt(0)"); o("s_barrier")
    o("s_branch K2_COMPACT")
    lab("K2_EPI")
    o("s_waitcnt vmcnt(0) lgkmcnt(0)")
    o(f"s_mov_b32 s65, {hex(NLOG2E)}")
    o("v_lshlrev_b32 v9, 20, v7"); o("v_lshl_add_u32 v9, v6, 1, v9")
    o("s_lshl_b32 s63, s61, 6"); o("s_add_u32 s62, s62, s63"); o("s_lshl_b32 s63, s60, 16"); o("s_add_u32 s62, s62, s63")
    o("s_nop 7")
    for v in range(6): o(f"v_mul_f32 v{Z+v}, s65, v{ACC+v}")
    for v in range(6): o(f"v_exp_f32 v{Z+v}, v{Z+v}")
    for v in range(6): o(f"v_add_f32 v{Z+v}, 1.0, v{Z+v}")
    for v in range(6): o(f"v_rcp_f32 v{Z+v}, v{Z+v}")
    for v in range(6): o(f"v_mul_f32 v{Z+v}, v{Z+v}, v{ACC+v}")
    for v in range(6): o(f"v_cvt_pk_bf16_f32 v{Z+v}, v{Z+v}, v{Z+v}")
    for v in range(6):
        if v == 4: o("s_mov_b32 exec_hi, 0")
        o(f"s_add_u32 s63, s62, {((v&3) + 8*(v>>2)) << 18}")
        o(f"buffer_store_short v{Z+v}, v9, s[{sO}:{sO+3}], s63 offen {OFLG}")
    o("s_lshr_b32 s89, s3, 2") if STAMPS else None
    stamp_out(1, "s89")
    lab("K2_END")
    o("s_endpgm")

header(); k1(); k2()
L.append('.section .rodata,"a"')
kdesc("prep_kernel", 160, 102 if STAMPS else 56); kdesc(NAME + "_kernel", 128, 102 if STAMPS else 80)
out = sys.argv[1] if len(sys.argv) > 1 else "cdna_kernels/%s.s" % NAME
open(out, "w").write("\n".join(x for x in L if x is not None) + "\n")
```

```python
import sys
NAME = "standalone__edge_featured_mpnn_egc__graph"
N, E = 10000, 160000
NPROD, CH = 64, 2500
CELLS_OFF, TABLE_OFF, WPACK_OFF = 0, 0x200000, 0x800000
TABLE_BYTES = N * 512
NG = 157
NLOG2E = 0xBFB8AA3B
OOB = 0x7FFFF000
L = []
def o(s): L.append("    " + s)
def lab(s): L.append(s + ":")
def srd(d, b, nbytes, off=0):
    if off:
        o(f"s_add_u32 s{d}, s{b}, {hex(off)}"); o(f"s_addc_u32 s{d+1}, s{b+1}, 0")
    else:
        o(f"s_mov_b32 s{d}, s{b}"); o(f"s_mov_b32 s{d+1}, s{b+1}")
    o(f"s_mov_b32 s{d+2}, {hex(nbytes)}"); o(f"s_mov_b32 s{d+3}, 0x00020000")
def vr(a, n): return f"v[{a}:{a+n-1}]"
def mfma(d, a, b, c):
    cs = "0" if c is None else vr(c, 16)
    o(f"v_mfma_f32_32x32x16_bf16 {vr(d,16)}, {vr(a,4)}, {vr(b,4)}, {cs}")

STAMPS = "stamps" in sys.argv
def stamp(i):
    if STAMPS: o(f"s_memrealtime s[{90+2*i}:{91+2*i}]")
def stamp_init():
    if STAMPS:
        for i in range(1, 6): o(f"s_mov_b32 s{90+2*i}, 0")
        o("v_lshrrev_b32 v255, 6, v0") if False else None
        stamp(0)
def stamp_out(kid, role):
    if not STAMPS: return
    o("s_waitcnt vmcnt(0)")
    stamp(5)
    o("s_waitcnt lgkmcnt(0)")
    o("s_mov_b64 exec, -1")
    o("v_lshrrev_b32 v1, 6, v0"); o("v_and_b32 v2, 63, v0")
    o("v_lshlrev_b32 v1, 5, v1"); o("v_lshl_add_u32 v1, v2, 2, v1")
    for i in range(6): o(f"v_writelane_b32 v3, s{90+2*i}, {i}")
    o(f"s_mov_b32 s4, {role}"); o("v_writelane_b32 v3, s4, 6")
    o("s_mov_b32 s4, 0xC0FFEE"); o("v_writelane_b32 v3, s4, 7")
    if "dbg" in sys.argv:
        wg, slot, msk = {(0,0): (5, 12, 0xf), (0,1): (100, 0, 0x3f), (1,0): (77, 6, 0x3f)}[(kid, role)]
        o("v_readfirstlane_b32 s5, v1"); o("s_load_dwordx2 s[12:13], s[0:1], 64")
        o("s_waitcnt lgkmcnt(0)")
        o(f"s_add_u32 s8, s12, {512*(1-kid)}"); o("s_addc_u32 s9, s13, 0"); o("s_mov_b32 s10, 256"); o("s_mov_b32 s11, 0x00020000")
        o(f"s_xor_b32 s4, s2, {wg}"); o("s_or_b32 s4, s4, s5"); o("s_cmp_eq_u32 s4, 0"); o(f"s_cbranch_scc0 DBG{kid}{role}")
        o(f"v_lshlrev_b32 v1, 2, v2"); o(f"s_mov_b64 exec, {msk}")
        o(f"buffer_store_dword v3, v1, s[8:11], 0 offen offset:{4*slot}")
        lab(f"DBG{kid}{role}")
        return
    srd(8, 20, 0x100000, 0x4000000 + kid * 512 * 512)
    o("s_lshl_b32 s4, s2, 9")
    o("s_mov_b64 exec, 0xff")
    o("buffer_store_dword v3, v1, s[8:11], s4 offen")

def header():
    src = open("cdna_kernels/%s.s.ref" % NAME).read().split("\n")
    for l in src:
        if l.startswith("; Override"): break
        L.append(l)
    L.append("; @launch kernel=prep_kernel grid=(%d,1,1) block=(512,1,1) lds=%d" % (NPROD + NG + 1 + globals().get("NXW", 0), K1_LDS))
    L.append("; @launch kernel=%s_kernel grid=(256,1,1) block=(1024,1,1) lds=%d" % (NAME, K2_LDS))
    L.append('.amdgcn_target "amdgcn-amd-amdhsa--gfx950"')
    L.append(".text")

def kstart(n):
    L.append(f".globl {n}"); L.append(".p2align 8"); L.append(f".type {n},@function"); lab(n)

def kdesc(n, vg, sg):
    L.append(".p2align 6")
    L.append(f".amdhsa_kernel {n}")
    for k, v in [("next_free_vgpr", vg), ("next_free_sgpr", sg), ("accum_offset", (vg + 3) // 4 * 4),
                 ("group_segment_fixed_size", 0), ("kernarg_size", 80), ("user_sgpr_count", 2),
                 ("user_sgpr_kernarg_segment_ptr", 1), ("system_sgpr_workgroup_id_x", 1)]:
        L.append(f"  .amdhsa_{k} {v}")
    L.append(".end_amdhsa_kernel")

NPF = 0
TFLG = ([a[2:].replace("_", " ") for a in sys.argv if a.startswith("tf")] + [""])[0]
CFLG = ([a[2:].replace("_", " ") for a in sys.argv if a.startswith("cf")] + [""])[0]
WARM = "nowarm" not in sys.argv
NXW = 34 if WARM else 0
XR = ([int(a[2:]) for a in sys.argv if a.startswith('xr')] + [11])[0]
PR = ([int(a[2:]) for a in sys.argv if a.startswith('pq')] + [4])[0]
PDO = 'pdo' in sys.argv
K1_LDS = 81920 + 64 * 272
def prefetch_e(va="v1"):
    if not NPF: return
    srd(48, 6, E * 32)
    o("s_mul_i32 s52, s2, 24576")
    for i in range(3):
        o(f"buffer_load_dwordx4 {vr(144+4*i,4)}, {va}, s[48:51], s52 offen")
        if i < 2: o("s_add_u32 s52, s52, 8192")
TLB = "tlb" in sys.argv
def touch(tag, vt, table):
    if not TLB: return
    o(f"v_readfirstlane_b32 s52, v0"); o("s_cmp_lg_u32 s52, 0"); o(f"s_cbranch_scc1 K1_T{tag}")
    srd(48, 6, E * 32)
    o(f"v_mul_u32_u24 v{vt}, 80000, v0")
    o(f"buffer_load_dword v{vt+1}, v{vt}, s[48:51], 0 offen")
    srd(48, 18, N * 256)
    o(f"v_lshrrev_b32 v{vt}, 1, v{vt}")
    o(f"buffer_load_dword v{vt+1}, v{vt}, s[48:51], 0 offen")
    if table:
        o("s_mov_b64 exec, 1")
        o(f"buffer_load_dword v{vt+1}, v{vt}, s[44:47], s40 offen")
        o("s_mov_b64 exec, -1")
    lab(f"K1_T{tag}")
def k1():
    kstart("prep_kernel")
    o(f"s_cmp_ge_u32 s2, {NPROD + NG + 1 + NXW}"); o("s_cbranch_scc1 K1_END")
    o("s_load_dwordx16 s[4:19], s[0:1], 0")
    o("s_load_dwordx2 s[20:21], s[0:1], 72")
    stamp_init()
    if WARM: o(f"s_cmp_ge_u32 s2, {NPROD + NG + 1}"); o("s_cbranch_scc1 K1_WARM")
    o(f"s_cmp_ge_u32 s2, {NPROD}"); o("s_cbranch_scc1 K1_GEMM")
    o("v_lshlrev_b32 v1, 2, v0")
    o(f"s_mul_i32 s22, s2, {CH*4}")
    o("v_mov_b32 v20, -1"); o("v_mov_b32 v21, -1"); o("v_mov_b32 v22, -1"); o("v_mov_b32 v23, -1")
    o("v_lshlrev_b32 v2, 4, v0")
    o("v_mov_b32 v24, 0")
    o("s_waitcnt lgkmcnt(0)")
    srd(24, 8, E * 4); srd(28, 10, E * 4); srd(32, 20, 0x200000, CELLS_OFF)
    for i in range(5):
        o(f"s_add_u32 s23, s22, {i*2048}")
        o(f"buffer_load_dword v{4+i}, v1, s[28:31], s23 offen")
        o(f"buffer_load_dword v{10+i}, v1, s[24:27], s23 offen")
    o("v_lshlrev_b32 v19, 2, v1"); prefetch_e("v19")
    for i in range(4):
        o(f"ds_write_b128 v2, v[20:23] offset:{i*8192}")
    o("ds_write_b32 v1, v24 offset:32768")
    o("v_mov_b32 v25, 0x10000"); o(f"s_movk_i32 s38, {N//2}")
    o("s_waitcnt lgkmcnt(0)"); o("s_barrier")
    o(f"v_cmp_gt_u32 s[36:37], {CH - 2048}, v0") if False else None
    o(f"s_movk_i32 s23, {CH - 2048}")
    o("v_cmp_gt_u32 s[36:37], s23, v0")
    for i in range(5):
        o(f"s_waitcnt vmcnt({2*(4-i)+NPF})")
        o(f"v_cmp_le_u32 s[{40+2*i}:{41+2*i}], s38, v{10+i}")
        if i == 4: o("s_mov_b64 exec, s[36:37]")
        o(f"v_and_b32 v{26+i}, 0xff, v{4+i}")
        o(f"v_lshlrev_b32 v16, 2, v{26+i}")
        o(f"v_cndmask_b32 v17, 1, v25, s[{40+2*i}:{41+2*i}]")
        o(f"ds_add_rtn_u32 v{32+i}, v16, v17 offset:32768")
    o("s_mov_b64 exec, -1")
    o(f"s_waitcnt vmcnt({NPF})")
    stamp(1)
    for i in range(5):
        o(f"v_lshrrev_b32 v{4+i}, 8, v{4+i}")
        o(f"v_lshl_or_b32 v{4+i}, v{10+i}, 6, v{4+i}")
        o(f"v_add_u32 v16, {i*512}, v0")
        o(f"v_lshl_or_b32 v{4+i}, v16, 20, v{4+i}")
    for i in range(5):
        o(f"s_waitcnt lgkmcnt({4-i})") if i == 0 or True else None
        o(f"v_and_b32 v16, 0xffff, v{32+i}"); o(f"v_lshrrev_b32 v17, 16, v{32+i}"); o("v_sub_u32 v17, 31, v17")
        o(f"v_cndmask_b32 v16, v16, v17, s[{40+2*i}:{41+2*i}]")
        o(f"v_cmp_gt_u32 vcc, 32, v16")
        o(f"v_lshlrev_b32 v16, 2, v16")
        o(f"v_lshl_add_u32 v{38+i}, v{26+i}, 7, v16")
        if i == 4: o("s_and_b64 vcc, vcc, s[36:37]")
        o(f"s_mov_b64 s[{40+2*i}:{41+2*i}], vcc")
    for i in range(5):
        o(f"s_mov_b64 exec, s[{40+2*i}:{41+2*i}]")
        o(f"ds_write_b32 v{38+i}, v{4+i}")
    o("s_mov_b64 exec, -1")
    o("s_waitcnt lgkmcnt(0)"); o("s_barrier")
    if WARM and not PDO and PR:
        srd(48, 6, E * 32); o(f"s_mul_i32 s52, s2, {PR*8192}")
        for i in range(PR):
            o(f"buffer_load_dwordx4 {vr(64+4*i,4)}, v2, s[48:51], s52 offen")
            o("s_add_u32 s52, s52, 8192")
    stamp(2)
    o("v_lshrrev_b32 v3, 3, v0")
    o("v_lshlrev_b32 v16, 2, v3")
    for i in range(4):
        o(f"ds_read_b128 {vr(44+4*i,4)}, v2 offset:{i*8192}")
        o(f"ds_read_b32 v{60+i}, v16 offset:{32768 + i*256}")
    o("v_and_b32 v17, 7, v0")
    o("v_cmp_eq_u32 vcc, 0, v17")
    o("v_lshlrev_b32 v17, 4, v17")
    o("v_lshl_add_u32 v17, v3, 13, v17")
    o("v_cndmask_b32 v18, -1, -2, vcc") if False else None
    o("v_mov_b32 v18, -2")
    o("v_cndmask_b32 v18, -1, v18, vcc")
    o("s_lshl_b32 s22, s2, 7")
    for i in range(4):
        o(f"s_waitcnt lgkmcnt({2*(3-i)})")
        o(f"v_add_u32_sdwa v{60+i}, v{60+i}, v{60+i} dst_sel:DWORD dst_unused:UNUSED_PAD src0_sel:WORD_0 src1_sel:WORD_1")
        o(f"v_cmp_lt_u32 vcc, 32, v{60+i}")
        o(f"s_add_u32 s23, s22, {i*64*8192}")
        o("s_nop 0")
        o(f"v_cndmask_b32 v{44+4*i}, v{44+4*i}, v18, vcc")
        for c in range(1, 4):
            o(f"v_cndmask_b32 v{44+4*i+c}, v{44+4*i+c}, v20, vcc")
        o(f"buffer_store_dwordx4 {vr(44+4*i,4)}, v17, s[32:35], s23 offen {CFLG}")
    if PDO:
        srd(48, 6, E * 32)
        o(f"s_mul_i32 s52, s2, {PR*8192}")
        for i in range(PR):
            o(f"buffer_load_dwordx4 {vr(68+4*i,4)}, v2, s[48:51], s52 offen")
            o("s_add_u32 s52, s52, 8192")
    touch("P", 110, False)
    stamp(3); stamp_out(0, 0)
    o("s_endpgm")
    lab("K1_GEMM")
    o(f"s_sub_u32 s3, s2, {NPROD}")
    o("v_lshlrev_b32 v1, 4, v0")
    o("v_lshrrev_b32 v2, 4, v0")
    o("v_mul_u32_u24 v2, 320, v2")
    o("v_and_b32 v3, 15, v0")
    o("v_lshl_add_u32 v2, v3, 4, v2")
    o("v_lshrrev_b32 v4, 6, v0")
    o("v_and_b32 v5, 63, v0")
    o("v_readfirstlane_b32 s36, v4")
    o("s_waitcnt lgkmcnt(0)")
    o(f"s_cmp_eq_u32 s3, {NG}")
    o("s_cselect_b32 s22, 0, 32768")
    o("s_cselect_b32 s28, s12, s14"); o("s_cselect_b32 s29, s13, s15")
    o("s_mov_b32 s30, 32768"); o("s_mov_b32 s31, 0x00020000")
    srd(24, 16, 272 * 256)
    srd(32, 4, N * 256)
    o("s_lshr_b32 s37, s36, 2"); o("s_and_b32 s38, s36, 3")
    o("s_lshl_b32 s39, s3, 1"); o("s_add_u32 s39, s39, s37")
    o("s_lshl_b32 s40, s3, 14")
    o("v_and_b32 v6, 31, v5"); o("v_lshrrev_b32 v7, 5, v5")
    o("s_add_u32 s41, s40, 8192")
    o("buffer_load_dwordx4 v[48:51], v1, s[32:35], s40 offen")
    o("buffer_load_dwordx4 v[52:55], v1, s[32:35], s41 offen")
    for i in range(4):
        o(f"s_add_u32 s23, s22, {i*8192}")
        o(f"buffer_load_dwordx4 {vr(16+4*i,4)}, v1, s[24:27], s23 offen")
    for i in range(4):
        o(f"s_mov_b32 s23, {i*8192}")
        o(f"buffer_load_dwordx4 {vr(32+4*i,4)}, v1, s[28:31], s23 offen")
    o("v_lshrrev_b32 v12, 4, v0"); o("v_mul_u32_u24 v12, 272, v12"); o("v_lshl_add_u32 v12, v3, 4, v12")
    o("v_add_u32 v12, 81920, v12")
    o("s_lshl_b32 s41, s37, 5"); o("v_add_u32 v8, s41, v6"); o("v_mul_u32_u24 v8, 272, v8")
    o("v_lshl_add_u32 v8, v7, 4, v8"); o("v_add_u32 v8, 81920, v8")
    o("v_bfe_u32 v9, v5, 2, 2")
    o("v_lshl_add_u32 v9, v7, 3, v9")
    o("v_mul_u32_u24 v9, 320, v9")
    o("v_bfe_u32 v10, v5, 4, 1"); o("v_lshl_add_u32 v9, v10, 5, v9")
    o("v_and_b32 v10, 3, v5"); o("v_lshl_add_u32 v9, v10, 3, v9")
    o("s_lshl_b32 s41, s38, 6"); o("v_add_u32 v9, s41, v9")
    o("v_add_u32 v10, 40960, v9")
    o("v_add_u32 v11, 40960, v2")
    o("s_waitcnt vmcnt(9)"); o("ds_write_b128 v12, v[48:51]")
    o("s_waitcnt vmcnt(8)"); o(f"ds_write_b128 v12, v[52:55] offset:{32*272}")
    for i in range(4):
        o(f"s_waitcnt vmcnt({7-i})")
        o(f"ds_write_b128 v2, {vr(16+4*i,4)} offset:{i*10240}")
    o("s_waitcnt lgkmcnt(0)"); o("s_barrier")
    stamp(1)
    W1, W2 = 80, 112
    AQ, AH = 16, 144
    def frags(W, va, xs):
        for s in range(8):
            if xs: o(f"ds_read_b128 {vr(48+4*s,4)}, v8 offset:{32*s}")
            for u in range(2):
                o(f"ds_read_b64_tr_b16 {vr(W+4*s+2*u,2)}, {va} offset:{(16*s+4*u)*320}")
            n = 3 if xs else 2
            if s >= 3:
                o(f"s_waitcnt lgkmcnt({3*n})"); yield s - 3
        for s in range(5, 8):
            o(f"s_waitcnt lgkmcnt({(7-s)*n})"); yield s
    for s in frags(W1, "v9", True): mfma(AQ, 48+4*s, W1+4*s, None if s == 0 else AQ)
    for i in range(4):
        o(f"s_waitcnt vmcnt({3-i})")
        o(f"ds_write_b128 v11, {vr(32+4*i,4)} offset:{i*10240}")
    srd(44, 20, TABLE_BYTES, TABLE_OFF)
    o("s_lshl_b32 s40, s39, 14")
    o("s_lshl_b32 s41, s38, 7"); o("s_add_u32 s40, s40, s41")
    o(f"s_mov_b32 s42, {hex(NLOG2E)}"); o("s_mov_b32 s43, 0xffff0000")
    touch("G", 13, True)
    o("s_waitcnt lgkmcnt(0)"); o("s_barrier")
    stamp(2)
    for s in frags(W2, "v10", False):
        mfma(AH, 48+4*s, W2+4*s, None if s == 0 else AH)
        for v in range(2*s, 2*s+2): o(f"v_mul_f32 v{AQ+v}, s42, v{AQ+v}")
    o(f"s_cmp_eq_u32 s3, {NG}"); o("s_cbranch_scc1 K1_PACK")
    o("v_lshlrev_b32 v8, 11, v7"); o("v_lshl_add_u32 v8, v6, 2, v8")
    o("s_nop 5")
    for v in range(16):
        t = 32 + 2 * (v % 4)
        o(f"v_cvt_pk_bf16_f32 v{t}, v{AQ+v}, v{AH+v}")
        o(f"v_and_b32 v{t+1}, s43, v{t}")
        o(f"v_sub_f32 v{t}, v{t+1}, v{t}")
        o(f"v_add_f32 v{AH+v}, v{AH+v}, v{t}")
        o(f"v_cvt_pk_bf16_f32 v{AH+v}, v{AQ+v}, v{AH+v}")
        if v % 4 == 0: o(f"s_add_u32 s41, s40, {4096*(v//4)}")
        o(f"buffer_store_dword v{AH+v}, v8, s[44:47], s41 offen offset:{512*(v%4)} {TFLG}")
    stamp(3); stamp_out(0, 1)
    o("s_endpgm")
    lab("K1_PACK")
    srd(28, 20, 0x11000, WPACK_OFF)
    o("v_lshlrev_b32 v8, 4, v5")
    o("s_cmp_eq_u32 s37, 0"); o("s_cbranch_scc0 K1_PACKC")
    o("s_lshl_b32 s40, s38, 13")
    for s in range(8):
        if s % 4 == 0:
            o(f"s_add_u32 s41, s40, {s*1024}"); o(f"s_add_u32 s42, s40, {s*1024 + 32768}")
        o(f"buffer_store_dwordx4 {vr(W1+4*s,4)}, v8, s[28:31], s41 offen offset:{(s%4)*1024}")
        o(f"buffer_store_dwordx4 {vr(W2+4*s,4)}, v8, s[28:31], s42 offen offset:{(s%4)*1024}")
    o("s_endpgm")
    lab("K1_PACKC")
    o("v_lshlrev_b32 v12, 11, v7"); o("v_lshl_add_u32 v12, v6, 1, v12")
    o("s_lshl_b32 s40, s38, 6"); o("s_add_u32 s40, s40, 65536")
    for i in range(8):
        o(f"buffer_load_ushort v{16+i}, v12, s[24:27], s40 offen offset:{256*i}")
    o(f"s_mov_b32 s42, {hex(NLOG2E)}")
    o("s_waitcnt vmcnt(0)")
    for i in range(8):
        o(f"v_lshlrev_b32 v{16+i}, 16, v{16+i}")
        o(f"v_mul_f32 v{16+i}, s42, v{16+i}")
    for i in range(4):
        o(f"v_cvt_pk_bf16_f32 v{24+i}, v{16+2*i}, v{17+2*i}")
    o("s_lshl_b32 s40, s38, 10"); o("s_add_u32 s40, s40, 65536")
    o("buffer_store_dwordx4 v[24:27], v8, s[28:31], s40 offen")
    o("s_endpgm")
    if WARM:
        lab("K1_WARM")
        o("v_lshlrev_b32 v2, 4, v0")
        o(f"s_sub_u32 s3, s2, {NPROD + NG + 1}"); o(f"s_mul_i32 s52, s3, {XR*8192}"); o(f"s_add_u32 s52, s52, {NPROD*PR*8192}")
        o("s_waitcnt lgkmcnt(0)")
        srd(48, 6, E * 32)
        for i in range(XR):
            o(f"buffer_load_dwordx4 {vr(16+4*i,4)}, v2, s[48:51], s52 offen")
            o("s_add_u32 s52, s52, 8192")
        o("s_waitcnt vmcnt(0)")
        stamp_out(0, 2)
    lab("K1_END")
    o("s_endpgm")

CAP = 12
POOL = 0; POOL_BYTES = 32768
LUT = 32768; CNT = LUT + 4096; XS = CNT + 64
PX = XS + 40 * 272; UX = PX + 16384; EB = UX + 32768; K2_LDS = EB + 4 * CAP * 1024
ALT = "alt" in sys.argv
OFLG = ([a[2:].replace("_", " ") for a in sys.argv if a.startswith("of")] + [""])[0]
EFLG = ([a[2:].replace("_", " ") for a in sys.argv if a.startswith("ef")] + [""])[0]
GFLG = ([a[2:].replace("_", " ") for a in sys.argv if a.startswith("gf")] + [""])[0]
PFT = ([int(a[3:]) for a in sys.argv if a.startswith("pft")] + [0])[0]
PRIO = ([int(a[4:]) for a in sys.argv if a.startswith("prio")] + [0])[0]
def k2():
    kn = NAME + "_kernel"
    kstart(kn)
    o("s_cmp_ge_u32 s2, 256"); o("s_cbranch_scc1 K2_END")
    o("s_load_dwordx16 s[4:19], s[0:1], 0")
    o("s_load_dwordx2 s[20:21], s[0:1], 72")
    stamp_init()
    o("v_bfe_u32 v15, v0, 3, 6"); o("v_and_b32 v9, 7, v0"); o("v_lshlrev_b32 v9, 3, v9")
    o("v_lshl_add_u32 v9, v15, 7, v9"); o("v_lshrrev_b32 v4, 9, v0"); o("v_lshl_add_u32 v9, v4, 6, v9")
    o("v_lshrrev_b32 v4, 6, v0"); o("v_and_b32 v1, 63, v0")
    o("v_lshlrev_b32 v8, 4, v0")
    o("v_readfirstlane_b32 s3, v4")
    o("v_and_b32 v6, 31, v1"); o("v_lshrrev_b32 v7, 5, v1")
    o("s_lshr_b32 s60, s3, 2"); o("s_and_b32 s61, s3, 3")
    o("s_lshl_b32 s22, s2, 13")
    o("s_waitcnt lgkmcnt(0)")
    sW, sX, sE, sT, sO = 24, 28, 32, 36, 40
    srd(sW, 20, WPACK_OFF + 0x11000)
    EN = 12
    G = [80, 96, 112]; Z, ACC, RO, FR, EF, PF, CF = 16, 32, 48, 56, 68, 72, 76
    WF = [112 + 4*s for s in range(4)] + [56 + 4*s for s in range(4)]
    o(f"buffer_load_dwordx2 {vr(EN,2)}, v9, s[{sW}:{sW+3}], s22 offen")
    srd(sX, 4, N * 256)
    o("v_lshrrev_b32 v10, 4, v0"); o("v_and_b32 v11, 15, v0")
    o("v_lshlrev_b32 v5, 16, v10"); o("v_lshl_add_u32 v5, v11, 4, v5")
    o("s_lshl_b32 s62, s2, 8")
    o("s_cmp_ge_u32 s3, 10"); o("s_cbranch_scc1 K2_NOX")
    o(f"buffer_load_dwordx4 {vr(ACC,4)}, v5, s[{sX}:{sX+3}], s62 offen")
    lab("K2_NOX")
    o("v_lshlrev_b32 v14, 4, v1")
    o("s_lshl_b32 s63, s61, 10"); o(f"s_add_u32 s63, s63, {hex(WPACK_OFF+65536)}")
    o(f"buffer_load_dwordx4 {vr(CF,4)}, v14, s[{sW}:{sW+3}], s63 offen")
    def wload():
        o("s_cmp_ge_u32 s3, 8"); o("s_cbranch_scc1 K2_NOW")
        o("s_lshl_b32 s63, s3, 13"); o(f"s_add_u32 s63, s63, {hex(WPACK_OFF)}"); o("s_add_u32 s64, s63, 4096")
        for s in range(8):
            o(f"buffer_load_dwordx4 {vr(WF[s],4)}, v14, s[{sW}:{sW+3}], s{63 + s//4} offen offset:{(s%4)*1024}")
        lab("K2_NOW")
    WP = ([int(a[2:]) for a in sys.argv if a.startswith("wp")] + [0])[0]
    if WP == 0: wload()
    srd(sE, 6, E * 32); srd(sT, 20, TABLE_BYTES, TABLE_OFF); srd(sO, 18, N * 256)
    PW = ([int(a[2:]) for a in sys.argv if a.startswith("pw")] + [12])[0]
    if PFT:
        o(f"s_cmp_lt_u32 s3, {PW}"); o("s_cbranch_scc1 K2_NOPF")
        o("v_lshlrev_b32 v23, 7, v1")
        o("s_lshr_b32 s63, s2, 3"); o(f"s_mul_i32 s63, s63, {16-PW}"); o("s_add_u32 s63, s63, s3"); o(f"s_sub_u32 s63, s63, {PW}")
        o(f"s_mul_i32 s63, s63, {PFT*8192}")
        for i in range(PFT):
            o(f"buffer_load_dword v{G[2]}, v23, s[{sT}:{sT+3}], s63 offen")
            if i < PFT-1: o("s_add_u32 s63, s63, 8192")
        lab("K2_NOPF")
    for i in range(4):
        o(f"v_bfe_u32 v{16+i}, v0, {2*i}, 1"); o(f"v_bfe_u32 v20, v0, {2*i+1}, 1")
        o(f"v_lshl_or_b32 v{16+i}, v20, 16, v{16+i}")
        o(f"v_mul_u32_u24 v{16+i}, 0x3f80, v{16+i}")
    o("s_cmp_ge_u32 s3, 4"); o("s_cbranch_scc1 K2_NOLUT")
    o(f"ds_write_b128 v8, v[16:19] offset:{LUT}")
    lab("K2_NOLUT")
    o("s_lshl_b32 s63, s61, 7")
    o("v_lshlrev_b32 v2, 2, v6"); o("v_add_u32 v2, s63, v2")
    o("v_mov_b32 v3, v2")
    o(f"v_mul_u32_u24 v15, {CH}, v15")
    if 'xb' in sys.argv: o("s_lshl_b32 s63, s2, 9"); o("v_mov_b32 v15, s63")
    o("s_mov_b32 s72, 0")
    o("s_mov_b32 s73, 0")
    def pool_init():
        o("v_and_b32 v20, 16, v0"); o("v_cmp_eq_u32 vcc, 0, v20")
        o(f"v_mov_b32 v21, {hex(OOB)}"); o("v_mov_b32 v28, 0")
        o("v_cndmask_b32 v24, 0, v21, vcc")
        o("v_mov_b32 v29, 0"); o("v_mov_b32 v30, 0"); o("v_mov_b32 v31, 0")
        o("v_mov_b32 v25, v24"); o("v_mov_b32 v26, v24"); o("v_mov_b32 v27, v24")
        o(f"v_mov_b32 v20, {CNT}")
        for i in range(2):
            o(f"ds_write_b128 v8, v[24:27] offset:{POOL + i*16384}")
        o("ds_write_b128 v20, v[28:31]")
        o(f"v_add_u32 v21, {EB}, v8")
        for i in range(3): o(f"ds_write_b128 v21, v[28:31] offset:{i*16384}")
    if WP == 1: wload()
    pool_init()
    if WP == 2: wload()
    o("ds_write_b32 v20, v28 offset:16")
    o("v_mov_b32 v22, 1")
    o("v_mul_u32_u24 v5, 272, v10"); o("v_lshl_add_u32 v5, v11, 4, v5")
    o("s_mov_b32 s78, 1.0"); o("s_mov_b32 s79, 1.0")
    o("s_waitcnt lgkmcnt(0)"); o("s_barrier")
    if WP == 3: wload()
    o("s_cmp_ge_u32 s3, 8"); o("s_cbranch_scc1 K2_XW1")
    o("s_waitcnt vmcnt(9)"); o("s_branch K2_XW2")
    lab("K2_XW1"); o(f"s_waitcnt vmcnt({1+PFT})")
    if PFT: o(f"s_cmp_ge_u32 s3, {PW}"); o("s_cbranch_scc1 K2_B1"); o("s_waitcnt vmcnt(1)")
    o("s_cmp_ge_u32 s3, 10"); o("s_cbranch_scc1 K2_B1")
    lab("K2_XW2")
    o(f"ds_write_b128 v5, {vr(ACC,4)} offset:{XS}")
    o("s_mov_b64 exec, 1"); o("ds_add_u32 v20, v22 offset:16"); o("s_mov_b64 exec, -1")
    lab("K2_B1")
    if not ALT: stamp(1)
    o(f"v_cmp_eq_u32 vcc, -2, v{EN}")
    o("s_cbranch_vccz K2_COMPACT")
    o(f"v_mov_b32 v20, {CNT}"); o("v_mov_b32 v21, 1"); o("ds_write_b32 v20, v21 offset:8")
    lab("K2_COMPACT")
    o("s_setprio 3")
    o("v_and_b32 v20, 1, v0"); o("v_lshlrev_b32 v20, 4, v20"); o(f"v_mov_b32 v21, {hex(OOB)}")
    for i in range(2):
        e = EN + i
        o(f"v_cmp_gt_u32 s[{74+2*i}:{75+2*i}], -2, v{e}")
        o(f"v_lshrrev_b32 v{22+i}, 20, v{e}"); o(f"v_add_lshl_u32 v{22+i}, v{22+i}, v15, 5")
    for i in range(2):
        o(f"v_cndmask_b32 v{22+i}, v21, v{22+i}, s[{74+2*i}:{75+2*i}]")
    o("s_nop 0")
    for i in range(2):
        for p, qp in enumerate(["[0,0,2,2]", "[1,1,3,3]"]):
            o(f"v_add_u32_dpp v{G[1]+4*(2*i+p)}, v{22+i}, v20 quad_perm:{qp} row_mask:0xf bank_mask:0xf")
    def eload():
        for i in range(4):
            o(f"buffer_load_dwordx4 {vr(G[1]+4*i,4)}, v{G[1]+4*i}, s[{sE}:{sE+3}], 0 offen {EFLG}")
    EW = ([int(a[2:]) for a in sys.argv if a.startswith("ew")] + [8])[0]
    o(f"s_cmp_ge_u32 s3, {EW}"); o("s_cbranch_scc1 K2_ELATE")
    eload()
    lab("K2_ELATE")
    if not ALT: stamp(2)
    for i in range(2):
        e = EN + i
        o(f"v_and_b32 v{16+i}, 3, v{e}")
        o(f"v_lshlrev_b32 v{18+i}, 3, v{16+i}")
        o(f"v_bfm_b32 v{20+i}, 1, v{18+i}")
        o(f"v_cndmask_b32 v{20+i}, 0, v{20+i}, s[{74+2*i}:{75+2*i}]")
    o("v_add_u32 v22, v20, v21"); o("v_mov_b32 v23, v22")
    fill = []
    for i in range(2):
        e = EN + i
        fill += [f"v_bfe_u32 v{24+2*i}, v{e}, 6, 14", f"v_lshlrev_b32 v{24+2*i}, 9, v{24+2*i}",
                 f"v_bfe_u32 v{28+i}, v{e}, 2, 4", f"v_bfe_u32 v{30+i}, v{e}, 5, 1",
                 f"v_and_b32 v{25+2*i}, 3, v{28+i}", f"v_lshl_or_b32 v{25+2*i}, v{30+i}, 2, v{25+2*i}"]
    dpp = ["row_shr:1", "row_shr:2", "row_shr:4", "row_shr:8"]
    for j, d in enumerate(dpp):
        o(fill[2*j]); o(fill[2*j+1])
        o(f"v_add_u32_dpp v23, v23, v23 {d} row_mask:0xf bank_mask:0xf bound_ctrl:0")
    o(fill[8]); o(fill[9])
    o("v_add_u32_dpp v23, v23, v23 row_bcast:15 row_mask:0xa bank_mask:0xf")
    o(fill[10]); o(fill[11])
    o("v_add_u32_dpp v23, v23, v23 row_bcast:31 row_mask:0xc bank_mask:0xf")
    o("s_nop 0")
    o("v_readlane_b32 s64, v23, 63")
    o("v_sub_u32 v23, v23, v22")
    o("s_and_b32 s65, s64, 0xff"); o("s_bfe_u32 s66, s64, 0x80008"); o("s_lshl_b32 s66, s66, 16"); o("s_or_b32 s65, s65, s66")
    o("s_bfe_u32 s66, s64, 0x80010"); o("s_lshr_b32 s67, s64, 24"); o("s_lshl_b32 s67, s67, 16"); o("s_or_b32 s66, s66, s67")
    o("v_mov_b32 v48, s65"); o("v_mov_b32 v49, s66"); o(f"v_mov_b32 v50, {CNT}")
    o("s_mov_b64 exec, 1")
    o("ds_add_rtn_u64 v[48:49], v50, v[48:49]")
    o("s_mov_b64 exec, -1")
    o("v_add_u32 v22, v23, v20")
    o("v_bfe_u32 v20, v23, v18, 8"); o("v_bfe_u32 v21, v22, v19, 8")
    for i in range(2):
        o(f"v_bfm_b32 v{30+i}, 1, v{25+2*i}")
        o(f"v_bfe_u32 v{22+i}, v{28+i}, 2, 1"); o(f"v_lshlrev_b32 v{22+i}, 7, v{22+i}")
        o(f"v_lshlrev_b32 v{18+i}, 1, v{18+i}")
        o(f"v_mul_u32_u24 v{16+i}, {CAP*512}, v{16+i}")
    o(f"s_movk_i32 s68, {CAP*32}")
    o("s_waitcnt lgkmcnt(0)")
    o("v_readfirstlane_b32 s64, v48"); o("v_readfirstlane_b32 s65, v49")
    o("s_nop 1")
    for i in range(2):
        o(f"v_lshrrev_b64 v[48:49], v{18+i}, s[64:65]")
        o("v_and_b32 v48, 0xffff, v48"); o(f"v_add_u32 v48, v48, v{20+i}")
        o("v_cmp_gt_u32 vcc, s68, v48")
        o("v_lshrrev_b32 v49, 5, v48"); o("v_and_b32 v48, 31, v48")
        o(f"v_lshl_add_u32 v49, v49, 9, v{16+i}")
        o("v_lshl_add_u32 v50, v48, 2, v49")
        o(f"v_add_u32 v51, v50, v{22+i}")
        o("v_lshrrev_b32 v52, 3, v48"); o("v_and_b32 v53, 3, v48")
        o("v_lshl_or_b32 v52, v52, 2, v53"); o("v_lshlrev_b32 v52, v52, v0") if False else None
        o("v_lshl_or_b32 v52, v52, 2, v53") if False else None
        o("v_add_u32 v52, 8, v52"); o("v_bfm_b32 v52, 1, v52")
        o("v_bfe_u32 v53, v48, 2, 1"); o("v_lshl_add_u32 v53, v53, 7, v49")
        o(f"v_lshl_add_u32 v53, v{28+i}, 2, v53")
        o(f"v_bfrev_b32 v{EN+i}, 1")
        o("v_lshlrev_b32 v48, 4, v48")
        o(f"s_and_b64 exec, vcc, s[{74+2*i}:{75+2*i}]")
        o(f"v_lshl_add_u32 v{EN+i}, v49, 1, v48")
        o(f"ds_write_b32 v50, v{24+2*i}")
        o(f"ds_or_b32 v51, v{30+i} offset:256")
        o("ds_or_b32 v53, v52 offset:256")
        o("s_mov_b64 exec, -1")
    o(f"v_mov_b32 v17, {CNT}"); o("v_mov_b32 v16, 0x10000")
    o("s_mov_b64 exec, 1")
    o("ds_add_u32 v17, v16 offset:12")
    o("s_mov_b64 exec, -1")
    if not ALT: stamp(3)
    o(f"s_cmp_lt_u32 s3, {EW}"); o("s_cbranch_scc1 K2_EEARLY")
    eload()
    lab("K2_EEARLY")
    o("s_setprio 0")
    o("s_cmp_lg_u32 s72, 0"); o("s_cbranch_scc1 K2_B2")
    o("s_cmp_ge_u32 s3, 8"); o("s_cbranch_scc1 K2_B2")
    o("v_and_b32 v9, 15, v1"); o("v_min_u32 v9, 9, v9"); o("v_bfe_u32 v73, v1, 4, 1")
    o("v_lshl_add_u32 v9, v9, 2, v73"); o("v_mul_u32_u24 v9, 272, v9"); o("v_lshl_add_u32 v9, v7, 4, v9")
    lab("K2_SPINX")
    o("ds_read_b32 v16, v17 offset:16")
    o("s_waitcnt lgkmcnt(0)")
    o("v_readfirstlane_b32 s70, v16")
    o("s_cmp_lg_u32 s70, 10"); o("s_cbranch_scc1 K2_SPINX")
    XB = [G[0], G[0]+4, G[0]+8, G[0]+12, RO, RO+4, PF]
    def xrd(i): o(f"ds_read_b128 {vr(XB[i%7],4)}, v9 offset:{XS + 32*(i>>1) + 544*(i&1)}")
    for i in range(6): xrd(i)
    o("s_waitcnt vmcnt(4)")
    for i in range(16):
        if i + 6 < 16: xrd(i + 6)
        o(f"s_waitcnt lgkmcnt({min(6, 15-i)})")
        D = ACC if i & 1 else Z
        mfma(D, XB[i%7], WF[i>>1], None if i < 2 else D)
    o("s_cmp_ge_u32 s3, 4"); o("s_cbranch_scc1 K2_UOUT")
    o(f"s_mov_b32 s65, {hex(NLOG2E)}")
    o("s_lshl_b32 s70, s61, 10"); o("v_add_u32 v72, s70, v14")
    o("s_nop 7")
    for v in range(32): o(f"v_mul_f32 v{Z+v}, s65, v{Z+v}")
    for i in range(16): o(f"v_cvt_pk_bf16_f32 v{Z+i}, v{Z+2*i}, v{Z+2*i+1}")
    for l in range(4): o(f"ds_write_b128 v72, {vr(Z+4*l,4)} offset:{PX + l*4096}")
    o("s_branch K2_B2")
    lab("K2_UOUT")
    o("s_lshl_b32 s70, s61, 11"); o(f"s_add_u32 s70, s70, {UX}"); o("v_add_u32 v72, s70, v14")
    o("s_nop 8")
    for l in range(4):
        for hf in range(2): o(f"ds_write_b128 v72, {vr(Z+8*l+4*hf,4)} offset:{l*8192 + hf*1024}")
    lab("K2_B2")
    if not ALT: stamp(4)
    o(f"v_mov_b32 v48, {CNT}")
    o(f"s_mul_i32 s66, s60, {CAP*512}")
    o("v_lshl_add_u32 v4, v7, 4, s66")
    o("v_lshl_add_u32 v5, v1, 2, s66")
    o(f"s_lshl_b32 s66, s66, 1"); o(f"s_add_u32 s66, s66, {EB}")
    o("v_add_u32 v10, s66, v14")
    lab("K2_SPINA")
    o("ds_read_b128 v[52:55], v48")
    o("s_waitcnt lgkmcnt(0)")
    o("v_readfirstlane_b32 s70, v55")
    o("s_cmp_lt_u32 s70, 0x100000"); o("s_cbranch_scc1 K2_SPINA")
    o("v_readfirstlane_b32 s64, v52"); o("v_readfirstlane_b32 s65, v53"); o("v_readfirstlane_b32 s69, v54")
    o("s_and_b32 s70, s64, 0xffff"); o("s_lshr_b32 s71, s64, 16"); o("s_max_u32 s70, s70, s71")
    o("s_and_b32 s71, s65, 0xffff"); o("s_max_u32 s70, s70, s71"); o("s_lshr_b32 s71, s65, 16"); o("s_max_u32 s70, s70, s71")
    o("s_cmp_gt_u32 s70, s68"); o("s_cselect_b32 s69, 1, s69")
    o("s_cmp_lg_u32 s69, 0"); o("s_cbranch_scc1 K2_BAD")
    o("s_lshl_b32 s70, s60, 4"); o("s_lshr_b64 s[64:65], s[64:65], s70"); o("s_and_b32 s64, s64, 0xffff")
    o("s_add_u32 s64, s64, 31"); o("s_lshr_b32 s64, s64, 5")
    if ALT: stamp(1)
    if PRIO and PRIO < 4: o("s_setprio 3")
    if PRIO in (4, 5, 7, 8): o("s_setprio 2")
    if PRIO == 6: o("s_setprio 3")
    MK = [11, 12, 13]
    def issue_a():
        for c in range(2): o(f"ds_read_b128 {vr(RO+4*c,4)}, v4 offset:{32*c}")
    def issue_b(k, first):
        for hf in range(2):
            if hf == 1:
                for c in range(2):
                    o(f"ds_read_b128 {vr(RO+4*c,4)}, v4 offset:{32*(2+c)}")
                o(f"ds_read_b32 v{MK[k]}, v5 offset:256")
            for c in range(2):
                if hf == 1 or first: o(f"s_waitcnt lgkmcnt({1-c+hf})")
                for i in range(0, 4, 2):
                    o(f"v_lshl_add_u64 {vr(RO+4*c+i,2)}, {vr(RO+4*c+i,2)}, 0, v[2:3]")
                for i in range(0 if 'nold' in sys.argv else 4):
                    o(f"buffer_load_dword v{G[k]+8*hf+4*c+i}, v{RO+4*c+i}, s[{sT}:{sT+3}], 0 offen {GFLG}")
        o("v_add_u32 v4, 512, v4"); o("v_add_u32 v5, 512, v5")
    ER = ([int(a[2:]) for a in sys.argv if a.startswith("er")] + [2])[0]
    o("v_and_b32 v16, 1, v0"); o("v_lshlrev_b32 v16, 9, v16"); o(f"v_add_u32 v16, {EB}, v16")
    o(f"v_mov_b32 v17, {CNT}")
    for i in range(2):
        for p, qp in enumerate(["[0,0,2,2]", "[1,1,3,3]"]):
            o(f"v_add_u32_dpp v{18+2*i+p}, v{EN+i}, v16 quad_perm:{qp} row_mask:0xf bank_mask:0xf")
    o("v_mov_b32 v16, 1")
    o(f"s_cmp_lt_u32 s60, {ER}"); o("s_cselect_b32 s69, s64, 0")
    o("s_cmp_eq_u32 s69, 0"); o("s_cbranch_scc1 K2_EW0")
    lab("K2_I0")
    issue_a(); issue_b(0, True)
    if ALT: stamp(2)
    o("s_cmp_eq_u32 s69, 0"); o("s_cbranch_scc1 K2_I1")
    o("s_waitcnt vmcnt(16)"); o("s_branch K2_EW")
    lab("K2_EW0")
    o("s_waitcnt vmcnt(0)")
    lab("K2_EW")
    for i in range(4):
        o(f"v_cmpx_le_i32 vcc, 0, v{18+i}")
        o(f"ds_write_b128 v{18+i}, {vr(G[1]+4*i,4)}")
        o("s_mov_b64 exec, -1")
    o("s_mov_b64 exec, 1")
    o("s_waitcnt lgkmcnt(0)")
    o("ds_add_u32 v17, v16 offset:12")
    o("s_mov_b64 exec, -1")
    if ALT: stamp(3)
    o("s_cmp_lg_u32 s69, s64"); o("s_cbranch_scc1 K2_I0")
    lab("K2_I1")
    if PRIO in (2, 3): o("s_setprio 2")
    if PRIO == 4: o("s_setprio 1")
    o("s_cmp_lt_u32 s64, 2"); o("s_cbranch_scc1 K2_SPIN")
    issue_a(); issue_b(1, True)
    lab("K2_SPIN")
    if PRIO in (1, 2): o("s_setprio 1")
    lab("K2_SPINE")
    o("ds_read_b32 v16, v17 offset:12")
    o("s_waitcnt lgkmcnt(0)")
    o("v_readfirstlane_b32 s70, v16")
    o("s_cmp_lg_u32 s70, 0x100010"); o("s_cbranch_scc1 K2_SPINE")
    o("s_cmp_lg_u32 s73, 0"); o("s_cbranch_scc1 K2_LOOP0")
    o("s_mov_b32 s73, 1")
    o("s_lshl_b32 s70, s3, 10"); o("v_add_u32 v18, s70, v14")
    o(f"ds_read_b128 {vr(PF,4)}, v18 offset:{PX}")
    o("s_lshl_b32 s70, s3, 11"); o(f"s_add_u32 s70, s70, {UX}"); o("v_add_u32 v18, s70, v14")
    o(f"ds_read_b128 {vr(ACC,4)}, v18"); o(f"ds_read_b128 {vr(ACC+4,4)}, v18 offset:1024")
    for v in range(8, 16): o(f"v_mov_b32 v{ACC+v}, 0")
    if ALT: stamp(4)
    PK = "nopk" not in sys.argv
    def body(k):
        g = G[k]
        lab(f"K2_LOOP{k}")
        o("s_cmp_eq_u32 s64, 0"); o("s_cbranch_scc1 K2_BATCH_DONE")
        o(f"ds_read_b128 {vr(EF,4)}, v10")
        for i in range(3):
            o(f"v_lshlrev_b32_sdwa v9, 4, v{MK[k]} dst_sel:DWORD dst_unused:UNUSED_PAD src0_sel:DWORD src1_sel:BYTE_{i}")
            if 'nolut' not in sys.argv: o(f"ds_read_b128 {vr(FR+4*i,4)}, v9 offset:{LUT}")
        issue_a()
        o("v_add_u32 v10, 1024, v10")
        o("s_cmp_eq_u32 s64, 1"); o(f"s_cbranch_scc1 K2_W{k}")
        o("s_waitcnt vmcnt(16)")
        lab(f"K2_C{k}")
        for v in range(0, 16, 2): o(f"v_lshlrev_b64 {vr(Z+v,2)}, 16, {vr(g+v,2)}")
        o("s_sub_u32 s64, s64, 1")
        o("s_waitcnt lgkmcnt(0)")
        mfma(Z, EF, CF, Z); mfma(Z, FR, PF, Z)
        o("s_cmp_lt_u32 s64, 2"); o(f"s_cbranch_scc1 K2_N{k}")
        issue_b((k + 2) % 3, False)
        lab(f"K2_X{k}")
        for v in range(0 if 'notr' in sys.argv else 16): o(f"v_exp_f32 v{Z+v}, v{Z+v}")
        if PK:
            for v in range(0, 16, 2): o(f"v_pk_add_f32 {vr(Z+v,2)}, {vr(Z+v,2)}, s[78:79]")
        else:
            for v in range(16): o(f"v_add_f32 v{Z+v}, 1.0, v{Z+v}")
        for v in range(0 if 'notr' in sys.argv else 16): o(f"v_rcp_f32 v{Z+v}, v{Z+v}")
        if PK:
            for v in range(0, 16, 2): o(f"v_pk_mul_f32 {vr(Z+v,2)}, {vr(Z+v,2)}, {vr(g+v,2)}")
        else:
            for v in range(16): o(f"v_mul_f32 v{Z+v}, v{Z+v}, v{g+v}")
        for i in range(8): o(f"v_cvt_pk_bf16_f32 v{Z+i}, v{Z+2*i}, v{Z+2*i+1}")
        o("s_waitcnt lgkmcnt(0)")
        o("s_nop 0")
        mfma(ACC, FR+4, Z, ACC); mfma(ACC, FR+8, Z+4, ACC)
        if PRIO in (1, 2) and k == 0: o("s_setprio 0")
        if PRIO == 4:
            o("s_cmp_gt_u32 s64, 2"); o(f"s_cbranch_scc1 K2_PR{k}"); o("s_setprio 0")
            lab(f"K2_PR{k}")
        if PRIO == 6: o("s_setprio 2")
        if PRIO == 7:
            o("s_setprio 1"); o("s_cmp_gt_u32 s64, 2"); o(f"s_cbranch_scc1 K2_PR{k}"); o("s_setprio 0")
            lab(f"K2_PR{k}")
        if PRIO == 8:
            o("s_cmp_gt_u32 s64, 4"); o(f"s_cbranch_scc1 K2_PR{k}"); o("s_setprio 1")
            o("s_cmp_gt_u32 s64, 2"); o(f"s_cbranch_scc1 K2_PR{k}"); o("s_setprio 0")
            lab(f"K2_PR{k}")
        if PRIO in (3, 5, 6):
            o("s_cmp_gt_u32 s64, 3"); o(f"s_cbranch_scc1 K2_PR{k}"); o("s_setprio 1")
            o("s_cmp_gt_u32 s64, 1"); o(f"s_cbranch_scc1 K2_PR{k}"); o("s_setprio 0")
            lab(f"K2_PR{k}")
    for k in range(3): body(k)
    o("s_branch K2_LOOP0")
    for k in range(3):
        lab(f"K2_W{k}"); o("s_waitcnt vmcnt(0)"); o(f"s_branch K2_C{k}")
        lab(f"K2_N{k}"); o("s_nop 10"); o(f"s_branch K2_X{k}")
    lab("K2_BAD")
    o("s_cmp_eq_u32 s72, 0"); o("s_cselect_b32 s58, 0, s58"); o("s_movk_i32 s59, 2048"); o("s_cselect_b32 s59, s59, 256")
    o("s_mov_b32 s72, 1"); o("s_branch K2_SCAN")
    lab("K2_BATCH_DONE")
    o("s_cmp_eq_u32 s72, 0"); o("s_cbranch_scc1 K2_EPI")
    o("s_add_u32 s58, s58, s59"); o("s_movk_i32 s59, 2048")
    o(f"s_cmp_ge_u32 s58, {E}"); o("s_cbranch_scc1 K2_EPI")
    lab("K2_SCAN")
    o("s_waitcnt vmcnt(0) lgkmcnt(0)")
    srd(44, 8, E * 4); srd(48, 10, E * 4)
    o("s_lshl_b32 s57, s58, 2"); o("v_lshlrev_b32 v9, 3, v0")
    o("buffer_load_dwordx2 v[48:49], v9, s[48:51], s57 offen")
    o("buffer_load_dwordx2 v[50:51], v9, s[44:47], s57 offen")
    o("s_barrier")
    pool_init()
    o("v_mov_b32 v15, s58")
    o(f"s_sub_u32 s57, {E}, s58"); o("s_min_u32 s57, s57, s59")
    o("s_waitcnt vmcnt(0)")
    for i in range(2):
        o(f"v_lshl_add_u32 v20, v0, 1, {i}")
        o(f"v_and_b32 v21, 0xff, v{48+i}")
        o("v_cmp_eq_u32 vcc, s2, v21"); o("v_cmp_gt_u32 s[66:67], s57, v20")
        o("s_and_b64 vcc, vcc, s[66:67]")
        o(f"v_lshrrev_b32 v21, 8, v{48+i}")
        o(f"v_lshl_or_b32 v21, v{50+i}, 6, v21"); o("v_lshl_or_b32 v21, v20, 20, v21")
        o(f"v_cndmask_b32 v{EN+i}, -1, v21, vcc")
    o("s_waitcnt lgkmcnt(0)"); o("s_barrier")
    o("s_branch K2_COMPACT")
    lab("K2_EPI")
    o("s_waitcnt vmcnt(0) lgkmcnt(0)")
    o(f"s_mov_b32 s65, {hex(NLOG2E)}")
    o("v_lshlrev_b32 v9, 20, v7"); o("v_lshl_add_u32 v9, v6, 1, v9")
    o("s_lshl_b32 s63, s61, 6"); o("s_add_u32 s62, s62, s63"); o("s_lshl_b32 s63, s60, 16"); o("s_add_u32 s62, s62, s63")
    o("s_nop 7")
    for v in range(6): o(f"v_mul_f32 v{Z+v}, s65, v{ACC+v}")
    for v in range(6): o(f"v_exp_f32 v{Z+v}, v{Z+v}")
    for v in range(6): o(f"v_add_f32 v{Z+v}, 1.0, v{Z+v}")
    for v in range(6): o(f"v_rcp_f32 v{Z+v}, v{Z+v}")
    for v in range(6): o(f"v_mul_f32 v{Z+v}, v{Z+v}, v{ACC+v}")
    for v in range(6): o(f"v_cvt_pk_bf16_f32 v{Z+v}, v{Z+v}, v{Z+v}")
    for v in range(6):
        if v == 4: o("s_mov_b32 exec_hi, 0")
        o(f"s_add_u32 s63, s62, {((v&3) + 8*(v>>2)) << 18}")
        o(f"buffer_store_short v{Z+v}, v9, s[{sO}:{sO+3}], s63 offen {OFLG}")
    o("s_lshr_b32 s89, s3, 2") if STAMPS else None
    stamp_out(1, "s89")
    lab("K2_END")
    o("s_endpgm")

header(); k1(); k2()
L.append('.section .rodata,"a"')
kdesc("prep_kernel", 160, 102 if STAMPS else 56); kdesc(NAME + "_kernel", 128, 102 if STAMPS else 80)
out = sys.argv[1] if len(sys.argv) > 1 else "cdna_kernels/%s.s" % NAME
open(out, "w").write("\n".join(x for x in L if x is not None) + "\n")
```

```python
import sys
NAME = "standalone__edge_featured_mpnn_egc__graph"
N, E = 10000, 160000
NPROD, CH = 64, 2500
CELLS_OFF, TABLE_OFF, WPACK_OFF = 0, 0x200000, 0x800000
TABLE_BYTES = N * 512
NG = 157
NLOG2E = 0xBFB8AA3B
OOB = 0x7FFFF000
L = []
def o(s): L.append("    " + s)
def lab(s): L.append(s + ":")
def srd(d, b, nbytes, off=0):
    if off:
        o(f"s_add_u32 s{d}, s{b}, {hex(off)}"); o(f"s_addc_u32 s{d+1}, s{b+1}, 0")
    else:
        o(f"s_mov_b32 s{d}, s{b}"); o(f"s_mov_b32 s{d+1}, s{b+1}")
    o(f"s_mov_b32 s{d+2}, {hex(nbytes)}"); o(f"s_mov_b32 s{d+3}, 0x00020000")
def vr(a, n): return f"v[{a}:{a+n-1}]"
def mfma(d, a, b, c):
    cs = "0" if c is None else vr(c, 16)
    o(f"v_mfma_f32_32x32x16_bf16 {vr(d,16)}, {vr(a,4)}, {vr(b,4)}, {cs}")

STAMPS = "stamps" in sys.argv
def stamp(i):
    if STAMPS: o(f"s_memrealtime s[{90+2*i}:{91+2*i}]")
def stamp_init():
    if STAMPS:
        for i in range(1, 6): o(f"s_mov_b32 s{90+2*i}, 0")
        o("v_lshrrev_b32 v255, 6, v0") if False else None
        stamp(0)
def stamp_out(kid, role):
    if not STAMPS: return
    o("s_waitcnt vmcnt(0)")
    stamp(5)
    o("s_waitcnt lgkmcnt(0)")
    o("s_mov_b64 exec, -1")
    o("v_lshrrev_b32 v1, 6, v0"); o("v_and_b32 v2, 63, v0")
    o("v_lshlrev_b32 v1, 5, v1"); o("v_lshl_add_u32 v1, v2, 2, v1")
    for i in range(6): o(f"v_writelane_b32 v3, s{90+2*i}, {i}")
    o(f"s_mov_b32 s4, {role}"); o("v_writelane_b32 v3, s4, 6")
    o("s_mov_b32 s4, 0xC0FFEE"); o("v_writelane_b32 v3, s4, 7")
    if "dbg" in sys.argv:
        wg, slot, msk = {(0,0): (5, 12, 0xf), (0,1): (100, 0, 0x3f), (1,0): (77, 6, 0x3f)}[(kid, role)]
        o("v_readfirstlane_b32 s5, v1"); o("s_load_dwordx2 s[12:13], s[0:1], 64")
        o("s_waitcnt lgkmcnt(0)")
        o(f"s_add_u32 s8, s12, {512*(1-kid)}"); o("s_addc_u32 s9, s13, 0"); o("s_mov_b32 s10, 256"); o("s_mov_b32 s11, 0x00020000")
        o(f"s_xor_b32 s4, s2, {wg}"); o("s_or_b32 s4, s4, s5"); o("s_cmp_eq_u32 s4, 0"); o(f"s_cbranch_scc0 DBG{kid}{role}")
        o(f"v_lshlrev_b32 v1, 2, v2"); o(f"s_mov_b64 exec, {msk}")
        o(f"buffer_store_dword v3, v1, s[8:11], 0 offen offset:{4*slot}")
        lab(f"DBG{kid}{role}")
        return
    srd(8, 20, 0x100000, 0x4000000 + kid * 512 * 512)
    o("s_lshl_b32 s4, s2, 9")
    o("s_mov_b64 exec, 0xff")
    o("buffer_store_dword v3, v1, s[8:11], s4 offen")

def header():
    src = open("cdna_kernels/%s.s.ref" % NAME).read().split("\n")
    for l in src:
        if l.startswith("; Override"): break
        L.append(l)
    L.append("; @launch kernel=prep_kernel grid=(%d,1,1) block=(512,1,1) lds=%d" % (NPROD + NG + 1 + globals().get("NXW", 0), K1_LDS))
    L.append("; @launch kernel=%s_kernel grid=(256,1,1) block=(1024,1,1) lds=%d" % (NAME, K2_LDS))
    L.append('.amdgcn_target "amdgcn-amd-amdhsa--gfx950"')
    L.append(".text")

def kstart(n):
    L.append(f".globl {n}"); L.append(".p2align 8"); L.append(f".type {n},@function"); lab(n)

def kdesc(n, vg, sg):
    L.append(".p2align 6")
    L.append(f".amdhsa_kernel {n}")
    for k, v in [("next_free_vgpr", vg), ("next_free_sgpr", sg), ("accum_offset", (vg + 3) // 4 * 4),
                 ("group_segment_fixed_size", 0), ("kernarg_size", 80), ("user_sgpr_count", 2),
                 ("user_sgpr_kernarg_segment_ptr", 1), ("system_sgpr_workgroup_id_x", 1)]:
        L.append(f"  .amdhsa_{k} {v}")
    L.append(".end_amdhsa_kernel")

NPF = 0
TFLG = ([a[2:].replace("_", " ") for a in sys.argv if a.startswith("tf")] + [""])[0]
CFLG = ([a[2:].replace("_", " ") for a in sys.argv if a.startswith("cf")] + [""])[0]
WARM = "nowarm" not in sys.argv
NXW = 34 if WARM else 0
XR = ([int(a[2:]) for a in sys.argv if a.startswith('xr')] + [11])[0]
PR = ([int(a[2:]) for a in sys.argv if a.startswith('pq')] + [4])[0]
PDO = 'pdo' in sys.argv
K1_LDS = 81920 + 64 * 272
def prefetch_e(va="v1"):
    if not NPF: return
    srd(48, 6, E * 32)
    o("s_mul_i32 s52, s2, 24576")
    for i in range(3):
        o(f"buffer_load_dwordx4 {vr(144+4*i,4)}, {va}, s[48:51], s52 offen")
        if i < 2: o("s_add_u32 s52, s52, 8192")
TLB = "tlb" in sys.argv
def touch(tag, vt, table):
    if not TLB: return
    o(f"v_readfirstlane_b32 s52, v0"); o("s_cmp_lg_u32 s52, 0"); o(f"s_cbranch_scc1 K1_T{tag}")
    srd(48, 6, E * 32)
    o(f"v_mul_u32_u24 v{vt}, 80000, v0")
    o(f"buffer_load_dword v{vt+1}, v{vt}, s[48:51], 0 offen")
    srd(48, 18, N * 256)
    o(f"v_lshrrev_b32 v{vt}, 1, v{vt}")
    o(f"buffer_load_dword v{vt+1}, v{vt}, s[48:51], 0 offen")
    if table:
        o("s_mov_b64 exec, 1")
        o(f"buffer_load_dword v{vt+1}, v{vt}, s[44:47], s40 offen")
        o("s_mov_b64 exec, -1")
    lab(f"K1_T{tag}")
def k1():
    kstart("prep_kernel")
    o(f"s_cmp_ge_u32 s2, {NPROD + NG + 1 + NXW}"); o("s_cbranch_scc1 K1_END")
    o("s_load_dwordx16 s[4:19], s[0:1], 0")
    o("s_load_dwordx2 s[20:21], s[0:1], 72")
    stamp_init()
    if WARM: o(f"s_cmp_ge_u32 s2, {NPROD + NG + 1}"); o("s_cbranch_scc1 K1_WARM")
    o(f"s_cmp_ge_u32 s2, {NPROD}"); o("s_cbranch_scc1 K1_GEMM")
    o("v_lshlrev_b32 v1, 2, v0")
    o(f"s_mul_i32 s22, s2, {CH*4}")
    o("v_mov_b32 v20, -1"); o("v_mov_b32 v21, -1"); o("v_mov_b32 v22, -1"); o("v_mov_b32 v23, -1")
    o("v_lshlrev_b32 v2, 4, v0")
    o("v_mov_b32 v24, 0")
    o("s_waitcnt lgkmcnt(0)")
    srd(24, 8, E * 4); srd(28, 10, E * 4); srd(32, 20, 0x200000, CELLS_OFF)
    for i in range(5):
        o(f"s_add_u32 s23, s22, {i*2048}")
        o(f"buffer_load_dword v{4+i}, v1, s[28:31], s23 offen")
        o(f"buffer_load_dword v{10+i}, v1, s[24:27], s23 offen")
    o("v_lshlrev_b32 v19, 2, v1"); prefetch_e("v19")
    for i in range(4):
        o(f"ds_write_b128 v2, v[20:23] offset:{i*8192}")
    o("ds_write_b32 v1, v24 offset:32768")
    o("v_mov_b32 v25, 0x10000"); o(f"s_movk_i32 s38, {N//2}")
    o("s_waitcnt lgkmcnt(0)"); o("s_barrier")
    o(f"v_cmp_gt_u32 s[36:37], {CH - 2048}, v0") if False else None
    o(f"s_movk_i32 s23, {CH - 2048}")
    o("v_cmp_gt_u32 s[36:37], s23, v0")
    for i in range(5):
        o(f"s_waitcnt vmcnt({2*(4-i)+NPF})")
        o(f"v_cmp_le_u32 s[{40+2*i}:{41+2*i}], s38, v{10+i}")
        if i == 4: o("s_mov_b64 exec, s[36:37]")
        o(f"v_and_b32 v{26+i}, 0xff, v{4+i}")
        o(f"v_lshlrev_b32 v16, 2, v{26+i}")
        o(f"v_cndmask_b32 v17, 1, v25, s[{40+2*i}:{41+2*i}]")
        o(f"ds_add_rtn_u32 v{32+i}, v16, v17 offset:32768")
    o("s_mov_b64 exec, -1")
    o(f"s_waitcnt vmcnt({NPF})")
    stamp(1)
    for i in range(5):
        o(f"v_lshrrev_b32 v{4+i}, 8, v{4+i}")
        o(f"v_lshl_or_b32 v{4+i}, v{10+i}, 6, v{4+i}")
        o(f"v_add_u32 v16, {i*512}, v0")
        o(f"v_lshl_or_b32 v{4+i}, v16, 20, v{4+i}")
    for i in range(5):
        o(f"s_waitcnt lgkmcnt({4-i})") if i == 0 or True else None
        o(f"v_and_b32 v16, 0xffff, v{32+i}"); o(f"v_lshrrev_b32 v17, 16, v{32+i}"); o("v_sub_u32 v17, 31, v17")
        o(f"v_cndmask_b32 v16, v16, v17, s[{40+2*i}:{41+2*i}]")
        o(f"v_cmp_gt_u32 vcc, 32, v16")
        o(f"v_lshlrev_b32 v16, 2, v16")
        o(f"v_lshl_add_u32 v{38+i}, v{26+i}, 7, v16")
        if i == 4: o("s_and_b64 vcc, vcc, s[36:37]")
        o(f"s_mov_b64 s[{40+2*i}:{41+2*i}], vcc")
    for i in range(5):
        o(f"s_mov_b64 exec, s[{40+2*i}:{41+2*i}]")
        o(f"ds_write_b32 v{38+i}, v{4+i}")
    o("s_mov_b64 exec, -1")
    o("s_waitcnt lgkmcnt(0)"); o("s_barrier")
    if WARM and not PDO and PR:
        srd(48, 6, E * 32); o(f"s_mul_i32 s52, s2, {PR*8192}")
        for i in range(PR):
            o(f"buffer_load_dwordx4 {vr(64+4*i,4)}, v2, s[48:51], s52 offen")
            o("s_add_u32 s52, s52, 8192")
    stamp(2)
    o("v_lshrrev_b32 v3, 3, v0")
    o("v_lshlrev_b32 v16, 2, v3")
    for i in range(4):
        o(f"ds_read_b128 {vr(44+4*i,4)}, v2 offset:{i*8192}")
        o(f"ds_read_b32 v{60+i}, v16 offset:{32768 + i*256}")
    o("v_and_b32 v17, 7, v0")
    o("v_cmp_eq_u32 vcc, 0, v17")
    o("v_lshlrev_b32 v17, 4, v17")
    o("v_lshl_add_u32 v17, v3, 13, v17")
    o("v_cndmask_b32 v18, -1, -2, vcc") if False else None
    o("v_mov_b32 v18, -2")
    o("v_cndmask_b32 v18, -1, v18, vcc")
    o("s_lshl_b32 s22, s2, 7")
    for i in range(4):
        o(f"s_waitcnt lgkmcnt({2*(3-i)})")
        o(f"v_add_u32_sdwa v{60+i}, v{60+i}, v{60+i} dst_sel:DWORD dst_unused:UNUSED_PAD src0_sel:WORD_0 src1_sel:WORD_1")
        o(f"v_cmp_lt_u32 vcc, 32, v{60+i}")
        o(f"s_add_u32 s23, s22, {i*64*8192}")
        o("s_nop 0")
        o(f"v_cndmask_b32 v{44+4*i}, v{44+4*i}, v18, vcc")
        for c in range(1, 4):
            o(f"v_cndmask_b32 v{44+4*i+c}, v{44+4*i+c}, v20, vcc")
        o(f"buffer_store_dwordx4 {vr(44+4*i,4)}, v17, s[32:35], s23 offen {CFLG}")
    if PDO:
        srd(48, 6, E * 32)
        o(f"s_mul_i32 s52, s2, {PR*8192}")
        for i in range(PR):
            o(f"buffer_load_dwordx4 {vr(68+4*i,4)}, v2, s[48:51], s52 offen")
            o("s_add_u32 s52, s52, 8192")
    touch("P", 110, False)
    stamp(3); stamp_out(0, 0)
    o("s_endpgm")
    lab("K1_GEMM")
    o(f"s_sub_u32 s3, s2, {NPROD}")
    o("v_lshlrev_b32 v1, 4, v0")
    o("v_lshrrev_b32 v2, 4, v0")
    o("v_mul_u32_u24 v2, 320, v2")
    o("v_and_b32 v3, 15, v0")
    o("v_lshl_add_u32 v2, v3, 4, v2")
    o("v_lshrrev_b32 v4, 6, v0")
    o("v_and_b32 v5, 63, v0")
    o("v_readfirstlane_b32 s36, v4")
    o("s_waitcnt lgkmcnt(0)")
    o(f"s_cmp_eq_u32 s3, {NG}")
    o("s_cselect_b32 s22, 0, 32768")
    o("s_cselect_b32 s28, s12, s14"); o("s_cselect_b32 s29, s13, s15")
    o("s_mov_b32 s30, 32768"); o("s_mov_b32 s31, 0x00020000")
    srd(24, 16, 272 * 256)
    srd(32, 4, N * 256)
    o("s_lshr_b32 s37, s36, 2"); o("s_and_b32 s38, s36, 3")
    o("s_lshl_b32 s39, s3, 1"); o("s_add_u32 s39, s39, s37")
    o("s_lshl_b32 s40, s3, 14")
    o("v_and_b32 v6, 31, v5"); o("v_lshrrev_b32 v7, 5, v5")
    o("s_add_u32 s41, s40, 8192")
    o("buffer_load_dwordx4 v[48:51], v1, s[32:35], s40 offen")
    o("buffer_load_dwordx4 v[52:55], v1, s[32:35], s41 offen")
    for i in range(4):
        o(f"s_add_u32 s23, s22, {i*8192}")
        o(f"buffer_load_dwordx4 {vr(16+4*i,4)}, v1, s[24:27], s23 offen")
    for i in range(4):
        o(f"s_mov_b32 s23, {i*8192}")
        o(f"buffer_load_dwordx4 {vr(32+4*i,4)}, v1, s[28:31], s23 offen")
    o("v_lshrrev_b32 v12, 4, v0"); o("v_mul_u32_u24 v12, 272, v12"); o("v_lshl_add_u32 v12, v3, 4, v12")
    o("v_add_u32 v12, 81920, v12")
    o("s_lshl_b32 s41, s37, 5"); o("v_add_u32 v8, s41, v6"); o("v_mul_u32_u24 v8, 272, v8")
    o("v_lshl_add_u32 v8, v7, 4, v8"); o("v_add_u32 v8, 81920, v8")
    o("v_bfe_u32 v9, v5, 2, 2")
    o("v_lshl_add_u32 v9, v7, 3, v9")
    o("v_mul_u32_u24 v9, 320, v9")
    o("v_bfe_u32 v10, v5, 4, 1"); o("v_lshl_add_u32 v9, v10, 5, v9")
    o("v_and_b32 v10, 3, v5"); o("v_lshl_add_u32 v9, v10, 3, v9")
    o("s_lshl_b32 s41, s38, 6"); o("v_add_u32 v9, s41, v9")
    o("v_add_u32 v10, 40960, v9")
    o("v_add_u32 v11, 40960, v2")
    o("s_waitcnt vmcnt(9)"); o("ds_write_b128 v12, v[48:51]")
    o("s_waitcnt vmcnt(8)"); o(f"ds_write_b128 v12, v[52:55] offset:{32*272}")
    for i in range(4):
        o(f"s_waitcnt vmcnt({7-i})")
        o(f"ds_write_b128 v2, {vr(16+4*i,4)} offset:{i*10240}")
    o("s_waitcnt lgkmcnt(0)"); o("s_barrier")
    stamp(1)
    W1, W2 = 80, 112
    AQ, AH = 16, 144
    def frags(W, va, xs):
        for s in range(8):
            if xs: o(f"ds_read_b128 {vr(48+4*s,4)}, v8 offset:{32*s}")
            for u in range(2):
                o(f"ds_read_b64_tr_b16 {vr(W+4*s+2*u,2)}, {va} offset:{(16*s+4*u)*320}")
            n = 3 if xs else 2
            if s >= 3:
                o(f"s_waitcnt lgkmcnt({3*n})"); yield s - 3
        for s in range(5, 8):
            o(f"s_waitcnt lgkmcnt({(7-s)*n})"); yield s
    for s in frags(W1, "v9", True): mfma(AQ, 48+4*s, W1+4*s, None if s == 0 else AQ)
    for i in range(4):
        o(f"s_waitcnt vmcnt({3-i})")
        o(f"ds_write_b128 v11, {vr(32+4*i,4)} offset:{i*10240}")
    srd(44, 20, TABLE_BYTES, TABLE_OFF)
    o("s_lshl_b32 s40, s39, 14")
    o("s_lshl_b32 s41, s38, 7"); o("s_add_u32 s40, s40, s41")
    o(f"s_mov_b32 s42, {hex(NLOG2E)}"); o("s_mov_b32 s43, 0xffff0000")
    touch("G", 13, True)
    o("s_waitcnt lgkmcnt(0)"); o("s_barrier")
    stamp(2)
    for s in frags(W2, "v10", False):
        mfma(AH, 48+4*s, W2+4*s, None if s == 0 else AH)
        for v in range(2*s, 2*s+2): o(f"v_mul_f32 v{AQ+v}, s42, v{AQ+v}")
    o(f"s_cmp_eq_u32 s3, {NG}"); o("s_cbranch_scc1 K1_PACK")
    o("v_lshlrev_b32 v8, 11, v7"); o("v_lshl_add_u32 v8, v6, 2, v8")
    o("s_nop 5")
    for v in range(16):
        t = 32 + 2 * (v % 4)
        o(f"v_cvt_pk_bf16_f32 v{t}, v{AQ+v}, v{AH+v}")
        o(f"v_and_b32 v{t+1}, s43, v{t}")
        o(f"v_sub_f32 v{t}, v{t+1}, v{t}")
        o(f"v_add_f32 v{AH+v}, v{AH+v}, v{t}")
        o(f"v_cvt_pk_bf16_f32 v{AH+v}, v{AQ+v}, v{AH+v}")
        if v % 4 == 0: o(f"s_add_u32 s41, s40, {4096*(v//4)}")
        o(f"buffer_store_dword v{AH+v}, v8, s[44:47], s41 offen offset:{512*(v%4)} {TFLG}")
    stamp(3); stamp_out(0, 1)
    o("s_endpgm")
    lab("K1_PACK")
    srd(28, 20, 0x11000, WPACK_OFF)
    o("v_lshlrev_b32 v8, 4, v5")
    o("s_cmp_eq_u32 s37, 0"); o("s_cbranch_scc0 K1_PACKC")
    o("s_lshl_b32 s40, s38, 13")
    for s in range(8):
        if s % 4 == 0:
            o(f"s_add_u32 s41, s40, {s*1024}"); o(f"s_add_u32 s42, s40, {s*1024 + 32768}")
        o(f"buffer_store_dwordx4 {vr(W1+4*s,4)}, v8, s[28:31], s41 offen offset:{(s%4)*1024}")
        o(f"buffer_store_dwordx4 {vr(W2+4*s,4)}, v8, s[28:31], s42 offen offset:{(s%4)*1024}")
    o("s_endpgm")
    lab("K1_PACKC")
    o("v_lshlrev_b32 v12, 11, v7"); o("v_lshl_add_u32 v12, v6, 1, v12")
    o("s_lshl_b32 s40, s38, 6"); o("s_add_u32 s40, s40, 65536")
    for i in range(8):
        o(f"buffer_load_ushort v{16+i}, v12, s[24:27], s40 offen offset:{256*i}")
    o(f"s_mov_b32 s42, {hex(NLOG2E)}")
    o("s_waitcnt vmcnt(0)")
    for i in range(8):
        o(f"v_lshlrev_b32 v{16+i}, 16, v{16+i}")
        o(f"v_mul_f32 v{16+i}, s42, v{16+i}")
    for i in range(4):
        o(f"v_cvt_pk_bf16_f32 v{24+i}, v{16+2*i}, v{17+2*i}")
    o("s_lshl_b32 s40, s38, 10"); o("s_add_u32 s40, s40, 65536")
    o("buffer_store_dwordx4 v[24:27], v8, s[28:31], s40 offen")
    o("s_endpgm")
    if WARM:
        lab("K1_WARM")
        o("v_lshlrev_b32 v2, 4, v0")
        o(f"s_sub_u32 s3, s2, {NPROD + NG + 1}"); o(f"s_mul_i32 s52, s3, {XR*8192}"); o(f"s_add_u32 s52, s52, {NPROD*PR*8192}")
        o("s_waitcnt lgkmcnt(0)")
        srd(48, 6, E * 32)
        for i in range(XR):
            o(f"buffer_load_dwordx4 {vr(16+4*i,4)}, v2, s[48:51], s52 offen")
            o("s_add_u32 s52, s52, 8192")
        if 'wo' in sys.argv:
            srd(44, 18, N * 256); o(f"s_mul_i32 s52, s3, {10*8192}")
            for i in range(10):
                o(f"buffer_load_dwordx4 {vr(100+4*i,4)}, v2, s[44:47], s52 offen")
                o("s_add_u32 s52, s52, 8192")
        o("s_waitcnt vmcnt(0)")
        stamp_out(0, 2)
    lab("K1_END")
    o("s_endpgm")

CAP = 12
POOL = 0; POOL_BYTES = 32768
LUT = 32768; CNT = LUT + 4096; XS = CNT + 64
PX = XS + 40 * 272; UX = PX + 16384; EB = UX + 32768; K2_LDS = EB + 4 * CAP * 1024
ALT = "alt" in sys.argv
OFLG = ([a[2:].replace("_", " ") for a in sys.argv if a.startswith("of")] + [""])[0]
EFLG = ([a[2:].replace("_", " ") for a in sys.argv if a.startswith("ef")] + [""])[0]
GFLG = ([a[2:].replace("_", " ") for a in sys.argv if a.startswith("gf")] + [""])[0]
PFT = ([int(a[3:]) for a in sys.argv if a.startswith("pft")] + [0])[0]
PRIO = ([int(a[4:]) for a in sys.argv if a.startswith("prio")] + [0])[0]
def k2():
    kn = NAME + "_kernel"
    kstart(kn)
    o("s_cmp_ge_u32 s2, 256"); o("s_cbranch_scc1 K2_END")
    o("s_load_dwordx16 s[4:19], s[0:1], 0")
    o("s_load_dwordx2 s[20:21], s[0:1], 72")
    stamp_init()
    o("v_bfe_u32 v15, v0, 3, 6"); o("v_and_b32 v9, 7, v0"); o("v_lshlrev_b32 v9, 3, v9")
    o("v_lshl_add_u32 v9, v15, 7, v9"); o("v_lshrrev_b32 v4, 9, v0"); o("v_lshl_add_u32 v9, v4, 6, v9")
    o("v_lshrrev_b32 v4, 6, v0"); o("v_and_b32 v1, 63, v0")
    o("v_lshlrev_b32 v8, 4, v0")
    o("v_readfirstlane_b32 s3, v4")
    o("v_and_b32 v6, 31, v1"); o("v_lshrrev_b32 v7, 5, v1")
    o("s_lshr_b32 s60, s3, 2"); o("s_and_b32 s61, s3, 3")
    o("s_lshl_b32 s22, s2, 13")
    o("s_waitcnt lgkmcnt(0)")
    sW, sX, sE, sT, sO = 24, 28, 32, 36, 40
    srd(sW, 20, WPACK_OFF + 0x11000)
    EN = 12
    G = [80, 96, 112]; Z, ACC, RO, FR, EF, PF, CF = 16, 32, 48, 56, 68, 72, 76
    WF = [112 + 4*s for s in range(4)] + [56 + 4*s for s in range(4)]
    o(f"buffer_load_dwordx2 {vr(EN,2)}, v9, s[{sW}:{sW+3}], s22 offen")
    srd(sX, 4, N * 256)
    o("v_lshrrev_b32 v10, 4, v0"); o("v_and_b32 v11, 15, v0")
    o("v_lshlrev_b32 v5, 16, v10"); o("v_lshl_add_u32 v5, v11, 4, v5")
    o("s_lshl_b32 s62, s2, 8")
    o("s_cmp_ge_u32 s3, 10"); o("s_cbranch_scc1 K2_NOX")
    o(f"buffer_load_dwordx4 {vr(ACC,4)}, v5, s[{sX}:{sX+3}], s62 offen")
    lab("K2_NOX")
    o("v_lshlrev_b32 v14, 4, v1")
    o("s_lshl_b32 s63, s61, 10"); o(f"s_add_u32 s63, s63, {hex(WPACK_OFF+65536)}")
    o(f"buffer_load_dwordx4 {vr(CF,4)}, v14, s[{sW}:{sW+3}], s63 offen")
    def wload():
        o("s_cmp_ge_u32 s3, 8"); o("s_cbranch_scc1 K2_NOW")
        o("s_lshl_b32 s63, s3, 13"); o(f"s_add_u32 s63, s63, {hex(WPACK_OFF)}"); o("s_add_u32 s64, s63, 4096")
        for s in range(8):
            o(f"buffer_load_dwordx4 {vr(WF[s],4)}, v14, s[{sW}:{sW+3}], s{63 + s//4} offen offset:{(s%4)*1024}")
        lab("K2_NOW")
    WP = ([int(a[2:]) for a in sys.argv if a.startswith("wp")] + [0])[0]
    if WP == 0: wload()
    srd(sE, 6, E * 32); srd(sT, 20, TABLE_BYTES, TABLE_OFF); srd(sO, 18, N * 256)
    PW = ([int(a[2:]) for a in sys.argv if a.startswith("pw")] + [12])[0]
    if PFT:
        o(f"s_cmp_lt_u32 s3, {PW}"); o("s_cbranch_scc1 K2_NOPF")
        o("v_lshlrev_b32 v23, 7, v1")
        o("s_lshr_b32 s63, s2, 3"); o(f"s_mul_i32 s63, s63, {16-PW}"); o("s_add_u32 s63, s63, s3"); o(f"s_sub_u32 s63, s63, {PW}")
        o(f"s_mul_i32 s63, s63, {PFT*8192}")
        for i in range(PFT):
            o(f"buffer_load_dword v{G[2]}, v23, s[{sT}:{sT+3}], s63 offen")
            if i < PFT-1: o("s_add_u32 s63, s63, 8192")
        lab("K2_NOPF")
    for i in range(4):
        o(f"v_bfe_u32 v{16+i}, v0, {2*i}, 1"); o(f"v_bfe_u32 v20, v0, {2*i+1}, 1")
        o(f"v_lshl_or_b32 v{16+i}, v20, 16, v{16+i}")
        o(f"v_mul_u32_u24 v{16+i}, 0x3f80, v{16+i}")
    o("s_cmp_ge_u32 s3, 4"); o("s_cbranch_scc1 K2_NOLUT")
    o(f"ds_write_b128 v8, v[16:19] offset:{LUT}")
    lab("K2_NOLUT")
    o("s_lshl_b32 s63, s61, 7")
    o("v_lshlrev_b32 v2, 2, v6"); o("v_add_u32 v2, s63, v2")
    o("v_mov_b32 v3, v2")
    o(f"v_mul_u32_u24 v15, {CH}, v15")
    if 'xb' in sys.argv: o("s_lshl_b32 s63, s2, 9"); o("v_mov_b32 v15, s63")
    o("s_mov_b32 s72, 0")
    o("s_mov_b32 s73, 0")
    def pool_init():
        o("v_and_b32 v20, 16, v0"); o("v_cmp_eq_u32 vcc, 0, v20")
        o(f"v_mov_b32 v21, {hex(OOB)}"); o("v_mov_b32 v28, 0")
        o("v_cndmask_b32 v24, 0, v21, vcc")
        o("v_mov_b32 v29, 0"); o("v_mov_b32 v30, 0"); o("v_mov_b32 v31, 0")
        o("v_mov_b32 v25, v24"); o("v_mov_b32 v26, v24"); o("v_mov_b32 v27, v24")
        o(f"v_mov_b32 v20, {CNT}")
        for i in range(2):
            o(f"ds_write_b128 v8, v[24:27] offset:{POOL + i*16384}")
        o("ds_write_b128 v20, v[28:31]")
        o(f"v_add_u32 v21, {EB}, v8")
        for i in range(3): o(f"ds_write_b128 v21, v[28:31] offset:{i*16384}")
    if WP == 1: wload()
    pool_init()
    if WP == 2: wload()
    o("ds_write_b32 v20, v28 offset:16")
    o("v_mov_b32 v22, 1")
    o("v_mul_u32_u24 v5, 272, v10"); o("v_lshl_add_u32 v5, v11, 4, v5")
    o("s_mov_b32 s78, 1.0"); o("s_mov_b32 s79, 1.0")
    o("s_waitcnt lgkmcnt(0)"); o("s_barrier")
    if WP == 3: wload()
    o("s_cmp_ge_u32 s3, 8"); o("s_cbranch_scc1 K2_XW1")
    o("s_waitcnt vmcnt(9)"); o("s_branch K2_XW2")
    lab("K2_XW1"); o(f"s_waitcnt vmcnt({1+PFT})")
    if PFT: o(f"s_cmp_ge_u32 s3, {PW}"); o("s_cbranch_scc1 K2_B1"); o("s_waitcnt vmcnt(1)")
    o("s_cmp_ge_u32 s3, 10"); o("s_cbranch_scc1 K2_B1")
    lab("K2_XW2")
    o(f"ds_write_b128 v5, {vr(ACC,4)} offset:{XS}")
    o("s_mov_b64 exec, 1"); o("ds_add_u32 v20, v22 offset:16"); o("s_mov_b64 exec, -1")
    lab("K2_B1")
    if not ALT: stamp(1)
    o(f"v_cmp_eq_u32 vcc, -2, v{EN}")
    o("s_cbranch_vccz K2_COMPACT")
    o(f"v_mov_b32 v20, {CNT}"); o("v_mov_b32 v21, 1"); o("ds_write_b32 v20, v21 offset:8")
    lab("K2_COMPACT")
    o("s_setprio 3")
    o("v_and_b32 v20, 1, v0"); o("v_lshlrev_b32 v20, 4, v20"); o(f"v_mov_b32 v21, {hex(OOB)}")
    for i in range(2):
        e = EN + i
        o(f"v_cmp_gt_u32 s[{74+2*i}:{75+2*i}], -2, v{e}")
        o(f"v_lshrrev_b32 v{22+i}, 20, v{e}"); o(f"v_add_lshl_u32 v{22+i}, v{22+i}, v15, 5")
    for i in range(2):
        o(f"v_cndmask_b32 v{22+i}, v21, v{22+i}, s[{74+2*i}:{75+2*i}]")
    o("s_nop 0")
    for i in range(2):
        for p, qp in enumerate(["[0,0,2,2]", "[1,1,3,3]"]):
            o(f"v_add_u32_dpp v{G[1]+4*(2*i+p)}, v{22+i}, v20 quad_perm:{qp} row_mask:0xf bank_mask:0xf")
    def eload():
        for i in range(4):
            o(f"buffer_load_dwordx4 {vr(G[1]+4*i,4)}, v{G[1]+4*i}, s[{sE}:{sE+3}], 0 offen {EFLG}")
    EW = ([int(a[2:]) for a in sys.argv if a.startswith("ew")] + [8])[0]
    o(f"s_cmp_ge_u32 s3, {EW}"); o("s_cbranch_scc1 K2_ELATE")
    eload()
    lab("K2_ELATE")
    if not ALT: stamp(2)
    for i in range(2):
        e = EN + i
        o(f"v_and_b32 v{16+i}, 3, v{e}")
        o(f"v_lshlrev_b32 v{18+i}, 3, v{16+i}")
        o(f"v_bfm_b32 v{20+i}, 1, v{18+i}")
        o(f"v_cndmask_b32 v{20+i}, 0, v{20+i}, s[{74+2*i}:{75+2*i}]")
    o("v_add_u32 v22, v20, v21"); o("v_mov_b32 v23, v22")
    fill = []
    for i in range(2):
        e = EN + i
        fill += [f"v_bfe_u32 v{24+2*i}, v{e}, 6, 14", f"v_lshlrev_b32 v{24+2*i}, 9, v{24+2*i}",
                 f"v_bfe_u32 v{28+i}, v{e}, 2, 4", f"v_bfe_u32 v{30+i}, v{e}, 5, 1",
                 f"v_and_b32 v{25+2*i}, 3, v{28+i}", f"v_lshl_or_b32 v{25+2*i}, v{30+i}, 2, v{25+2*i}"]
    dpp = ["row_shr:1", "row_shr:2", "row_shr:4", "row_shr:8"]
    for j, d in enumerate(dpp):
        o(fill[2*j]); o(fill[2*j+1])
        o(f"v_add_u32_dpp v23, v23, v23 {d} row_mask:0xf bank_mask:0xf bound_ctrl:0")
    o(fill[8]); o(fill[9])
    o("v_add_u32_dpp v23, v23, v23 row_bcast:15 row_mask:0xa bank_mask:0xf")
    o(fill[10]); o(fill[11])
    o("v_add_u32_dpp v23, v23, v23 row_bcast:31 row_mask:0xc bank_mask:0xf")
    o("s_nop 0")
    o("v_readlane_b32 s64, v23, 63")
    o("v_sub_u32 v23, v23, v22")
    o("s_and_b32 s65, s64, 0xff"); o("s_bfe_u32 s66, s64, 0x80008"); o("s_lshl_b32 s66, s66, 16"); o("s_or_b32 s65, s65, s66")
    o("s_bfe_u32 s66, s64, 0x80010"); o("s_lshr_b32 s67, s64, 24"); o("s_lshl_b32 s67, s67, 16"); o("s_or_b32 s66, s66, s67")
    o("v_mov_b32 v48, s65"); o("v_mov_b32 v49, s66"); o(f"v_mov_b32 v50, {CNT}")
    o("s_mov_b64 exec, 1")
    o("ds_add_rtn_u64 v[48:49], v50, v[48:49]")
    o("s_mov_b64 exec, -1")
    o("v_add_u32 v22, v23, v20")
    o("v_bfe_u32 v20, v23, v18, 8"); o("v_bfe_u32 v21, v22, v19, 8")
    for i in range(2):
        o(f"v_bfm_b32 v{30+i}, 1, v{25+2*i}")
        o(f"v_bfe_u32 v{22+i}, v{28+i}, 2, 1"); o(f"v_lshlrev_b32 v{22+i}, 7, v{22+i}")
        o(f"v_lshlrev_b32 v{18+i}, 1, v{18+i}")
        o(f"v_mul_u32_u24 v{16+i}, {CAP*512}, v{16+i}")
    o(f"s_movk_i32 s68, {CAP*32}")
    o("s_waitcnt lgkmcnt(0)")
    o("v_readfirstlane_b32 s64, v48"); o("v_readfirstlane_b32 s65, v49")
    o("s_nop 1")
    for i in range(2):
        o(f"v_lshrrev_b64 v[48:49], v{18+i}, s[64:65]")
        o("v_and_b32 v48, 0xffff, v48"); o(f"v_add_u32 v48, v48, v{20+i}")
        o("v_cmp_gt_u32 vcc, s68, v48")
        o("v_lshrrev_b32 v49, 5, v48"); o("v_and_b32 v48, 31, v48")
        o(f"v_lshl_add_u32 v49, v49, 9, v{16+i}")
        o("v_lshl_add_u32 v50, v48, 2, v49")
        o(f"v_add_u32 v51, v50, v{22+i}")
        o("v_lshrrev_b32 v52, 3, v48"); o("v_and_b32 v53, 3, v48")
        o("v_lshl_or_b32 v52, v52, 2, v53"); o("v_lshlrev_b32 v52, v52, v0") if False else None
        o("v_lshl_or_b32 v52, v52, 2, v53") if False else None
        o("v_add_u32 v52, 8, v52"); o("v_bfm_b32 v52, 1, v52")
        o("v_bfe_u32 v53, v48, 2, 1"); o("v_lshl_add_u32 v53, v53, 7, v49")
        o(f"v_lshl_add_u32 v53, v{28+i}, 2, v53")
        o(f"v_bfrev_b32 v{EN+i}, 1")
        o("v_lshlrev_b32 v48, 4, v48")
        o(f"s_and_b64 exec, vcc, s[{74+2*i}:{75+2*i}]")
        o(f"v_lshl_add_u32 v{EN+i}, v49, 1, v48")
        o(f"ds_write_b32 v50, v{24+2*i}")
        o(f"ds_or_b32 v51, v{30+i} offset:256")
        o("ds_or_b32 v53, v52 offset:256")
        o("s_mov_b64 exec, -1")
    o(f"v_mov_b32 v17, {CNT}"); o("v_mov_b32 v16, 0x10000")
    o("s_mov_b64 exec, 1")
    o("ds_add_u32 v17, v16 offset:12")
    o("s_mov_b64 exec, -1")
    if not ALT: stamp(3)
    o(f"s_cmp_lt_u32 s3, {EW}"); o("s_cbranch_scc1 K2_EEARLY")
    eload()
    lab("K2_EEARLY")
    o("s_setprio 0")
    o("s_cmp_lg_u32 s72, 0"); o("s_cbranch_scc1 K2_B2")
    o("s_cmp_ge_u32 s3, 8"); o("s_cbranch_scc1 K2_B2")
    o("v_and_b32 v9, 15, v1"); o("v_min_u32 v9, 9, v9"); o("v_bfe_u32 v73, v1, 4, 1")
    o("v_lshl_add_u32 v9, v9, 2, v73"); o("v_mul_u32_u24 v9, 272, v9"); o("v_lshl_add_u32 v9, v7, 4, v9")
    lab("K2_SPINX")
    o("ds_read_b32 v16, v17 offset:16")
    o("s_waitcnt lgkmcnt(0)")
    o("v_readfirstlane_b32 s70, v16")
    o("s_cmp_lg_u32 s70, 10"); o("s_cbranch_scc1 K2_SPINX")
    XB = [G[0], G[0]+4, G[0]+8, G[0]+12, RO, RO+4, PF]
    def xrd(i): o(f"ds_read_b128 {vr(XB[i%7],4)}, v9 offset:{XS + 32*(i>>1) + 544*(i&1)}")
    for i in range(6): xrd(i)
    o("s_waitcnt vmcnt(4)")
    for i in range(16):
        if i + 6 < 16: xrd(i + 6)
        o(f"s_waitcnt lgkmcnt({min(6, 15-i)})")
        D = ACC if i & 1 else Z
        mfma(D, XB[i%7], WF[i>>1], None if i < 2 else D)
    o("s_cmp_ge_u32 s3, 4"); o("s_cbranch_scc1 K2_UOUT")
    o(f"s_mov_b32 s65, {hex(NLOG2E)}")
    o("s_lshl_b32 s70, s61, 10"); o("v_add_u32 v72, s70, v14")
    o("s_nop 7")
    for v in range(32): o(f"v_mul_f32 v{Z+v}, s65, v{Z+v}")
    for i in range(16): o(f"v_cvt_pk_bf16_f32 v{Z+i}, v{Z+2*i}, v{Z+2*i+1}")
    for l in range(4): o(f"ds_write_b128 v72, {vr(Z+4*l,4)} offset:{PX + l*4096}")
    o("s_branch K2_B2")
    lab("K2_UOUT")
    o("s_lshl_b32 s70, s61, 11"); o(f"s_add_u32 s70, s70, {UX}"); o("v_add_u32 v72, s70, v14")
    o("s_nop 8")
    for l in range(4):
        for hf in range(2): o(f"ds_write_b128 v72, {vr(Z+8*l+4*hf,4)} offset:{l*8192 + hf*1024}")
    lab("K2_B2")
    if not ALT: stamp(4)
    o(f"v_mov_b32 v48, {CNT}")
    o(f"s_mul_i32 s66, s60, {CAP*512}")
    o("v_lshl_add_u32 v4, v7, 4, s66")
    o("v_lshl_add_u32 v5, v1, 2, s66")
    o(f"s_lshl_b32 s66, s66, 1"); o(f"s_add_u32 s66, s66, {EB}")
    o("v_add_u32 v10, s66, v14")
    lab("K2_SPINA")
    o("ds_read_b128 v[52:55], v48")
    o("s_waitcnt lgkmcnt(0)")
    o("v_readfirstlane_b32 s70, v55")
    o("s_cmp_lt_u32 s70, 0x100000"); o("s_cbranch_scc1 K2_SPINA")
    o("v_readfirstlane_b32 s64, v52"); o("v_readfirstlane_b32 s65, v53"); o("v_readfirstlane_b32 s69, v54")
    o("s_and_b32 s70, s64, 0xffff"); o("s_lshr_b32 s71, s64, 16"); o("s_max_u32 s70, s70, s71")
    o("s_and_b32 s71, s65, 0xffff"); o("s_max_u32 s70, s70, s71"); o("s_lshr_b32 s71, s65, 16"); o("s_max_u32 s70, s70, s71")
    o("s_cmp_gt_u32 s70, s68"); o("s_cselect_b32 s69, 1, s69")
    o("s_cmp_lg_u32 s69, 0"); o("s_cbranch_scc1 K2_BAD")
    o("s_lshl_b32 s70, s60, 4"); o("s_lshr_b64 s[64:65], s[64:65], s70"); o("s_and_b32 s64, s64, 0xffff")
    o("s_add_u32 s64, s64, 31"); o("s_lshr_b32 s64, s64, 5")
    if ALT: stamp(1)
    if PRIO and PRIO < 4: o("s_setprio 3")
    if PRIO in (4, 5, 7, 8): o("s_setprio 2")
    if PRIO == 6: o("s_setprio 3")
    MK = [11, 12, 13]
    def issue_a():
        for c in range(2): o(f"ds_read_b128 {vr(RO+4*c,4)}, v4 offset:{32*c}")
    def issue_b(k, first):
        for hf in range(2):
            if hf == 1:
                for c in range(2):
                    o(f"ds_read_b128 {vr(RO+4*c,4)}, v4 offset:{32*(2+c)}")
                o(f"ds_read_b32 v{MK[k]}, v5 offset:256")
            for c in range(2):
                if hf == 1 or first: o(f"s_waitcnt lgkmcnt({1-c+hf})")
                for i in range(0, 4, 2):
                    o(f"v_lshl_add_u64 {vr(RO+4*c+i,2)}, {vr(RO+4*c+i,2)}, 0, v[2:3]")
                for i in range(0 if 'nold' in sys.argv else 4):
                    o(f"buffer_load_dword v{G[k]+8*hf+4*c+i}, v{RO+4*c+i}, s[{sT}:{sT+3}], 0 offen {GFLG}")
        o("v_add_u32 v4, 512, v4"); o("v_add_u32 v5, 512, v5")
    ER = ([int(a[2:]) for a in sys.argv if a.startswith("er")] + [2])[0]
    o("v_and_b32 v16, 1, v0"); o("v_lshlrev_b32 v16, 9, v16"); o(f"v_add_u32 v16, {EB}, v16")
    o(f"v_mov_b32 v17, {CNT}")
    for i in range(2):
        for p, qp in enumerate(["[0,0,2,2]", "[1,1,3,3]"]):
            o(f"v_add_u32_dpp v{18+2*i+p}, v{EN+i}, v16 quad_perm:{qp} row_mask:0xf bank_mask:0xf")
    o("v_mov_b32 v16, 1")
    o(f"s_cmp_lt_u32 s60, {ER}"); o("s_cselect_b32 s69, s64, 0")
    o("s_cmp_eq_u32 s69, 0"); o("s_cbranch_scc1 K2_EW0")
    lab("K2_I0")
    issue_a(); issue_b(0, True)
    if ALT: stamp(2)
    o("s_cmp_eq_u32 s69, 0"); o("s_cbranch_scc1 K2_I1")
    o("s_waitcnt vmcnt(16)"); o("s_branch K2_EW")
    lab("K2_EW0")
    o("s_waitcnt vmcnt(0)")
    lab("K2_EW")
    for i in range(4):
        o(f"v_cmpx_le_i32 vcc, 0, v{18+i}")
        o(f"ds_write_b128 v{18+i}, {vr(G[1]+4*i,4)}")
        o("s_mov_b64 exec, -1")
    o("s_mov_b64 exec, 1")
    o("s_waitcnt lgkmcnt(0)")
    o("ds_add_u32 v17, v16 offset:12")
    o("s_mov_b64 exec, -1")
    if ALT: stamp(3)
    o("s_cmp_lg_u32 s69, s64"); o("s_cbranch_scc1 K2_I0")
    lab("K2_I1")
    if PRIO in (2, 3): o("s_setprio 2")
    if PRIO == 4: o("s_setprio 1")
    o("s_cmp_lt_u32 s64, 2"); o("s_cbranch_scc1 K2_SPIN")
    issue_a(); issue_b(1, True)
    lab("K2_SPIN")
    if PRIO in (1, 2): o("s_setprio 1")
    lab("K2_SPINE")
    o("ds_read_b32 v16, v17 offset:12")
    o("s_waitcnt lgkmcnt(0)")
    o("v_readfirstlane_b32 s70, v16")
    o("s_cmp_lg_u32 s70, 0x100010"); o("s_cbranch_scc1 K2_SPINE")
    o("s_cmp_lg_u32 s73, 0"); o("s_cbranch_scc1 K2_LOOP0")
    o("s_mov_b32 s73, 1")
    o("s_lshl_b32 s70, s3, 10"); o("v_add_u32 v18, s70, v14")
    o(f"ds_read_b128 {vr(PF,4)}, v18 offset:{PX}")
    o("s_lshl_b32 s70, s3, 11"); o(f"s_add_u32 s70, s70, {UX}"); o("v_add_u32 v18, s70, v14")
    o(f"ds_read_b128 {vr(ACC,4)}, v18"); o(f"ds_read_b128 {vr(ACC+4,4)}, v18 offset:1024")
    for v in range(8, 16): o(f"v_mov_b32 v{ACC+v}, 0")
    if ALT: stamp(4)
    PK = "nopk" not in sys.argv
    def body(k):
        g = G[k]
        lab(f"K2_LOOP{k}")
        o("s_cmp_eq_u32 s64, 0"); o("s_cbranch_scc1 K2_BATCH_DONE")
        o(f"ds_read_b128 {vr(EF,4)}, v10")
        for i in range(3):
            o(f"v_lshlrev_b32_sdwa v9, 4, v{MK[k]} dst_sel:DWORD dst_unused:UNUSED_PAD src0_sel:DWORD src1_sel:BYTE_{i}")
            if 'nolut' not in sys.argv: o(f"ds_read_b128 {vr(FR+4*i,4)}, v9 offset:{LUT}")
        issue_a()
        o("v_add_u32 v10, 1024, v10")
        o("s_cmp_eq_u32 s64, 1"); o(f"s_cbranch_scc1 K2_W{k}")
        o("s_waitcnt vmcnt(16)")
        lab(f"K2_C{k}")
        for v in range(0, 16, 2): o(f"v_lshlrev_b64 {vr(Z+v,2)}, 16, {vr(g+v,2)}")
        o("s_sub_u32 s64, s64, 1")
        o("s_waitcnt lgkmcnt(0)")
        mfma(Z, EF, CF, Z); mfma(Z, FR, PF, Z)
        o("s_cmp_lt_u32 s64, 2"); o(f"s_cbranch_scc1 K2_N{k}")
        issue_b((k + 2) % 3, False)
        lab(f"K2_X{k}")
        for v in range(0 if 'notr' in sys.argv else 16): o(f"v_exp_f32 v{Z+v}, v{Z+v}")
        if PK:
            for v in range(0, 16, 2): o(f"v_pk_add_f32 {vr(Z+v,2)}, {vr(Z+v,2)}, s[78:79]")
        else:
            for v in range(16): o(f"v_add_f32 v{Z+v}, 1.0, v{Z+v}")
        for v in range(0 if 'notr' in sys.argv else 16): o(f"v_rcp_f32 v{Z+v}, v{Z+v}")
        if PK:
            for v in range(0, 16, 2): o(f"v_pk_mul_f32 {vr(Z+v,2)}, {vr(Z+v,2)}, {vr(g+v,2)}")
        else:
            for v in range(16): o(f"v_mul_f32 v{Z+v}, v{Z+v}, v{g+v}")
        for i in range(8): o(f"v_cvt_pk_bf16_f32 v{Z+i}, v{Z+2*i}, v{Z+2*i+1}")
        o("s_waitcnt lgkmcnt(0)")
        o("s_nop 0")
        mfma(ACC, FR+4, Z, ACC); mfma(ACC, FR+8, Z+4, ACC)
        if PRIO in (1, 2) and k == 0: o("s_setprio 0")
        if PRIO == 4:
            o("s_cmp_gt_u32 s64, 2"); o(f"s_cbranch_scc1 K2_PR{k}"); o("s_setprio 0")
            lab(f"K2_PR{k}")
        if PRIO == 6: o("s_setprio 2")
        if PRIO == 7:
            o("s_setprio 1"); o("s_cmp_gt_u32 s64, 2"); o(f"s_cbranch_scc1 K2_PR{k}"); o("s_setprio 0")
            lab(f"K2_PR{k}")
        if PRIO == 8:
            o("s_cmp_gt_u32 s64, 4"); o(f"s_cbranch_scc1 K2_PR{k}"); o("s_setprio 1")
            o("s_cmp_gt_u32 s64, 2"); o(f"s_cbranch_scc1 K2_PR{k}"); o("s_setprio 0")
            lab(f"K2_PR{k}")
        if PRIO in (3, 5, 6):
            o("s_cmp_gt_u32 s64, 3"); o(f"s_cbranch_scc1 K2_PR{k}"); o("s_setprio 1")
            o("s_cmp_gt_u32 s64, 1"); o(f"s_cbranch_scc1 K2_PR{k}"); o("s_setprio 0")
            lab(f"K2_PR{k}")
    for k in range(3): body(k)
    o("s_branch K2_LOOP0")
    for k in range(3):
        lab(f"K2_W{k}"); o("s_waitcnt vmcnt(0)"); o(f"s_branch K2_C{k}")
        lab(f"K2_N{k}"); o("s_nop 10"); o(f"s_branch K2_X{k}")
    lab("K2_BAD")
    o("s_cmp_eq_u32 s72, 0"); o("s_cselect_b32 s58, 0, s58"); o("s_movk_i32 s59, 2048"); o("s_cselect_b32 s59, s59, 256")
    o("s_mov_b32 s72, 1"); o("s_branch K2_SCAN")
    lab("K2_BATCH_DONE")
    o("s_cmp_eq_u32 s72, 0"); o("s_cbranch_scc1 K2_EPI")
    o("s_add_u32 s58, s58, s59"); o("s_movk_i32 s59, 2048")
    o(f"s_cmp_ge_u32 s58, {E}"); o("s_cbranch_scc1 K2_EPI")
    lab("K2_SCAN")
    o("s_waitcnt vmcnt(0) lgkmcnt(0)")
    srd(44, 8, E * 4); srd(48, 10, E * 4)
    o("s_lshl_b32 s57, s58, 2"); o("v_lshlrev_b32 v9, 3, v0")
    o("buffer_load_dwordx2 v[48:49], v9, s[48:51], s57 offen")
    o("buffer_load_dwordx2 v[50:51], v9, s[44:47], s57 offen")
    o("s_barrier")
    pool_init()
    o("v_mov_b32 v15, s58")
    o(f"s_sub_u32 s57, {E}, s58"); o("s_min_u32 s57, s57, s59")
    o("s_waitcnt vmcnt(0)")
    for i in range(2):
        o(f"v_lshl_add_u32 v20, v0, 1, {i}")
        o(f"v_and_b32 v21, 0xff, v{48+i}")
        o("v_cmp_eq_u32 vcc, s2, v21"); o("v_cmp_gt_u32 s[66:67], s57, v20")
        o("s_and_b64 vcc, vcc, s[66:67]")
        o(f"v_lshrrev_b32 v21, 8, v{48+i}")
        o(f"v_lshl_or_b32 v21, v{50+i}, 6, v21"); o("v_lshl_or_b32 v21, v20, 20, v21")
        o(f"v_cndmask_b32 v{EN+i}, -1, v21, vcc")
    o("s_waitcnt lgkmcnt(0)"); o("s_barrier")
    o("s_branch K2_COMPACT")
    lab("K2_EPI")
    o("s_waitcnt vmcnt(0) lgkmcnt(0)")
    o(f"s_mov_b32 s65, {hex(NLOG2E)}")
    o("v_lshlrev_b32 v9, 20, v7"); o("v_lshl_add_u32 v9, v6, 1, v9")
    o("s_lshl_b32 s63, s61, 6"); o("s_add_u32 s62, s62, s63"); o("s_lshl_b32 s63, s60, 16"); o("s_add_u32 s62, s62, s63")
    o("s_nop 7")
    for v in range(6): o(f"v_mul_f32 v{Z+v}, s65, v{ACC+v}")
    for v in range(6): o(f"v_exp_f32 v{Z+v}, v{Z+v}")
    for v in range(6): o(f"v_add_f32 v{Z+v}, 1.0, v{Z+v}")
    for v in range(6): o(f"v_rcp_f32 v{Z+v}, v{Z+v}")
    for v in range(6): o(f"v_mul_f32 v{Z+v}, v{Z+v}, v{ACC+v}")
    for v in range(6): o(f"v_cvt_pk_bf16_f32 v{Z+v}, v{Z+v}, v{Z+v}")
    for v in range(6):
        if v == 4: o("s_mov_b32 exec_hi, 0")
        o(f"s_add_u32 s63, s62, {((v&3) + 8*(v>>2)) << 18}")
        o(f"buffer_store_short v{Z+v}, v9, s[{sO}:{sO+3}], s63 offen {OFLG}")
    o("s_lshr_b32 s89, s3, 2") if STAMPS else None
    stamp_out(1, "s89")
    lab("K2_END")
    o("s_endpgm")

header(); k1(); k2()
L.append('.section .rodata,"a"')
kdesc("prep_kernel", 160, 102 if STAMPS else 56); kdesc(NAME + "_kernel", 128, 102 if STAMPS else 80)
out = sys.argv[1] if len(sys.argv) > 1 else "cdna_kernels/%s.s" % NAME
open(out, "w").write("\n".join(x for x in L if x is not None) + "\n")
```

```python
import sys
NAME = "standalone__edge_featured_mpnn_egc__graph"
N, E = 10000, 160000
NPROD, CH = 64, 2500
CELLS_OFF, TABLE_OFF, WPACK_OFF = 0, 0x200000, 0x800000
TABLE_BYTES = N * 512
NG = 157
NLOG2E = 0xBFB8AA3B
OOB = 0x7FFFF000
L = []
def o(s): L.append("    " + s)
def lab(s): L.append(s + ":")
def srd(d, b, nbytes, off=0):
    if off:
        o(f"s_add_u32 s{d}, s{b}, {hex(off)}"); o(f"s_addc_u32 s{d+1}, s{b+1}, 0")
    else:
        o(f"s_mov_b32 s{d}, s{b}"); o(f"s_mov_b32 s{d+1}, s{b+1}")
    o(f"s_mov_b32 s{d+2}, {hex(nbytes)}"); o(f"s_mov_b32 s{d+3}, 0x00020000")
def vr(a, n): return f"v[{a}:{a+n-1}]"
def mfma(d, a, b, c):
    cs = "0" if c is None else vr(c, 16)
    o(f"v_mfma_f32_32x32x16_bf16 {vr(d,16)}, {vr(a,4)}, {vr(b,4)}, {cs}")

STAMPS = "stamps" in sys.argv
def stamp(i):
    if STAMPS: o(f"s_memrealtime s[{90+2*i}:{91+2*i}]")
def stamp_init():
    if STAMPS:
        for i in range(1, 6): o(f"s_mov_b32 s{90+2*i}, 0")
        o("v_lshrrev_b32 v255, 6, v0") if False else None
        stamp(0)
def stamp_out(kid, role):
    if not STAMPS: return
    o("s_waitcnt vmcnt(0)")
    stamp(5)
    o("s_waitcnt lgkmcnt(0)")
    o("s_mov_b64 exec, -1")
    o("v_lshrrev_b32 v1, 6, v0"); o("v_and_b32 v2, 63, v0")
    o("v_lshlrev_b32 v1, 5, v1"); o("v_lshl_add_u32 v1, v2, 2, v1")
    for i in range(6): o(f"v_writelane_b32 v3, s{90+2*i}, {i}")
    o(f"s_mov_b32 s4, {role}"); o("v_writelane_b32 v3, s4, 6")
    o("s_mov_b32 s4, 0xC0FFEE"); o("v_writelane_b32 v3, s4, 7")
    if "dbg" in sys.argv:
        wg, slot, msk = {(0,0): (5, 12, 0xf), (0,1): (100, 0, 0x3f), (1,0): (77, 6, 0x3f)}[(kid, role)]
        o("v_readfirstlane_b32 s5, v1"); o("s_load_dwordx2 s[12:13], s[0:1], 64")
        o("s_waitcnt lgkmcnt(0)")
        o(f"s_add_u32 s8, s12, {512*(1-kid)}"); o("s_addc_u32 s9, s13, 0"); o("s_mov_b32 s10, 256"); o("s_mov_b32 s11, 0x00020000")
        o(f"s_xor_b32 s4, s2, {wg}"); o("s_or_b32 s4, s4, s5"); o("s_cmp_eq_u32 s4, 0"); o(f"s_cbranch_scc0 DBG{kid}{role}")
        o(f"v_lshlrev_b32 v1, 2, v2"); o(f"s_mov_b64 exec, {msk}")
        o(f"buffer_store_dword v3, v1, s[8:11], 0 offen offset:{4*slot}")
        lab(f"DBG{kid}{role}")
        return
    srd(8, 20, 0x100000, 0x4000000 + kid * 512 * 512)
    o("s_lshl_b32 s4, s2, 9")
    o("s_mov_b64 exec, 0xff")
    o("buffer_store_dword v3, v1, s[8:11], s4 offen")

def header():
    src = open("cdna_kernels/%s.s.ref" % NAME).read().split("\n")
    for l in src:
        if l.startswith("; Override"): break
        L.append(l)
    L.append("; @launch kernel=prep_kernel grid=(%d,1,1) block=(512,1,1) lds=%d" % (NPROD + NG + 1 + globals().get("NXW", 0), K1_LDS))
    L.append("; @launch kernel=%s_kernel grid=(256,1,1) block=(1024,1,1) lds=%d" % (NAME, K2_LDS))
    L.append('.amdgcn_target "amdgcn-amd-amdhsa--gfx950"')
    L.append(".text")

def kstart(n):
    L.append(f".globl {n}"); L.append(".p2align 8"); L.append(f".type {n},@function"); lab(n)

def kdesc(n, vg, sg):
    L.append(".p2align 6")
    L.append(f".amdhsa_kernel {n}")
    for k, v in [("next_free_vgpr", vg), ("next_free_sgpr", sg), ("accum_offset", (vg + 3) // 4 * 4),
                 ("group_segment_fixed_size", 0), ("kernarg_size", 80), ("user_sgpr_count", 2),
                 ("user_sgpr_kernarg_segment_ptr", 1), ("system_sgpr_workgroup_id_x", 1)]:
        L.append(f"  .amdhsa_{k} {v}")
    L.append(".end_amdhsa_kernel")

NPF = 0
TFLG = ([a[2:].replace("_", " ") for a in sys.argv if a.startswith("tf")] + [""])[0]
CFLG = ([a[2:].replace("_", " ") for a in sys.argv if a.startswith("cf")] + [""])[0]
WARM = "nowarm" not in sys.argv
NXW = 34 if WARM else 0
XR = ([int(a[2:]) for a in sys.argv if a.startswith('xr')] + [11])[0]
PR = ([int(a[2:]) for a in sys.argv if a.startswith('pq')] + [4])[0]
PDO = 'pdo' in sys.argv
GQ = ([int(a[2:]) for a in sys.argv if a.startswith('gq')] + [0])[0]
K1_LDS = 81920 + 64 * 272
def prefetch_e(va="v1"):
    if not NPF: return
    srd(48, 6, E * 32)
    o("s_mul_i32 s52, s2, 24576")
    for i in range(3):
        o(f"buffer_load_dwordx4 {vr(144+4*i,4)}, {va}, s[48:51], s52 offen")
        if i < 2: o("s_add_u32 s52, s52, 8192")
TLB = "tlb" in sys.argv
def touch(tag, vt, table):
    if not TLB: return
    o(f"v_readfirstlane_b32 s52, v0"); o("s_cmp_lg_u32 s52, 0"); o(f"s_cbranch_scc1 K1_T{tag}")
    srd(48, 6, E * 32)
    o(f"v_mul_u32_u24 v{vt}, 80000, v0")
    o(f"buffer_load_dword v{vt+1}, v{vt}, s[48:51], 0 offen")
    srd(48, 18, N * 256)
    o(f"v_lshrrev_b32 v{vt}, 1, v{vt}")
    o(f"buffer_load_dword v{vt+1}, v{vt}, s[48:51], 0 offen")
    if table:
        o("s_mov_b64 exec, 1")
        o(f"buffer_load_dword v{vt+1}, v{vt}, s[44:47], s40 offen")
        o("s_mov_b64 exec, -1")
    lab(f"K1_T{tag}")
def k1():
    kstart("prep_kernel")
    o(f"s_cmp_ge_u32 s2, {NPROD + NG + 1 + NXW}"); o("s_cbranch_scc1 K1_END")
    o("s_load_dwordx16 s[4:19], s[0:1], 0")
    o("s_load_dwordx2 s[20:21], s[0:1], 72")
    stamp_init()
    if WARM: o(f"s_cmp_ge_u32 s2, {NPROD + NG + 1}"); o("s_cbranch_scc1 K1_WARM")
    o(f"s_cmp_ge_u32 s2, {NPROD}"); o("s_cbranch_scc1 K1_GEMM")
    o("v_lshlrev_b32 v1, 2, v0")
    o(f"s_mul_i32 s22, s2, {CH*4}")
    o("v_mov_b32 v20, -1"); o("v_mov_b32 v21, -1"); o("v_mov_b32 v22, -1"); o("v_mov_b32 v23, -1")
    o("v_lshlrev_b32 v2, 4, v0")
    o("v_mov_b32 v24, 0")
    o("s_waitcnt lgkmcnt(0)")
    srd(24, 8, E * 4); srd(28, 10, E * 4); srd(32, 20, 0x200000, CELLS_OFF)
    for i in range(5):
        o(f"s_add_u32 s23, s22, {i*2048}")
        o(f"buffer_load_dword v{4+i}, v1, s[28:31], s23 offen")
        o(f"buffer_load_dword v{10+i}, v1, s[24:27], s23 offen")
    o("v_lshlrev_b32 v19, 2, v1"); prefetch_e("v19")
    for i in range(4):
        o(f"ds_write_b128 v2, v[20:23] offset:{i*8192}")
    o("ds_write_b32 v1, v24 offset:32768")
    o("v_mov_b32 v25, 0x10000"); o(f"s_movk_i32 s38, {N//2}")
    o("s_waitcnt lgkmcnt(0)"); o("s_barrier")
    o(f"v_cmp_gt_u32 s[36:37], {CH - 2048}, v0") if False else None
    o(f"s_movk_i32 s23, {CH - 2048}")
    o("v_cmp_gt_u32 s[36:37], s23, v0")
    for i in range(5):
        o(f"s_waitcnt vmcnt({2*(4-i)+NPF})")
        o(f"v_cmp_le_u32 s[{40+2*i}:{41+2*i}], s38, v{10+i}")
        if i == 4: o("s_mov_b64 exec, s[36:37]")
        o(f"v_and_b32 v{26+i}, 0xff, v{4+i}")
        o(f"v_lshlrev_b32 v16, 2, v{26+i}")
        o(f"v_cndmask_b32 v17, 1, v25, s[{40+2*i}:{41+2*i}]")
        o(f"ds_add_rtn_u32 v{32+i}, v16, v17 offset:32768")
    o("s_mov_b64 exec, -1")
    o(f"s_waitcnt vmcnt({NPF})")
    stamp(1)
    for i in range(5):
        o(f"v_lshrrev_b32 v{4+i}, 8, v{4+i}")
        o(f"v_lshl_or_b32 v{4+i}, v{10+i}, 6, v{4+i}")
        o(f"v_add_u32 v16, {i*512}, v0")
        o(f"v_lshl_or_b32 v{4+i}, v16, 20, v{4+i}")
    for i in range(5):
        o(f"s_waitcnt lgkmcnt({4-i})") if i == 0 or True else None
        o(f"v_and_b32 v16, 0xffff, v{32+i}"); o(f"v_lshrrev_b32 v17, 16, v{32+i}"); o("v_sub_u32 v17, 31, v17")
        o(f"v_cndmask_b32 v16, v16, v17, s[{40+2*i}:{41+2*i}]")
        o(f"v_cmp_gt_u32 vcc, 32, v16")
        o(f"v_lshlrev_b32 v16, 2, v16")
        o(f"v_lshl_add_u32 v{38+i}, v{26+i}, 7, v16")
        if i == 4: o("s_and_b64 vcc, vcc, s[36:37]")
        o(f"s_mov_b64 s[{40+2*i}:{41+2*i}], vcc")
    for i in range(5):
        o(f"s_mov_b64 exec, s[{40+2*i}:{41+2*i}]")
        o(f"ds_write_b32 v{38+i}, v{4+i}")
    o("s_mov_b64 exec, -1")
    o("s_waitcnt lgkmcnt(0)"); o("s_barrier")
    if WARM and not PDO and PR:
        srd(48, 6, E * 32); o(f"s_mul_i32 s52, s2, {PR*8192}")
        for i in range(PR):
            o(f"buffer_load_dwordx4 {vr(64+4*i,4)}, v2, s[48:51], s52 offen")
            o("s_add_u32 s52, s52, 8192")
    stamp(2)
    o("v_lshrrev_b32 v3, 3, v0")
    o("v_lshlrev_b32 v16, 2, v3")
    for i in range(4):
        o(f"ds_read_b128 {vr(44+4*i,4)}, v2 offset:{i*8192}")
        o(f"ds_read_b32 v{60+i}, v16 offset:{32768 + i*256}")
    o("v_and_b32 v17, 7, v0")
    o("v_cmp_eq_u32 vcc, 0, v17")
    o("v_lshlrev_b32 v17, 4, v17")
    o("v_lshl_add_u32 v17, v3, 13, v17")
    o("v_cndmask_b32 v18, -1, -2, vcc") if False else None
    o("v_mov_b32 v18, -2")
    o("v_cndmask_b32 v18, -1, v18, vcc")
    o("s_lshl_b32 s22, s2, 7")
    for i in range(4):
        o(f"s_waitcnt lgkmcnt({2*(3-i)})")
        o(f"v_add_u32_sdwa v{60+i}, v{60+i}, v{60+i} dst_sel:DWORD dst_unused:UNUSED_PAD src0_sel:WORD_0 src1_sel:WORD_1")
        o(f"v_cmp_lt_u32 vcc, 32, v{60+i}")
        o(f"s_add_u32 s23, s22, {i*64*8192}")
        o("s_nop 0")
        o(f"v_cndmask_b32 v{44+4*i}, v{44+4*i}, v18, vcc")
        for c in range(1, 4):
            o(f"v_cndmask_b32 v{44+4*i+c}, v{44+4*i+c}, v20, vcc")
        o(f"buffer_store_dwordx4 {vr(44+4*i,4)}, v17, s[32:35], s23 offen {CFLG}")
    if PDO:
        srd(48, 6, E * 32)
        o(f"s_mul_i32 s52, s2, {PR*8192}")
        for i in range(PR):
            o(f"buffer_load_dwordx4 {vr(68+4*i,4)}, v2, s[48:51], s52 offen")
            o("s_add_u32 s52, s52, 8192")
    touch("P", 110, False)
    stamp(3); stamp_out(0, 0)
    o("s_endpgm")
    lab("K1_GEMM")
    o(f"s_sub_u32 s3, s2, {NPROD}")
    o("v_lshlrev_b32 v1, 4, v0")
    o("v_lshrrev_b32 v2, 4, v0")
    o("v_mul_u32_u24 v2, 320, v2")
    o("v_and_b32 v3, 15, v0")
    o("v_lshl_add_u32 v2, v3, 4, v2")
    o("v_lshrrev_b32 v4, 6, v0")
    o("v_and_b32 v5, 63, v0")
    o("v_readfirstlane_b32 s36, v4")
    o("s_waitcnt lgkmcnt(0)")
    o(f"s_cmp_eq_u32 s3, {NG}")
    o("s_cselect_b32 s22, 0, 32768")
    o("s_cselect_b32 s28, s12, s14"); o("s_cselect_b32 s29, s13, s15")
    o("s_mov_b32 s30, 32768"); o("s_mov_b32 s31, 0x00020000")
    srd(24, 16, 272 * 256)
    srd(32, 4, N * 256)
    o("s_lshr_b32 s37, s36, 2"); o("s_and_b32 s38, s36, 3")
    o("s_lshl_b32 s39, s3, 1"); o("s_add_u32 s39, s39, s37")
    o("s_lshl_b32 s40, s3, 14")
    o("v_and_b32 v6, 31, v5"); o("v_lshrrev_b32 v7, 5, v5")
    o("s_add_u32 s41, s40, 8192")
    o("buffer_load_dwordx4 v[48:51], v1, s[32:35], s40 offen")
    o("buffer_load_dwordx4 v[52:55], v1, s[32:35], s41 offen")
    for i in range(4):
        o(f"s_add_u32 s23, s22, {i*8192}")
        o(f"buffer_load_dwordx4 {vr(16+4*i,4)}, v1, s[24:27], s23 offen")
    for i in range(4):
        o(f"s_mov_b32 s23, {i*8192}")
        o(f"buffer_load_dwordx4 {vr(32+4*i,4)}, v1, s[28:31], s23 offen")
    o("v_lshrrev_b32 v12, 4, v0"); o("v_mul_u32_u24 v12, 272, v12"); o("v_lshl_add_u32 v12, v3, 4, v12")
    o("v_add_u32 v12, 81920, v12")
    o("s_lshl_b32 s41, s37, 5"); o("v_add_u32 v8, s41, v6"); o("v_mul_u32_u24 v8, 272, v8")
    o("v_lshl_add_u32 v8, v7, 4, v8"); o("v_add_u32 v8, 81920, v8")
    o("v_bfe_u32 v9, v5, 2, 2")
    o("v_lshl_add_u32 v9, v7, 3, v9")
    o("v_mul_u32_u24 v9, 320, v9")
    o("v_bfe_u32 v10, v5, 4, 1"); o("v_lshl_add_u32 v9, v10, 5, v9")
    o("v_and_b32 v10, 3, v5"); o("v_lshl_add_u32 v9, v10, 3, v9")
    o("s_lshl_b32 s41, s38, 6"); o("v_add_u32 v9, s41, v9")
    o("v_add_u32 v10, 40960, v9")
    o("v_add_u32 v11, 40960, v2")
    o("s_waitcnt vmcnt(9)"); o("ds_write_b128 v12, v[48:51]")
    o("s_waitcnt vmcnt(8)"); o(f"ds_write_b128 v12, v[52:55] offset:{32*272}")
    for i in range(4):
        o(f"s_waitcnt vmcnt({7-i})")
        o(f"ds_write_b128 v2, {vr(16+4*i,4)} offset:{i*10240}")
    o("s_waitcnt lgkmcnt(0)"); o("s_barrier")
    stamp(1)
    W1, W2 = 80, 112
    AQ, AH = 16, 144
    def frags(W, va, xs):
        for s in range(8):
            if xs: o(f"ds_read_b128 {vr(48+4*s,4)}, v8 offset:{32*s}")
            for u in range(2):
                o(f"ds_read_b64_tr_b16 {vr(W+4*s+2*u,2)}, {va} offset:{(16*s+4*u)*320}")
            n = 3 if xs else 2
            if s >= 3:
                o(f"s_waitcnt lgkmcnt({3*n})"); yield s - 3
        for s in range(5, 8):
            o(f"s_waitcnt lgkmcnt({(7-s)*n})"); yield s
    for s in frags(W1, "v9", True): mfma(AQ, 48+4*s, W1+4*s, None if s == 0 else AQ)
    for i in range(4):
        o(f"s_waitcnt vmcnt({3-i})")
        o(f"ds_write_b128 v11, {vr(32+4*i,4)} offset:{i*10240}")
    srd(44, 20, TABLE_BYTES, TABLE_OFF)
    o("s_lshl_b32 s40, s39, 14")
    o("s_lshl_b32 s41, s38, 7"); o("s_add_u32 s40, s40, s41")
    o(f"s_mov_b32 s42, {hex(NLOG2E)}"); o("s_mov_b32 s43, 0xffff0000")
    touch("G", 13, True)
    if GQ:
        srd(48, 6, E * 32); o(f"s_mul_i32 s52, s3, {GQ*8192}"); o("v_lshlrev_b32 v159, 4, v0")
        for i in range(GQ):
            o(f"buffer_load_dwordx4 {vr(144+4*i,4)}, v159, s[48:51], s52 offen")
            o("s_add_u32 s52, s52, 8192")
    o("s_waitcnt lgkmcnt(0)"); o("s_barrier")
    stamp(2)
    for s in frags(W2, "v10", False):
        mfma(AH, 48+4*s, W2+4*s, None if s == 0 else AH)
        for v in range(2*s, 2*s+2): o(f"v_mul_f32 v{AQ+v}, s42, v{AQ+v}")
    o(f"s_cmp_eq_u32 s3, {NG}"); o("s_cbranch_scc1 K1_PACK")
    o("v_lshlrev_b32 v8, 11, v7"); o("v_lshl_add_u32 v8, v6, 2, v8")
    o("s_nop 5")
    for v in range(16):
        t = 32 + 2 * (v % 4)
        o(f"v_cvt_pk_bf16_f32 v{t}, v{AQ+v}, v{AH+v}")
        o(f"v_and_b32 v{t+1}, s43, v{t}")
        o(f"v_sub_f32 v{t}, v{t+1}, v{t}")
        o(f"v_add_f32 v{AH+v}, v{AH+v}, v{t}")
        o(f"v_cvt_pk_bf16_f32 v{AH+v}, v{AQ+v}, v{AH+v}")
        if v % 4 == 0: o(f"s_add_u32 s41, s40, {4096*(v//4)}")
        o(f"buffer_store_dword v{AH+v}, v8, s[44:47], s41 offen offset:{512*(v%4)} {TFLG}")
    stamp(3); stamp_out(0, 1)
    o("s_endpgm")
    lab("K1_PACK")
    srd(28, 20, 0x11000, WPACK_OFF)
    o("v_lshlrev_b32 v8, 4, v5")
    o("s_cmp_eq_u32 s37, 0"); o("s_cbranch_scc0 K1_PACKC")
    o("s_lshl_b32 s40, s38, 13")
    for s in range(8):
        if s % 4 == 0:
            o(f"s_add_u32 s41, s40, {s*1024}"); o(f"s_add_u32 s42, s40, {s*1024 + 32768}")
        o(f"buffer_store_dwordx4 {vr(W1+4*s,4)}, v8, s[28:31], s41 offen offset:{(s%4)*1024}")
        o(f"buffer_store_dwordx4 {vr(W2+4*s,4)}, v8, s[28:31], s42 offen offset:{(s%4)*1024}")
    o("s_endpgm")
    lab("K1_PACKC")
    o("v_lshlrev_b32 v12, 11, v7"); o("v_lshl_add_u32 v12, v6, 1, v12")
    o("s_lshl_b32 s40, s38, 6"); o("s_add_u32 s40, s40, 65536")
    for i in range(8):
        o(f"buffer_load_ushort v{16+i}, v12, s[24:27], s40 offen offset:{256*i}")
    o(f"s_mov_b32 s42, {hex(NLOG2E)}")
    o("s_waitcnt vmcnt(0)")
    for i in range(8):
        o(f"v_lshlrev_b32 v{16+i}, 16, v{16+i}")
        o(f"v_mul_f32 v{16+i}, s42, v{16+i}")
    for i in range(4):
        o(f"v_cvt_pk_bf16_f32 v{24+i}, v{16+2*i}, v{17+2*i}")
    o("s_lshl_b32 s40, s38, 10"); o("s_add_u32 s40, s40, 65536")
    o("buffer_store_dwordx4 v[24:27], v8, s[28:31], s40 offen")
    o("s_endpgm")
    if WARM:
        lab("K1_WARM")
        o("v_lshlrev_b32 v2, 4, v0")
        o(f"s_sub_u32 s3, s2, {NPROD + NG + 1}"); o(f"s_mul_i32 s52, s3, {XR*8192}"); o(f"s_add_u32 s52, s52, {(NPROD*PR + (NG+1)*GQ)*8192}")
        o("s_waitcnt lgkmcnt(0)")
        srd(48, 6, E * 32)
        for i in range(XR):
            o(f"buffer_load_dwordx4 {vr(16+4*i,4)}, v2, s[48:51], s52 offen")
            o("s_add_u32 s52, s52, 8192")
        if 'wo' in sys.argv:
            srd(44, 18, N * 256); o(f"s_mul_i32 s52, s3, {10*8192}")
            for i in range(10):
                o(f"buffer_load_dwordx4 {vr(100+4*i,4)}, v2, s[44:47], s52 offen")
                o("s_add_u32 s52, s52, 8192")
        o("s_waitcnt vmcnt(0)")
        stamp_out(0, 2)
    lab("K1_END")
    o("s_endpgm")

CAP = 12
POOL = 0; POOL_BYTES = 32768
LUT = 32768; CNT = LUT + 4096; XS = CNT + 64
PX = XS + 40 * 272; UX = PX + 16384; EB = UX + 32768; K2_LDS = EB + 4 * CAP * 1024
ALT = "alt" in sys.argv
OFLG = ([a[2:].replace("_", " ") for a in sys.argv if a.startswith("of")] + [""])[0]
EFLG = ([a[2:].replace("_", " ") for a in sys.argv if a.startswith("ef")] + [""])[0]
GFLG = ([a[2:].replace("_", " ") for a in sys.argv if a.startswith("gf")] + [""])[0]
PFT = ([int(a[3:]) for a in sys.argv if a.startswith("pft")] + [0])[0]
PRIO = ([int(a[4:]) for a in sys.argv if a.startswith("prio")] + [0])[0]
def k2():
    kn = NAME + "_kernel"
    kstart(kn)
    o("s_cmp_ge_u32 s2, 256"); o("s_cbranch_scc1 K2_END")
    o("s_load_dwordx16 s[4:19], s[0:1], 0")
    o("s_load_dwordx2 s[20:21], s[0:1], 72")
    stamp_init()
    o("v_bfe_u32 v15, v0, 3, 6"); o("v_and_b32 v9, 7, v0"); o("v_lshlrev_b32 v9, 3, v9")
    o("v_lshl_add_u32 v9, v15, 7, v9"); o("v_lshrrev_b32 v4, 9, v0"); o("v_lshl_add_u32 v9, v4, 6, v9")
    o("v_lshrrev_b32 v4, 6, v0"); o("v_and_b32 v1, 63, v0")
    o("v_lshlrev_b32 v8, 4, v0")
    o("v_readfirstlane_b32 s3, v4")
    o("v_and_b32 v6, 31, v1"); o("v_lshrrev_b32 v7, 5, v1")
    o("s_lshr_b32 s60, s3, 2"); o("s_and_b32 s61, s3, 3")
    o("s_lshl_b32 s22, s2, 13")
    o("s_waitcnt lgkmcnt(0)")
    sW, sX, sE, sT, sO = 24, 28, 32, 36, 40
    srd(sW, 20, WPACK_OFF + 0x11000)
    EN = 12
    G = [80, 96, 112]; Z, ACC, RO, FR, EF, PF, CF = 16, 32, 48, 56, 68, 72, 76
    WF = [112 + 4*s for s in range(4)] + [56 + 4*s for s in range(4)]
    o(f"buffer_load_dwordx2 {vr(EN,2)}, v9, s[{sW}:{sW+3}], s22 offen")
    srd(sX, 4, N * 256)
    o("v_lshrrev_b32 v10, 4, v0"); o("v_and_b32 v11, 15, v0")
    o("v_lshlrev_b32 v5, 16, v10"); o("v_lshl_add_u32 v5, v11, 4, v5")
    o("s_lshl_b32 s62, s2, 8")
    o("s_cmp_ge_u32 s3, 10"); o("s_cbranch_scc1 K2_NOX")
    o(f"buffer_load_dwordx4 {vr(ACC,4)}, v5, s[{sX}:{sX+3}], s62 offen")
    lab("K2_NOX")
    o("v_lshlrev_b32 v14, 4, v1")
    o("s_lshl_b32 s63, s61, 10"); o(f"s_add_u32 s63, s63, {hex(WPACK_OFF+65536)}")
    o(f"buffer_load_dwordx4 {vr(CF,4)}, v14, s[{sW}:{sW+3}], s63 offen")
    def wload():
        o("s_cmp_ge_u32 s3, 8"); o("s_cbranch_scc1 K2_NOW")
        o("s_lshl_b32 s63, s3, 13"); o(f"s_add_u32 s63, s63, {hex(WPACK_OFF)}"); o("s_add_u32 s64, s63, 4096")
        for s in range(8):
            o(f"buffer_load_dwordx4 {vr(WF[s],4)}, v14, s[{sW}:{sW+3}], s{63 + s//4} offen offset:{(s%4)*1024}")
        lab("K2_NOW")
    WP = ([int(a[2:]) for a in sys.argv if a.startswith("wp")] + [0])[0]
    if WP == 0: wload()
    srd(sE, 6, E * 32); srd(sT, 20, TABLE_BYTES, TABLE_OFF); srd(sO, 18, N * 256)
    PW = ([int(a[2:]) for a in sys.argv if a.startswith("pw")] + [12])[0]
    if PFT:
        o(f"s_cmp_lt_u32 s3, {PW}"); o("s_cbranch_scc1 K2_NOPF")
        o("v_lshlrev_b32 v23, 7, v1")
        o("s_lshr_b32 s63, s2, 3"); o(f"s_mul_i32 s63, s63, {16-PW}"); o("s_add_u32 s63, s63, s3"); o(f"s_sub_u32 s63, s63, {PW}")
        o(f"s_mul_i32 s63, s63, {PFT*8192}")
        for i in range(PFT):
            o(f"buffer_load_dword v{G[2]}, v23, s[{sT}:{sT+3}], s63 offen")
            if i < PFT-1: o("s_add_u32 s63, s63, 8192")
        lab("K2_NOPF")
    for i in range(4):
        o(f"v_bfe_u32 v{16+i}, v0, {2*i}, 1"); o(f"v_bfe_u32 v20, v0, {2*i+1}, 1")
        o(f"v_lshl_or_b32 v{16+i}, v20, 16, v{16+i}")
        o(f"v_mul_u32_u24 v{16+i}, 0x3f80, v{16+i}")
    o("s_cmp_ge_u32 s3, 4"); o("s_cbranch_scc1 K2_NOLUT")
    o(f"ds_write_b128 v8, v[16:19] offset:{LUT}")
    lab("K2_NOLUT")
    o("s_lshl_b32 s63, s61, 7")
    o("v_lshlrev_b32 v2, 2, v6"); o("v_add_u32 v2, s63, v2")
    o("v_mov_b32 v3, v2")
    o(f"v_mul_u32_u24 v15, {CH}, v15")
    if 'xb' in sys.argv: o("s_lshl_b32 s63, s2, 9"); o("v_mov_b32 v15, s63")
    o("s_mov_b32 s72, 0")
    o("s_mov_b32 s73, 0")
    def pool_init():
        o("v_and_b32 v20, 16, v0"); o("v_cmp_eq_u32 vcc, 0, v20")
        o(f"v_mov_b32 v21, {hex(OOB)}"); o("v_mov_b32 v28, 0")
        o("v_cndmask_b32 v24, 0, v21, vcc")
        o("v_mov_b32 v29, 0"); o("v_mov_b32 v30, 0"); o("v_mov_b32 v31, 0")
        o("v_mov_b32 v25, v24"); o("v_mov_b32 v26, v24"); o("v_mov_b32 v27, v24")
        o(f"v_mov_b32 v20, {CNT}")
        for i in range(2):
            o(f"ds_write_b128 v8, v[24:27] offset:{POOL + i*16384}")
        o("ds_write_b128 v20, v[28:31]")
        o(f"v_add_u32 v21, {EB}, v8")
        for i in range(3): o(f"ds_write_b128 v21, v[28:31] offset:{i*16384}")
    if WP == 1: wload()
    pool_init()
    if WP == 2: wload()
    o("ds_write_b32 v20, v28 offset:16")
    o("v_mov_b32 v22, 1")
    o("v_mul_u32_u24 v5, 272, v10"); o("v_lshl_add_u32 v5, v11, 4, v5")
    o("s_mov_b32 s78, 1.0"); o("s_mov_b32 s79, 1.0")
    o("s_waitcnt lgkmcnt(0)"); o("s_barrier")
    if WP == 3: wload()
    o("s_cmp_ge_u32 s3, 8"); o("s_cbranch_scc1 K2_XW1")
    o("s_waitcnt vmcnt(9)"); o("s_branch K2_XW2")
    lab("K2_XW1"); o(f"s_waitcnt vmcnt({1+PFT})")
    if PFT: o(f"s_cmp_ge_u32 s3, {PW}"); o("s_cbranch_scc1 K2_B1"); o("s_waitcnt vmcnt(1)")
    o("s_cmp_ge_u32 s3, 10"); o("s_cbranch_scc1 K2_B1")
    lab("K2_XW2")
    o(f"ds_write_b128 v5, {vr(ACC,4)} offset:{XS}")
    o("s_mov_b64 exec, 1"); o("ds_add_u32 v20, v22 offset:16"); o("s_mov_b64 exec, -1")
    lab("K2_B1")
    if not ALT: stamp(1)
    o(f"v_cmp_eq_u32 vcc, -2, v{EN}")
    o("s_cbranch_vccz K2_COMPACT")
    o(f"v_mov_b32 v20, {CNT}"); o("v_mov_b32 v21, 1"); o("ds_write_b32 v20, v21 offset:8")
    lab("K2_COMPACT")
    o("s_setprio 3")
    o("v_and_b32 v20, 1, v0"); o("v_lshlrev_b32 v20, 4, v20"); o(f"v_mov_b32 v21, {hex(OOB)}")
    for i in range(2):
        e = EN + i
        o(f"v_cmp_gt_u32 s[{74+2*i}:{75+2*i}], -2, v{e}")
        o(f"v_lshrrev_b32 v{22+i}, 20, v{e}"); o(f"v_add_lshl_u32 v{22+i}, v{22+i}, v15, 5")
    for i in range(2):
        o(f"v_cndmask_b32 v{22+i}, v21, v{22+i}, s[{74+2*i}:{75+2*i}]")
    o("s_nop 0")
    for i in range(2):
        for p, qp in enumerate(["[0,0,2,2]", "[1,1,3,3]"]):
            o(f"v_add_u32_dpp v{G[1]+4*(2*i+p)}, v{22+i}, v20 quad_perm:{qp} row_mask:0xf bank_mask:0xf")
    def eload():
        for i in range(4):
            o(f"buffer_load_dwordx4 {vr(G[1]+4*i,4)}, v{G[1]+4*i}, s[{sE}:{sE+3}], 0 offen {EFLG}")
    EW = ([int(a[2:]) for a in sys.argv if a.startswith("ew")] + [8])[0]
    o(f"s_cmp_ge_u32 s3, {EW}"); o("s_cbranch_scc1 K2_ELATE")
    eload()
    lab("K2_ELATE")
    if not ALT: stamp(2)
    for i in range(2):
        e = EN + i
        o(f"v_and_b32 v{16+i}, 3, v{e}")
        o(f"v_lshlrev_b32 v{18+i}, 3, v{16+i}")
        o(f"v_bfm_b32 v{20+i}, 1, v{18+i}")
        o(f"v_cndmask_b32 v{20+i}, 0, v{20+i}, s[{74+2*i}:{75+2*i}]")
    o("v_add_u32 v22, v20, v21"); o("v_mov_b32 v23, v22")
    fill = []
    for i in range(2):
        e = EN + i
        fill += [f"v_bfe_u32 v{24+2*i}, v{e}, 6, 14", f"v_lshlrev_b32 v{24+2*i}, 9, v{24+2*i}",
                 f"v_bfe_u32 v{28+i}, v{e}, 2, 4", f"v_bfe_u32 v{30+i}, v{e}, 5, 1",
                 f"v_and_b32 v{25+2*i}, 3, v{28+i}", f"v_lshl_or_b32 v{25+2*i}, v{30+i}, 2, v{25+2*i}"]
    dpp = ["row_shr:1", "row_shr:2", "row_shr:4", "row_shr:8"]
    for j, d in enumerate(dpp):
        o(fill[2*j]); o(fill[2*j+1])
        o(f"v_add_u32_dpp v23, v23, v23 {d} row_mask:0xf bank_mask:0xf bound_ctrl:0")
    o(fill[8]); o(fill[9])
    o("v_add_u32_dpp v23, v23, v23 row_bcast:15 row_mask:0xa bank_mask:0xf")
    o(fill[10]); o(fill[11])
    o("v_add_u32_dpp v23, v23, v23 row_bcast:31 row_mask:0xc bank_mask:0xf")
    o("s_nop 0")
    o("v_readlane_b32 s64, v23, 63")
    o("v_sub_u32 v23, v23, v22")
    o("s_and_b32 s65, s64, 0xff"); o("s_bfe_u32 s66, s64, 0x80008"); o("s_lshl_b32 s66, s66, 16"); o("s_or_b32 s65, s65, s66")
    o("s_bfe_u32 s66, s64, 0x80010"); o("s_lshr_b32 s67, s64, 24"); o("s_lshl_b32 s67, s67, 16"); o("s_or_b32 s66, s66, s67")
    o("v_mov_b32 v48, s65"); o("v_mov_b32 v49, s66"); o(f"v_mov_b32 v50, {CNT}")
    o("s_mov_b64 exec, 1")
    o("ds_add_rtn_u64 v[48:49], v50, v[48:49]")
    o("s_mov_b64 exec, -1")
    o("v_add_u32 v22, v23, v20")
    o("v_bfe_u32 v20, v23, v18, 8"); o("v_bfe_u32 v21, v22, v19, 8")
    for i in range(2):
        o(f"v_bfm_b32 v{30+i}, 1, v{25+2*i}")
        o(f"v_bfe_u32 v{22+i}, v{28+i}, 2, 1"); o(f"v_lshlrev_b32 v{22+i}, 7, v{22+i}")
        o(f"v_lshlrev_b32 v{18+i}, 1, v{18+i}")
        o(f"v_mul_u32_u24 v{16+i}, {CAP*512}, v{16+i}")
    o(f"s_movk_i32 s68, {CAP*32}")
    o("s_waitcnt lgkmcnt(0)")
    o("v_readfirstlane_b32 s64, v48"); o("v_readfirstlane_b32 s65, v49")
    o("s_nop 1")
    for i in range(2):
        o(f"v_lshrrev_b64 v[48:49], v{18+i}, s[64:65]")
        o("v_and_b32 v48, 0xffff, v48"); o(f"v_add_u32 v48, v48, v{20+i}")
        o("v_cmp_gt_u32 vcc, s68, v48")
        o("v_lshrrev_b32 v49, 5, v48"); o("v_and_b32 v48, 31, v48")
        o(f"v_lshl_add_u32 v49, v49, 9, v{16+i}")
        o("v_lshl_add_u32 v50, v48, 2, v49")
        o(f"v_add_u32 v51, v50, v{22+i}")
        o("v_lshrrev_b32 v52, 3, v48"); o("v_and_b32 v53, 3, v48")
        o("v_lshl_or_b32 v52, v52, 2, v53"); o("v_lshlrev_b32 v52, v52, v0") if False else None
        o("v_lshl_or_b32 v52, v52, 2, v53") if False else None
        o("v_add_u32 v52, 8, v52"); o("v_bfm_b32 v52, 1, v52")
        o("v_bfe_u32 v53, v48, 2, 1"); o("v_lshl_add_u32 v53, v53, 7, v49")
        o(f"v_lshl_add_u32 v53, v{28+i}, 2, v53")
        o(f"v_bfrev_b32 v{EN+i}, 1")
        o("v_lshlrev_b32 v48, 4, v48")
        o(f"s_and_b64 exec, vcc, s[{74+2*i}:{75+2*i}]")
        o(f"v_lshl_add_u32 v{EN+i}, v49, 1, v48")
        o(f"ds_write_b32 v50, v{24+2*i}")
        o(f"ds_or_b32 v51, v{30+i} offset:256")
        o("ds_or_b32 v53, v52 offset:256")
        o("s_mov_b64 exec, -1")
    o(f"v_mov_b32 v17, {CNT}"); o("v_mov_b32 v16, 0x10000")
    o("s_mov_b64 exec, 1")
    o("ds_add_u32 v17, v16 offset:12")
    o("s_mov_b64 exec, -1")
    if not ALT: stamp(3)
    o(f"s_cmp_lt_u32 s3, {EW}"); o("s_cbranch_scc1 K2_EEARLY")
    eload()
    lab("K2_EEARLY")
    o("s_setprio 0")
    o("s_cmp_lg_u32 s72, 0"); o("s_cbranch_scc1 K2_B2")
    o("s_cmp_ge_u32 s3, 8"); o("s_cbranch_scc1 K2_B2")
    o("v_and_b32 v9, 15, v1"); o("v_min_u32 v9, 9, v9"); o("v_bfe_u32 v73, v1, 4, 1")
    o("v_lshl_add_u32 v9, v9, 2, v73"); o("v_mul_u32_u24 v9, 272, v9"); o("v_lshl_add_u32 v9, v7, 4, v9")
    lab("K2_SPINX")
    o("ds_read_b32 v16, v17 offset:16")
    o("s_waitcnt lgkmcnt(0)")
    o("v_readfirstlane_b32 s70, v16")
    o("s_cmp_lg_u32 s70, 10"); o("s_cbranch_scc1 K2_SPINX")
    XB = [G[0], G[0]+4, G[0]+8, G[0]+12, RO, RO+4, PF]
    def xrd(i): o(f"ds_read_b128 {vr(XB[i%7],4)}, v9 offset:{XS + 32*(i>>1) + 544*(i&1)}")
    for i in range(6): xrd(i)
    o("s_waitcnt vmcnt(4)")
    for i in range(16):
        if i + 6 < 16: xrd(i + 6)
        o(f"s_waitcnt lgkmcnt({min(6, 15-i)})")
        D = ACC if i & 1 else Z
        mfma(D, XB[i%7], WF[i>>1], None if i < 2 else D)
    o("s_cmp_ge_u32 s3, 4"); o("s_cbranch_scc1 K2_UOUT")
    o(f"s_mov_b32 s65, {hex(NLOG2E)}")
    o("s_lshl_b32 s70, s61, 10"); o("v_add_u32 v72, s70, v14")
    o("s_nop 7")
    for v in range(32): o(f"v_mul_f32 v{Z+v}, s65, v{Z+v}")
    for i in range(16): o(f"v_cvt_pk_bf16_f32 v{Z+i}, v{Z+2*i}, v{Z+2*i+1}")
    for l in range(4): o(f"ds_write_b128 v72, {vr(Z+4*l,4)} offset:{PX + l*4096}")
    o("s_branch K2_B2")
    lab("K2_UOUT")
    o("s_lshl_b32 s70, s61, 11"); o(f"s_add_u32 s70, s70, {UX}"); o("v_add_u32 v72, s70, v14")
    o("s_nop 8")
    for l in range(4):
        for hf in range(2): o(f"ds_write_b128 v72, {vr(Z+8*l+4*hf,4)} offset:{l*8192 + hf*1024}")
    lab("K2_B2")
    if not ALT: stamp(4)
    o(f"v_mov_b32 v48, {CNT}")
    o(f"s_mul_i32 s66, s60, {CAP*512}")
    o("v_lshl_add_u32 v4, v7, 4, s66")
    o("v_lshl_add_u32 v5, v1, 2, s66")
    o(f"s_lshl_b32 s66, s66, 1"); o(f"s_add_u32 s66, s66, {EB}")
    o("v_add_u32 v10, s66, v14")
    lab("K2_SPINA")
    o("ds_read_b128 v[52:55], v48")
    o("s_waitcnt lgkmcnt(0)")
    o("v_readfirstlane_b32 s70, v55")
    o("s_cmp_lt_u32 s70, 0x100000"); o("s_cbranch_scc1 K2_SPINA")
    o("v_readfirstlane_b32 s64, v52"); o("v_readfirstlane_b32 s65, v53"); o("v_readfirstlane_b32 s69, v54")
    o("s_and_b32 s70, s64, 0xffff"); o("s_lshr_b32 s71, s64, 16"); o("s_max_u32 s70, s70, s71")
    o("s_and_b32 s71, s65, 0xffff"); o("s_max_u32 s70, s70, s71"); o("s_lshr_b32 s71, s65, 16"); o("s_max_u32 s70, s70, s71")
    o("s_cmp_gt_u32 s70, s68"); o("s_cselect_b32 s69, 1, s69")
    o("s_cmp_lg_u32 s69, 0"); o("s_cbranch_scc1 K2_BAD")
    o("s_lshl_b32 s70, s60, 4"); o("s_lshr_b64 s[64:65], s[64:65], s70"); o("s_and_b32 s64, s64, 0xffff")
    o("s_add_u32 s64, s64, 31"); o("s_lshr_b32 s64, s64, 5")
    if ALT: stamp(1)
    if PRIO and PRIO < 4: o("s_setprio 3")
    if PRIO in (4, 5, 7, 8): o("s_setprio 2")
    if PRIO == 6: o("s_setprio 3")
    MK = [11, 12, 13]
    def issue_a():
        for c in range(2): o(f"ds_read_b128 {vr(RO+4*c,4)}, v4 offset:{32*c}")
    def issue_b(k, first):
        for hf in range(2):
            if hf == 1:
                for c in range(2):
                    o(f"ds_read_b128 {vr(RO+4*c,4)}, v4 offset:{32*(2+c)}")
                o(f"ds_read_b32 v{MK[k]}, v5 offset:256")
            for c in range(2):
                if hf == 1 or first: o(f"s_waitcnt lgkmcnt({1-c+hf})")
                for i in range(0, 4, 2):
                    o(f"v_lshl_add_u64 {vr(RO+4*c+i,2)}, {vr(RO+4*c+i,2)}, 0, v[2:3]")
                for i in range(0 if 'nold' in sys.argv else 4):
                    o(f"buffer_load_dword v{G[k]+8*hf+4*c+i}, v{RO+4*c+i}, s[{sT}:{sT+3}], 0 offen {GFLG}")
        o("v_add_u32 v4, 512, v4"); o("v_add_u32 v5, 512, v5")
    ER = ([int(a[2:]) for a in sys.argv if a.startswith("er")] + [2])[0]
    o("v_and_b32 v16, 1, v0"); o("v_lshlrev_b32 v16, 9, v16"); o(f"v_add_u32 v16, {EB}, v16")
    o(f"v_mov_b32 v17, {CNT}")
    for i in range(2):
        for p, qp in enumerate(["[0,0,2,2]", "[1,1,3,3]"]):
            o(f"v_add_u32_dpp v{18+2*i+p}, v{EN+i}, v16 quad_perm:{qp} row_mask:0xf bank_mask:0xf")
    o("v_mov_b32 v16, 1")
    o(f"s_cmp_lt_u32 s60, {ER}"); o("s_cselect_b32 s69, s64, 0")
    o("s_cmp_eq_u32 s69, 0"); o("s_cbranch_scc1 K2_EW0")
    lab("K2_I0")
    issue_a(); issue_b(0, True)
    if ALT: stamp(2)
    o("s_cmp_eq_u32 s69, 0"); o("s_cbranch_scc1 K2_I1")
    o("s_waitcnt vmcnt(16)"); o("s_branch K2_EW")
    lab("K2_EW0")
    o("s_waitcnt vmcnt(0)")
    lab("K2_EW")
    for i in range(4):
        o(f"v_cmpx_le_i32 vcc, 0, v{18+i}")
        o(f"ds_write_b128 v{18+i}, {vr(G[1]+4*i,4)}")
        o("s_mov_b64 exec, -1")
    o("s_mov_b64 exec, 1")
    o("s_waitcnt lgkmcnt(0)")
    o("ds_add_u32 v17, v16 offset:12")
    o("s_mov_b64 exec, -1")
    if ALT: stamp(3)
    o("s_cmp_lg_u32 s69, s64"); o("s_cbranch_scc1 K2_I0")
    lab("K2_I1")
    if PRIO in (2, 3): o("s_setprio 2")
    if PRIO == 4: o("s_setprio 1")
    o("s_cmp_lt_u32 s64, 2"); o("s_cbranch_scc1 K2_SPIN")
    issue_a(); issue_b(1, True)
    lab("K2_SPIN")
    if PRIO in (1, 2): o("s_setprio 1")
    lab("K2_SPINE")
    o("ds_read_b32 v16, v17 offset:12")
    o("s_waitcnt lgkmcnt(0)")
    o("v_readfirstlane_b32 s70, v16")
    o("s_cmp_lg_u32 s70, 0x100010"); o("s_cbranch_scc1 K2_SPINE")
    o("s_cmp_lg_u32 s73, 0"); o("s_cbranch_scc1 K2_LOOP0")
    o("s_mov_b32 s73, 1")
    o("s_lshl_b32 s70, s3, 10"); o("v_add_u32 v18, s70, v14")
    o(f"ds_read_b128 {vr(PF,4)}, v18 offset:{PX}")
    o("s_lshl_b32 s70, s3, 11"); o(f"s_add_u32 s70, s70, {UX}"); o("v_add_u32 v18, s70, v14")
    o(f"ds_read_b128 {vr(ACC,4)}, v18"); o(f"ds_read_b128 {vr(ACC+4,4)}, v18 offset:1024")
    for v in range(8, 16): o(f"v_mov_b32 v{ACC+v}, 0")
    if ALT: stamp(4)
    PK = "nopk" not in sys.argv
    def body(k):
        g = G[k]
        lab(f"K2_LOOP{k}")
        o("s_cmp_eq_u32 s64, 0"); o("s_cbranch_scc1 K2_BATCH_DONE")
        o(f"ds_read_b128 {vr(EF,4)}, v10")
        for i in range(3):
            o(f"v_lshlrev_b32_sdwa v9, 4, v{MK[k]} dst_sel:DWORD dst_unused:UNUSED_PAD src0_sel:DWORD src1_sel:BYTE_{i}")
            if 'nolut' not in sys.argv: o(f"ds_read_b128 {vr(FR+4*i,4)}, v9 offset:{LUT}")
        issue_a()
        o("v_add_u32 v10, 1024, v10")
        o("s_cmp_eq_u32 s64, 1"); o(f"s_cbranch_scc1 K2_W{k}")
        o("s_waitcnt vmcnt(16)")
        lab(f"K2_C{k}")
        for v in range(0, 16, 2): o(f"v_lshlrev_b64 {vr(Z+v,2)}, 16, {vr(g+v,2)}")
        o("s_sub_u32 s64, s64, 1")
        o("s_waitcnt lgkmcnt(0)")
        mfma(Z, EF, CF, Z); mfma(Z, FR, PF, Z)
        o("s_cmp_lt_u32 s64, 2"); o(f"s_cbranch_scc1 K2_N{k}")
        issue_b((k + 2) % 3, False)
        lab(f"K2_X{k}")
        for v in range(0 if 'notr' in sys.argv else 16): o(f"v_exp_f32 v{Z+v}, v{Z+v}")
        if PK:
            for v in range(0, 16, 2): o(f"v_pk_add_f32 {vr(Z+v,2)}, {vr(Z+v,2)}, s[78:79]")
        else:
            for v in range(16): o(f"v_add_f32 v{Z+v}, 1.0, v{Z+v}")
        for v in range(0 if 'notr' in sys.argv else 16): o(f"v_rcp_f32 v{Z+v}, v{Z+v}")
        if PK:
            for v in range(0, 16, 2): o(f"v_pk_mul_f32 {vr(Z+v,2)}, {vr(Z+v,2)}, {vr(g+v,2)}")
        else:
            for v in range(16): o(f"v_mul_f32 v{Z+v}, v{Z+v}, v{g+v}")
        for i in range(8): o(f"v_cvt_pk_bf16_f32 v{Z+i}, v{Z+2*i}, v{Z+2*i+1}")
        o("s_waitcnt lgkmcnt(0)")
        o("s_nop 0")
        mfma(ACC, FR+4, Z, ACC); mfma(ACC, FR+8, Z+4, ACC)
        if PRIO in (1, 2) and k == 0: o("s_setprio 0")
        if PRIO == 4:
            o("s_cmp_gt_u32 s64, 2"); o(f"s_cbranch_scc1 K2_PR{k}"); o("s_setprio 0")
            lab(f"K2_PR{k}")
        if PRIO == 6: o("s_setprio 2")
        if PRIO == 7:
            o("s_setprio 1"); o("s_cmp_gt_u32 s64, 2"); o(f"s_cbranch_scc1 K2_PR{k}"); o("s_setprio 0")
            lab(f"K2_PR{k}")
        if PRIO == 8:
            o("s_cmp_gt_u32 s64, 4"); o(f"s_cbranch_scc1 K2_PR{k}"); o("s_setprio 1")
            o("s_cmp_gt_u32 s64, 2"); o(f"s_cbranch_scc1 K2_PR{k}"); o("s_setprio 0")
            lab(f"K2_PR{k}")
        if PRIO in (3, 5, 6):
            o("s_cmp_gt_u32 s64, 3"); o(f"s_cbranch_scc1 K2_PR{k}"); o("s_setprio 1")
            o("s_cmp_gt_u32 s64, 1"); o(f"s_cbranch_scc1 K2_PR{k}"); o("s_setprio 0")
            lab(f"K2_PR{k}")
    for k in range(3): body(k)
    o("s_branch K2_LOOP0")
    for k in range(3):
        lab(f"K2_W{k}"); o("s_waitcnt vmcnt(0)"); o(f"s_branch K2_C{k}")
        lab(f"K2_N{k}"); o("s_nop 10"); o(f"s_branch K2_X{k}")
    lab("K2_BAD")
    o("s_cmp_eq_u32 s72, 0"); o("s_cselect_b32 s58, 0, s58"); o("s_movk_i32 s59, 2048"); o("s_cselect_b32 s59, s59, 256")
    o("s_mov_b32 s72, 1"); o("s_branch K2_SCAN")
    lab("K2_BATCH_DONE")
    o("s_cmp_eq_u32 s72, 0"); o("s_cbranch_scc1 K2_EPI")
    o("s_add_u32 s58, s58, s59"); o("s_movk_i32 s59, 2048")
    o(f"s_cmp_ge_u32 s58, {E}"); o("s_cbranch_scc1 K2_EPI")
    lab("K2_SCAN")
    o("s_waitcnt vmcnt(0) lgkmcnt(0)")
    srd(44, 8, E * 4); srd(48, 10, E * 4)
    o("s_lshl_b32 s57, s58, 2"); o("v_lshlrev_b32 v9, 3, v0")
    o("buffer_load_dwordx2 v[48:49], v9, s[48:51], s57 offen")
    o("buffer_load_dwordx2 v[50:51], v9, s[44:47], s57 offen")
    o("s_barrier")
    pool_init()
    o("v_mov_b32 v15, s58")
    o(f"s_sub_u32 s57, {E}, s58"); o("s_min_u32 s57, s57, s59")
    o("s_waitcnt vmcnt(0)")
    for i in range(2):
        o(f"v_lshl_add_u32 v20, v0, 1, {i}")
        o(f"v_and_b32 v21, 0xff, v{48+i}")
        o("v_cmp_eq_u32 vcc, s2, v21"); o("v_cmp_gt_u32 s[66:67], s57, v20")
        o("s_and_b64 vcc, vcc, s[66:67]")
        o(f"v_lshrrev_b32 v21, 8, v{48+i}")
        o(f"v_lshl_or_b32 v21, v{50+i}, 6, v21"); o("v_lshl_or_b32 v21, v20, 20, v21")
        o(f"v_cndmask_b32 v{EN+i}, -1, v21, vcc")
    o("s_waitcnt lgkmcnt(0)"); o("s_barrier")
    o("s_branch K2_COMPACT")
    lab("K2_EPI")
    o("s_waitcnt vmcnt(0) lgkmcnt(0)")
    o(f"s_mov_b32 s65, {hex(NLOG2E)}")
    o("v_lshlrev_b32 v9, 20, v7"); o("v_lshl_add_u32 v9, v6, 1, v9")
    o("s_lshl_b32 s63, s61, 6"); o("s_add_u32 s62, s62, s63"); o("s_lshl_b32 s63, s60, 16"); o("s_add_u32 s62, s62, s63")
    o("s_nop 7")
    for v in range(6): o(f"v_mul_f32 v{Z+v}, s65, v{ACC+v}")
    for v in range(6): o(f"v_exp_f32 v{Z+v}, v{Z+v}")
    for v in range(6): o(f"v_add_f32 v{Z+v}, 1.0, v{Z+v}")
    for v in range(6): o(f"v_rcp_f32 v{Z+v}, v{Z+v}")
    for v in range(6): o(f"v_mul_f32 v{Z+v}, v{Z+v}, v{ACC+v}")
    for v in range(6): o(f"v_cvt_pk_bf16_f32 v{Z+v}, v{Z+v}, v{Z+v}")
    for v in range(6):
        if v == 4: o("s_mov_b32 exec_hi, 0")
        o(f"s_add_u32 s63, s62, {((v&3) + 8*(v>>2)) << 18}")
        o(f"buffer_store_short v{Z+v}, v9, s[{sO}:{sO+3}], s63 offen {OFLG}")
    o("s_lshr_b32 s89, s3, 2") if STAMPS else None
    stamp_out(1, "s89")
    lab("K2_END")
    o("s_endpgm")

header(); k1(); k2()
L.append('.section .rodata,"a"')
kdesc("prep_kernel", 160, 102 if STAMPS else 56); kdesc(NAME + "_kernel", 128, 102 if STAMPS else 80)
out = sys.argv[1] if len(sys.argv) > 1 else "cdna_kernels/%s.s" % NAME
open(out, "w").write("\n".join(x for x in L if x is not None) + "\n")
```

```python
import sys
NAME = "standalone__edge_featured_mpnn_egc__graph"
N, E = 10000, 160000
NPROD, CH = 64, 2500
CELLS_OFF, TABLE_OFF, WPACK_OFF = 0, 0x200000, 0x800000
TABLE_BYTES = N * 512
NG = 157
NLOG2E = 0xBFB8AA3B
OOB = 0x7FFFF000
L = []
def o(s): L.append("    " + s)
def lab(s): L.append(s + ":")
def srd(d, b, nbytes, off=0):
    if off:
        o(f"s_add_u32 s{d}, s{b}, {hex(off)}"); o(f"s_addc_u32 s{d+1}, s{b+1}, 0")
    else:
        o(f"s_mov_b32 s{d}, s{b}"); o(f"s_mov_b32 s{d+1}, s{b+1}")
    o(f"s_mov_b32 s{d+2}, {hex(nbytes)}"); o(f"s_mov_b32 s{d+3}, 0x00020000")
def vr(a, n): return f"v[{a}:{a+n-1}]"
def mfma(d, a, b, c):
    cs = "0" if c is None else vr(c, 16)
    o(f"v_mfma_f32_32x32x16_bf16 {vr(d,16)}, {vr(a,4)}, {vr(b,4)}, {cs}")

STAMPS = "stamps" in sys.argv
def stamp(i):
    if STAMPS: o(f"s_memrealtime s[{90+2*i}:{91+2*i}]")
def stamp_init():
    if STAMPS:
        for i in range(1, 6): o(f"s_mov_b32 s{90+2*i}, 0")
        o("v_lshrrev_b32 v255, 6, v0") if False else None
        stamp(0)
def stamp_out(kid, role):
    if not STAMPS: return
    o("s_waitcnt vmcnt(0)")
    stamp(5)
    o("s_waitcnt lgkmcnt(0)")
    o("s_mov_b64 exec, -1")
    o("v_lshrrev_b32 v1, 6, v0"); o("v_and_b32 v2, 63, v0")
    o("v_lshlrev_b32 v1, 5, v1"); o("v_lshl_add_u32 v1, v2, 2, v1")
    for i in range(6): o(f"v_writelane_b32 v3, s{90+2*i}, {i}")
    o(f"s_mov_b32 s4, {role}"); o("v_writelane_b32 v3, s4, 6")
    o("s_mov_b32 s4, 0xC0FFEE"); o("v_writelane_b32 v3, s4, 7")
    if "dbg" in sys.argv:
        wg, slot, msk = {(0,0): (5, 12, 0xf), (0,1): (100, 0, 0x3f), (1,0): (77, 6, 0x3f)}[(kid, role)]
        o("v_readfirstlane_b32 s5, v1"); o("s_load_dwordx2 s[12:13], s[0:1], 64")
        o("s_waitcnt lgkmcnt(0)")
        o(f"s_add_u32 s8, s12, {512*(1-kid)}"); o("s_addc_u32 s9, s13, 0"); o("s_mov_b32 s10, 256"); o("s_mov_b32 s11, 0x00020000")
        o(f"s_xor_b32 s4, s2, {wg}"); o("s_or_b32 s4, s4, s5"); o("s_cmp_eq_u32 s4, 0"); o(f"s_cbranch_scc0 DBG{kid}{role}")
        o(f"v_lshlrev_b32 v1, 2, v2"); o(f"s_mov_b64 exec, {msk}")
        o(f"buffer_store_dword v3, v1, s[8:11], 0 offen offset:{4*slot}")
        lab(f"DBG{kid}{role}")
        return
    srd(8, 20, 0x100000, 0x4000000 + kid * 512 * 512)
    o("s_lshl_b32 s4, s2, 9")
    o("s_mov_b64 exec, 0xff")
    o("buffer_store_dword v3, v1, s[8:11], s4 offen")

def header():
    src = open("cdna_kernels/%s.s.ref" % NAME).read().split("\n")
    for l in src:
        if l.startswith("; Override"): break
        L.append(l)
    L.append("; @launch kernel=prep_kernel grid=(%d,1,1) block=(512,1,1) lds=%d" % (NPROD + NG + 1 + globals().get("NXW", 0), K1_LDS))
    L.append("; @launch kernel=%s_kernel grid=(256,1,1) block=(1024,1,1) lds=%d" % (NAME, K2_LDS))
    L.append('.amdgcn_target "amdgcn-amd-amdhsa--gfx950"')
    L.append(".text")

def kstart(n):
    L.append(f".globl {n}"); L.append(".p2align 8"); L.append(f".type {n},@function"); lab(n)

def kdesc(n, vg, sg):
    L.append(".p2align 6")
    L.append(f".amdhsa_kernel {n}")
    for k, v in [("next_free_vgpr", vg), ("next_free_sgpr", sg), ("accum_offset", (vg + 3) // 4 * 4),
                 ("group_segment_fixed_size", 0), ("kernarg_size", 80), ("user_sgpr_count", 2),
                 ("user_sgpr_kernarg_segment_ptr", 1), ("system_sgpr_workgroup_id_x", 1)]:
        L.append(f"  .amdhsa_{k} {v}")
    L.append(".end_amdhsa_kernel")

NPF = 0
TFLG = ([a[2:].replace("_", " ") for a in sys.argv if a.startswith("tf")] + [""])[0]
CFLG = ([a[2:].replace("_", " ") for a in sys.argv if a.startswith("cf")] + [""])[0]
WARM = "nowarm" not in sys.argv
NXW = 34 if WARM else 0
XR = ([int(a[2:]) for a in sys.argv if a.startswith('xr')] + [11])[0]
PR = ([int(a[2:]) for a in sys.argv if a.startswith('pq')] + [4])[0]
PDO = 'pdo' in sys.argv
GQ = ([int(a[2:]) for a in sys.argv if a.startswith('gq')] + [0])[0]
K1_LDS = 81920 + 64 * 272
def prefetch_e(va="v1"):
    if not NPF: return
    srd(48, 6, E * 32)
    o("s_mul_i32 s52, s2, 24576")
    for i in range(3):
        o(f"buffer_load_dwordx4 {vr(144+4*i,4)}, {va}, s[48:51], s52 offen")
        if i < 2: o("s_add_u32 s52, s52, 8192")
TLB = "tlb" in sys.argv
def touch(tag, vt, table):
    if not TLB: return
    o(f"v_readfirstlane_b32 s52, v0"); o("s_cmp_lg_u32 s52, 0"); o(f"s_cbranch_scc1 K1_T{tag}")
    srd(48, 6, E * 32)
    o(f"v_mul_u32_u24 v{vt}, 80000, v0")
    o(f"buffer_load_dword v{vt+1}, v{vt}, s[48:51], 0 offen")
    srd(48, 18, N * 256)
    o(f"v_lshrrev_b32 v{vt}, 1, v{vt}")
    o(f"buffer_load_dword v{vt+1}, v{vt}, s[48:51], 0 offen")
    if table:
        o("s_mov_b64 exec, 1")
        o(f"buffer_load_dword v{vt+1}, v{vt}, s[44:47], s40 offen")
        o("s_mov_b64 exec, -1")
    lab(f"K1_T{tag}")
def k1():
    kstart("prep_kernel")
    o(f"s_cmp_ge_u32 s2, {NPROD + NG + 1 + NXW}"); o("s_cbranch_scc1 K1_END")
    o("s_load_dwordx16 s[4:19], s[0:1], 0")
    o("s_load_dwordx2 s[20:21], s[0:1], 72")
    stamp_init()
    if WARM: o(f"s_cmp_ge_u32 s2, {NPROD + NG + 1}"); o("s_cbranch_scc1 K1_WARM")
    o(f"s_cmp_ge_u32 s2, {NPROD}"); o("s_cbranch_scc1 K1_GEMM")
    o("v_lshlrev_b32 v1, 2, v0")
    o(f"s_mul_i32 s22, s2, {CH*4}")
    o("v_mov_b32 v20, -1"); o("v_mov_b32 v21, -1"); o("v_mov_b32 v22, -1"); o("v_mov_b32 v23, -1")
    o("v_lshlrev_b32 v2, 4, v0")
    o("v_mov_b32 v24, 0")
    o("s_waitcnt lgkmcnt(0)")
    srd(24, 8, E * 4); srd(28, 10, E * 4); srd(32, 20, 0x200000, CELLS_OFF)
    for i in range(5):
        o(f"s_add_u32 s23, s22, {i*2048}")
        o(f"buffer_load_dword v{4+i}, v1, s[28:31], s23 offen")
        o(f"buffer_load_dword v{10+i}, v1, s[24:27], s23 offen")
    o("v_lshlrev_b32 v19, 2, v1"); prefetch_e("v19")
    for i in range(4):
        o(f"ds_write_b128 v2, v[20:23] offset:{i*8192}")
    o("ds_write_b32 v1, v24 offset:32768")
    o("v_mov_b32 v25, 0x10000"); o(f"s_movk_i32 s38, {N//2}")
    o("s_waitcnt lgkmcnt(0)"); o("s_barrier")
    o(f"v_cmp_gt_u32 s[36:37], {CH - 2048}, v0") if False else None
    o(f"s_movk_i32 s23, {CH - 2048}")
    o("v_cmp_gt_u32 s[36:37], s23, v0")
    for i in range(5):
        o(f"s_waitcnt vmcnt({2*(4-i)+NPF})")
        o(f"v_cmp_le_u32 s[{40+2*i}:{41+2*i}], s38, v{10+i}")
        if i == 4: o("s_mov_b64 exec, s[36:37]")
        o(f"v_and_b32 v{26+i}, 0xff, v{4+i}")
        o(f"v_lshlrev_b32 v16, 2, v{26+i}")
        o(f"v_cndmask_b32 v17, 1, v25, s[{40+2*i}:{41+2*i}]")
        o(f"ds_add_rtn_u32 v{32+i}, v16, v17 offset:32768")
    o("s_mov_b64 exec, -1")
    o(f"s_waitcnt vmcnt({NPF})")
    stamp(1)
    for i in range(5):
        o(f"v_lshrrev_b32 v{4+i}, 8, v{4+i}")
        o(f"v_lshl_or_b32 v{4+i}, v{10+i}, 6, v{4+i}")
        o(f"v_add_u32 v16, {i*512}, v0")
        o(f"v_lshl_or_b32 v{4+i}, v16, 20, v{4+i}")
    for i in range(5):
        o(f"s_waitcnt lgkmcnt({4-i})") if i == 0 or True else None
        o(f"v_and_b32 v16, 0xffff, v{32+i}"); o(f"v_lshrrev_b32 v17, 16, v{32+i}"); o("v_sub_u32 v17, 31, v17")
        o(f"v_cndmask_b32 v16, v16, v17, s[{40+2*i}:{41+2*i}]")
        o(f"v_cmp_gt_u32 vcc, 32, v16")
        o(f"v_lshlrev_b32 v16, 2, v16")
        o(f"v_lshl_add_u32 v{38+i}, v{26+i}, 7, v16")
        if i == 4: o("s_and_b64 vcc, vcc, s[36:37]")
        o(f"s_mov_b64 s[{40+2*i}:{41+2*i}], vcc")
    for i in range(5):
        o(f"s_mov_b64 exec, s[{40+2*i}:{41+2*i}]")
        o(f"ds_write_b32 v{38+i}, v{4+i}")
    o("s_mov_b64 exec, -1")
    o("s_waitcnt lgkmcnt(0)"); o("s_barrier")
    if WARM and not PDO and PR:
        srd(48, 6, E * 32); o(f"s_mul_i32 s52, s2, {PR*8192}")
        for i in range(PR):
            o(f"buffer_load_dwordx4 {vr(64+4*i,4)}, v2, s[48:51], s52 offen")
            o("s_add_u32 s52, s52, 8192")
    stamp(2)
    o("v_lshrrev_b32 v3, 3, v0")
    o("v_lshlrev_b32 v16, 2, v3")
    for i in range(4):
        o(f"ds_read_b128 {vr(44+4*i,4)}, v2 offset:{i*8192}")
        o(f"ds_read_b32 v{60+i}, v16 offset:{32768 + i*256}")
    o("v_and_b32 v17, 7, v0")
    o("v_cmp_eq_u32 vcc, 0, v17")
    o("v_lshlrev_b32 v17, 4, v17")
    o("v_lshl_add_u32 v17, v3, 13, v17")
    o("v_cndmask_b32 v18, -1, -2, vcc") if False else None
    o("v_mov_b32 v18, -2")
    o("v_cndmask_b32 v18, -1, v18, vcc")
    o("s_lshl_b32 s22, s2, 7")
    for i in range(4):
        o(f"s_waitcnt lgkmcnt({2*(3-i)})")
        o(f"v_add_u32_sdwa v{60+i}, v{60+i}, v{60+i} dst_sel:DWORD dst_unused:UNUSED_PAD src0_sel:WORD_0 src1_sel:WORD_1")
        o(f"v_cmp_lt_u32 vcc, 32, v{60+i}")
        o(f"s_add_u32 s23, s22, {i*64*8192}")
        o("s_nop 0")
        o(f"v_cndmask_b32 v{44+4*i}, v{44+4*i}, v18, vcc")
        for c in range(1, 4):
            o(f"v_cndmask_b32 v{44+4*i+c}, v{44+4*i+c}, v20, vcc")
        o(f"buffer_store_dwordx4 {vr(44+4*i,4)}, v17, s[32:35], s23 offen {CFLG}")
    if PDO:
        srd(48, 6, E * 32)
        o(f"s_mul_i32 s52, s2, {PR*8192}")
        for i in range(PR):
            o(f"buffer_load_dwordx4 {vr(68+4*i,4)}, v2, s[48:51], s52 offen")
            o("s_add_u32 s52, s52, 8192")
    touch("P", 110, False)
    stamp(3); stamp_out(0, 0)
    o("s_endpgm")
    lab("K1_GEMM")
    o(f"s_sub_u32 s3, s2, {NPROD}")
    o("v_lshlrev_b32 v1, 4, v0")
    o("v_lshrrev_b32 v2, 4, v0")
    o("v_mul_u32_u24 v2, 320, v2")
    o("v_and_b32 v3, 15, v0")
    o("v_lshl_add_u32 v2, v3, 4, v2")
    o("v_lshrrev_b32 v4, 6, v0")
    o("v_and_b32 v5, 63, v0")
    o("v_readfirstlane_b32 s36, v4")
    o("s_waitcnt lgkmcnt(0)")
    o(f"s_cmp_eq_u32 s3, {NG}")
    o("s_cselect_b32 s22, 0, 32768")
    o("s_cselect_b32 s28, s12, s14"); o("s_cselect_b32 s29, s13, s15")
    o("s_mov_b32 s30, 32768"); o("s_mov_b32 s31, 0x00020000")
    srd(24, 16, 272 * 256)
    srd(32, 4, N * 256)
    o("s_lshr_b32 s37, s36, 2"); o("s_and_b32 s38, s36, 3")
    o("s_lshl_b32 s39, s3, 1"); o("s_add_u32 s39, s39, s37")
    o("s_lshl_b32 s40, s3, 14")
    o("v_and_b32 v6, 31, v5"); o("v_lshrrev_b32 v7, 5, v5")
    o("s_add_u32 s41, s40, 8192")
    o("buffer_load_dwordx4 v[48:51], v1, s[32:35], s40 offen")
    o("buffer_load_dwordx4 v[52:55], v1, s[32:35], s41 offen")
    for i in range(4):
        o(f"s_add_u32 s23, s22, {i*8192}")
        o(f"buffer_load_dwordx4 {vr(16+4*i,4)}, v1, s[24:27], s23 offen")
    for i in range(4):
        o(f"s_mov_b32 s23, {i*8192}")
        o(f"buffer_load_dwordx4 {vr(32+4*i,4)}, v1, s[28:31], s23 offen")
    o("v_lshrrev_b32 v12, 4, v0"); o("v_mul_u32_u24 v12, 272, v12"); o("v_lshl_add_u32 v12, v3, 4, v12")
    o("v_add_u32 v12, 81920, v12")
    o("s_lshl_b32 s41, s37, 5"); o("v_add_u32 v8, s41, v6"); o("v_mul_u32_u24 v8, 272, v8")
    o("v_lshl_add_u32 v8, v7, 4, v8"); o("v_add_u32 v8, 81920, v8")
    o("v_bfe_u32 v9, v5, 2, 2")
    o("v_lshl_add_u32 v9, v7, 3, v9")
    o("v_mul_u32_u24 v9, 320, v9")
    o("v_bfe_u32 v10, v5, 4, 1"); o("v_lshl_add_u32 v9, v10, 5, v9")
    o("v_and_b32 v10, 3, v5"); o("v_lshl_add_u32 v9, v10, 3, v9")
    o("s_lshl_b32 s41, s38, 6"); o("v_add_u32 v9, s41, v9")
    o("v_add_u32 v10, 40960, v9")
    o("v_add_u32 v11, 40960, v2")
    o("s_waitcnt vmcnt(9)"); o("ds_write_b128 v12, v[48:51]")
    o("s_waitcnt vmcnt(8)"); o(f"ds_write_b128 v12, v[52:55] offset:{32*272}")
    for i in range(4):
        o(f"s_waitcnt vmcnt({7-i})")
        o(f"ds_write_b128 v2, {vr(16+4*i,4)} offset:{i*10240}")
    o("s_waitcnt lgkmcnt(0)"); o("s_barrier")
    stamp(1)
    W1, W2 = 80, 112
    AQ, AH = 16, 144
    def frags(W, va, xs):
        for s in range(8):
            if xs: o(f"ds_read_b128 {vr(48+4*s,4)}, v8 offset:{32*s}")
            for u in range(2):
                o(f"ds_read_b64_tr_b16 {vr(W+4*s+2*u,2)}, {va} offset:{(16*s+4*u)*320}")
            n = 3 if xs else 2
            if s >= 3:
                o(f"s_waitcnt lgkmcnt({3*n})"); yield s - 3
        for s in range(5, 8):
            o(f"s_waitcnt lgkmcnt({(7-s)*n})"); yield s
    for s in frags(W1, "v9", True): mfma(AQ, 48+4*s, W1+4*s, None if s == 0 else AQ)
    for i in range(4):
        o(f"s_waitcnt vmcnt({3-i})")
        o(f"ds_write_b128 v11, {vr(32+4*i,4)} offset:{i*10240}")
    srd(44, 20, TABLE_BYTES, TABLE_OFF)
    o("s_lshl_b32 s40, s39, 14")
    o("s_lshl_b32 s41, s38, 7"); o("s_add_u32 s40, s40, s41")
    o(f"s_mov_b32 s42, {hex(NLOG2E)}"); o("s_mov_b32 s43, 0xffff0000")
    touch("G", 13, True)
    if GQ:
        srd(48, 6, E * 32); o(f"s_mul_i32 s52, s3, {GQ*8192}"); o("v_lshlrev_b32 v175, 4, v0")
        if PR: o(f"s_add_u32 s52, s52, {NPROD*PR*8192}")
        for i in range(GQ):
            o(f"buffer_load_dwordx4 {vr(160+4*i,4)}, v175, s[48:51], s52 offen")
            o("s_add_u32 s52, s52, 8192")
    o("s_waitcnt lgkmcnt(0)"); o("s_barrier")
    stamp(2)
    for s in frags(W2, "v10", False):
        mfma(AH, 48+4*s, W2+4*s, None if s == 0 else AH)
        for v in range(2*s, 2*s+2): o(f"v_mul_f32 v{AQ+v}, s42, v{AQ+v}")
    o(f"s_cmp_eq_u32 s3, {NG}"); o("s_cbranch_scc1 K1_PACK")
    o("v_lshlrev_b32 v8, 11, v7"); o("v_lshl_add_u32 v8, v6, 2, v8")
    o("s_nop 5")
    for v in range(16):
        t = 32 + 2 * (v % 4)
        o(f"v_cvt_pk_bf16_f32 v{t}, v{AQ+v}, v{AH+v}")
        o(f"v_and_b32 v{t+1}, s43, v{t}")
        o(f"v_sub_f32 v{t}, v{t+1}, v{t}")
        o(f"v_add_f32 v{AH+v}, v{AH+v}, v{t}")
        o(f"v_cvt_pk_bf16_f32 v{AH+v}, v{AQ+v}, v{AH+v}")
        if v % 4 == 0: o(f"s_add_u32 s41, s40, {4096*(v//4)}")
        o(f"buffer_store_dword v{AH+v}, v8, s[44:47], s41 offen offset:{512*(v%4)} {TFLG}")
    stamp(3); stamp_out(0, 1)
    o("s_endpgm")
    lab("K1_PACK")
    srd(28, 20, 0x11000, WPACK_OFF)
    o("v_lshlrev_b32 v8, 4, v5")
    o("s_cmp_eq_u32 s37, 0"); o("s_cbranch_scc0 K1_PACKC")
    o("s_lshl_b32 s40, s38, 13")
    for s in range(8):
        if s % 4 == 0:
            o(f"s_add_u32 s41, s40, {s*1024}"); o(f"s_add_u32 s42, s40, {s*1024 + 32768}")
        o(f"buffer_store_dwordx4 {vr(W1+4*s,4)}, v8, s[28:31], s41 offen offset:{(s%4)*1024}")
        o(f"buffer_store_dwordx4 {vr(W2+4*s,4)}, v8, s[28:31], s42 offen offset:{(s%4)*1024}")
    o("s_endpgm")
    lab("K1_PACKC")
    o("v_lshlrev_b32 v12, 11, v7"); o("v_lshl_add_u32 v12, v6, 1, v12")
    o("s_lshl_b32 s40, s38, 6"); o("s_add_u32 s40, s40, 65536")
    for i in range(8):
        o(f"buffer_load_ushort v{16+i}, v12, s[24:27], s40 offen offset:{256*i}")
    o(f"s_mov_b32 s42, {hex(NLOG2E)}")
    o("s_waitcnt vmcnt(0)")
    for i in range(8):
        o(f"v_lshlrev_b32 v{16+i}, 16, v{16+i}")
        o(f"v_mul_f32 v{16+i}, s42, v{16+i}")
    for i in range(4):
        o(f"v_cvt_pk_bf16_f32 v{24+i}, v{16+2*i}, v{17+2*i}")
    o("s_lshl_b32 s40, s38, 10"); o("s_add_u32 s40, s40, 65536")
    o("buffer_store_dwordx4 v[24:27], v8, s[28:31], s40 offen")
    o("s_endpgm")
    if WARM:
        lab("K1_WARM")
        o("v_lshlrev_b32 v2, 4, v0")
        o(f"s_sub_u32 s3, s2, {NPROD + NG + 1}"); o(f"s_mul_i32 s52, s3, {XR*8192}"); o(f"s_add_u32 s52, s52, {(NPROD*PR + (NG+1)*GQ)*8192}")
        o("s_waitcnt lgkmcnt(0)")
        srd(48, 6, E * 32)
        ST = ([int(a[2:]) for a in sys.argv if a.startswith('sx')] + [0])[0]
        if ST:
            o(f"v_lshlrev_b32 v2, {ST}, v0")
            for i in range((XR * 8192 + (512 << ST) - 1) // (512 << ST)):
                o(f"buffer_load_dword v{16+i}, v2, s[48:51], s52 offen")
                o(f"s_add_u32 s52, s52, {512 << ST}")
        for i in range(0 if ST else XR):
            o(f"buffer_load_dwordx4 {vr(16+4*i,4)}, v2, s[48:51], s52 offen")
            o("s_add_u32 s52, s52, 8192")
        if 'wo' in sys.argv:
            srd(44, 18, N * 256); o(f"s_mul_i32 s52, s3, {10*8192}")
            for i in range(10):
                o(f"buffer_load_dwordx4 {vr(100+4*i,4)}, v2, s[44:47], s52 offen")
                o("s_add_u32 s52, s52, 8192")
        o("s_waitcnt vmcnt(0)")
        stamp_out(0, 2)
    lab("K1_END")
    o("s_endpgm")

CAP = 12
POOL = 0; POOL_BYTES = 32768
LUT = 32768; CNT = LUT + 4096; XS = CNT + 64
PX = XS + 40 * 272; UX = PX + 16384; EB = UX + 32768; K2_LDS = EB + 4 * CAP * 1024
ALT = "alt" in sys.argv
OFLG = ([a[2:].replace("_", " ") for a in sys.argv if a.startswith("of")] + [""])[0]
EFLG = ([a[2:].replace("_", " ") for a in sys.argv if a.startswith("ef")] + [""])[0]
GFLG = ([a[2:].replace("_", " ") for a in sys.argv if a.startswith("gf")] + [""])[0]
PFT = ([int(a[3:]) for a in sys.argv if a.startswith("pft")] + [0])[0]
PRIO = ([int(a[4:]) for a in sys.argv if a.startswith("prio")] + [0])[0]
def k2():
    kn = NAME + "_kernel"
    kstart(kn)
    o("s_cmp_ge_u32 s2, 256"); o("s_cbranch_scc1 K2_END")
    o("s_load_dwordx16 s[4:19], s[0:1], 0")
    o("s_load_dwordx2 s[20:21], s[0:1], 72")
    stamp_init()
    o("v_bfe_u32 v15, v0, 3, 6"); o("v_and_b32 v9, 7, v0"); o("v_lshlrev_b32 v9, 3, v9")
    o("v_lshl_add_u32 v9, v15, 7, v9"); o("v_lshrrev_b32 v4, 9, v0"); o("v_lshl_add_u32 v9, v4, 6, v9")
    o("v_lshrrev_b32 v4, 6, v0"); o("v_and_b32 v1, 63, v0")
    o("v_lshlrev_b32 v8, 4, v0")
    o("v_readfirstlane_b32 s3, v4")
    o("v_and_b32 v6, 31, v1"); o("v_lshrrev_b32 v7, 5, v1")
    o("s_lshr_b32 s60, s3, 2"); o("s_and_b32 s61, s3, 3")
    o("s_lshl_b32 s22, s2, 13")
    o("s_waitcnt lgkmcnt(0)")
    sW, sX, sE, sT, sO = 24, 28, 32, 36, 40
    srd(sW, 20, WPACK_OFF + 0x11000)
    EN = 12
    G = [80, 96, 112]; Z, ACC, RO, FR, EF, PF, CF = 16, 32, 48, 56, 68, 72, 76
    WF = [112 + 4*s for s in range(4)] + [56 + 4*s for s in range(4)]
    o(f"buffer_load_dwordx2 {vr(EN,2)}, v9, s[{sW}:{sW+3}], s22 offen")
    srd(sX, 4, N * 256)
    o("v_lshrrev_b32 v10, 4, v0"); o("v_and_b32 v11, 15, v0")
    o("v_lshlrev_b32 v5, 16, v10"); o("v_lshl_add_u32 v5, v11, 4, v5")
    o("s_lshl_b32 s62, s2, 8")
    o("s_cmp_ge_u32 s3, 10"); o("s_cbranch_scc1 K2_NOX")
    o(f"buffer_load_dwordx4 {vr(ACC,4)}, v5, s[{sX}:{sX+3}], s62 offen")
    lab("K2_NOX")
    o("v_lshlrev_b32 v14, 4, v1")
    o("s_lshl_b32 s63, s61, 10"); o(f"s_add_u32 s63, s63, {hex(WPACK_OFF+65536)}")
    o(f"buffer_load_dwordx4 {vr(CF,4)}, v14, s[{sW}:{sW+3}], s63 offen")
    def wload():
        o("s_cmp_ge_u32 s3, 8"); o("s_cbranch_scc1 K2_NOW")
        o("s_lshl_b32 s63, s3, 13"); o(f"s_add_u32 s63, s63, {hex(WPACK_OFF)}"); o("s_add_u32 s64, s63, 4096")
        for s in range(8):
            o(f"buffer_load_dwordx4 {vr(WF[s],4)}, v14, s[{sW}:{sW+3}], s{63 + s//4} offen offset:{(s%4)*1024}")
        lab("K2_NOW")
    WP = ([int(a[2:]) for a in sys.argv if a.startswith("wp")] + [0])[0]
    if WP == 0: wload()
    srd(sE, 6, E * 32); srd(sT, 20, TABLE_BYTES, TABLE_OFF); srd(sO, 18, N * 256)
    PW = ([int(a[2:]) for a in sys.argv if a.startswith("pw")] + [12])[0]
    if PFT:
        o(f"s_cmp_lt_u32 s3, {PW}"); o("s_cbranch_scc1 K2_NOPF")
        o("v_lshlrev_b32 v23, 7, v1")
        o("s_lshr_b32 s63, s2, 3"); o(f"s_mul_i32 s63, s63, {16-PW}"); o("s_add_u32 s63, s63, s3"); o(f"s_sub_u32 s63, s63, {PW}")
        o(f"s_mul_i32 s63, s63, {PFT*8192}")
        for i in range(PFT):
            o(f"buffer_load_dword v{G[2]}, v23, s[{sT}:{sT+3}], s63 offen")
            if i < PFT-1: o("s_add_u32 s63, s63, 8192")
        lab("K2_NOPF")
    for i in range(4):
        o(f"v_bfe_u32 v{16+i}, v0, {2*i}, 1"); o(f"v_bfe_u32 v20, v0, {2*i+1}, 1")
        o(f"v_lshl_or_b32 v{16+i}, v20, 16, v{16+i}")
        o(f"v_mul_u32_u24 v{16+i}, 0x3f80, v{16+i}")
    o("s_cmp_ge_u32 s3, 4"); o("s_cbranch_scc1 K2_NOLUT")
    o(f"ds_write_b128 v8, v[16:19] offset:{LUT}")
    lab("K2_NOLUT")
    o("s_lshl_b32 s63, s61, 7")
    o("v_lshlrev_b32 v2, 2, v6"); o("v_add_u32 v2, s63, v2")
    o("v_mov_b32 v3, v2")
    o(f"v_mul_u32_u24 v15, {CH}, v15")
    if 'xb' in sys.argv: o("s_lshl_b32 s63, s2, 9"); o("v_mov_b32 v15, s63")
    o("s_mov_b32 s72, 0")
    o("s_mov_b32 s73, 0")
    def pool_init():
        o("v_and_b32 v20, 16, v0"); o("v_cmp_eq_u32 vcc, 0, v20")
        o(f"v_mov_b32 v21, {hex(OOB)}"); o("v_mov_b32 v28, 0")
        o("v_cndmask_b32 v24, 0, v21, vcc")
        o("v_mov_b32 v29, 0"); o("v_mov_b32 v30, 0"); o("v_mov_b32 v31, 0")
        o("v_mov_b32 v25, v24"); o("v_mov_b32 v26, v24"); o("v_mov_b32 v27, v24")
        o(f"v_mov_b32 v20, {CNT}")
        for i in range(2):
            o(f"ds_write_b128 v8, v[24:27] offset:{POOL + i*16384}")
        o("ds_write_b128 v20, v[28:31]")
        o(f"v_add_u32 v21, {EB}, v8")
        for i in range(3): o(f"ds_write_b128 v21, v[28:31] offset:{i*16384}")
    if WP == 1: wload()
    pool_init()
    if WP == 2: wload()
    o("ds_write_b32 v20, v28 offset:16")
    o("v_mov_b32 v22, 1")
    o("v_mul_u32_u24 v5, 272, v10"); o("v_lshl_add_u32 v5, v11, 4, v5")
    o("s_mov_b32 s78, 1.0"); o("s_mov_b32 s79, 1.0")
    o("s_waitcnt lgkmcnt(0)"); o("s_barrier")
    if WP == 3: wload()
    o("s_cmp_ge_u32 s3, 8"); o("s_cbranch_scc1 K2_XW1")
    o("s_waitcnt vmcnt(9)"); o("s_branch K2_XW2")
    lab("K2_XW1"); o(f"s_waitcnt vmcnt({1+PFT})")
    if PFT: o(f"s_cmp_ge_u32 s3, {PW}"); o("s_cbranch_scc1 K2_B1"); o("s_waitcnt vmcnt(1)")
    o("s_cmp_ge_u32 s3, 10"); o("s_cbranch_scc1 K2_B1")
    lab("K2_XW2")
    o(f"ds_write_b128 v5, {vr(ACC,4)} offset:{XS}")
    o("s_mov_b64 exec, 1"); o("ds_add_u32 v20, v22 offset:16"); o("s_mov_b64 exec, -1")
    lab("K2_B1")
    if not ALT: stamp(1)
    o(f"v_cmp_eq_u32 vcc, -2, v{EN}")
    o("s_cbranch_vccz K2_COMPACT")
    o(f"v_mov_b32 v20, {CNT}"); o("v_mov_b32 v21, 1"); o("ds_write_b32 v20, v21 offset:8")
    lab("K2_COMPACT")
    o("s_setprio 3")
    o("v_and_b32 v20, 1, v0"); o("v_lshlrev_b32 v20, 4, v20"); o(f"v_mov_b32 v21, {hex(OOB)}")
    for i in range(2):
        e = EN + i
        o(f"v_cmp_gt_u32 s[{74+2*i}:{75+2*i}], -2, v{e}")
        o(f"v_lshrrev_b32 v{22+i}, 20, v{e}"); o(f"v_add_lshl_u32 v{22+i}, v{22+i}, v15, 5")
    for i in range(2):
        o(f"v_cndmask_b32 v{22+i}, v21, v{22+i}, s[{74+2*i}:{75+2*i}]")
    o("s_nop 0")
    for i in range(2):
        for p, qp in enumerate(["[0,0,2,2]", "[1,1,3,3]"]):
            o(f"v_add_u32_dpp v{G[1]+4*(2*i+p)}, v{22+i}, v20 quad_perm:{qp} row_mask:0xf bank_mask:0xf")
    def eload():
        for i in range(4):
            o(f"buffer_load_dwordx4 {vr(G[1]+4*i,4)}, v{G[1]+4*i}, s[{sE}:{sE+3}], 0 offen {EFLG}")
    EW = ([int(a[2:]) for a in sys.argv if a.startswith("ew")] + [8])[0]
    o(f"s_cmp_ge_u32 s3, {EW}"); o("s_cbranch_scc1 K2_ELATE")
    eload()
    lab("K2_ELATE")
    if not ALT: stamp(2)
    for i in range(2):
        e = EN + i
        o(f"v_and_b32 v{16+i}, 3, v{e}")
        o(f"v_lshlrev_b32 v{18+i}, 3, v{16+i}")
        o(f"v_bfm_b32 v{20+i}, 1, v{18+i}")
        o(f"v_cndmask_b32 v{20+i}, 0, v{20+i}, s[{74+2*i}:{75+2*i}]")
    o("v_add_u32 v22, v20, v21"); o("v_mov_b32 v23, v22")
    fill = []
    for i in range(2):
        e = EN + i
        fill += [f"v_bfe_u32 v{24+2*i}, v{e}, 6, 14", f"v_lshlrev_b32 v{24+2*i}, 9, v{24+2*i}",
                 f"v_bfe_u32 v{28+i}, v{e}, 2, 4", f"v_bfe_u32 v{30+i}, v{e}, 5, 1",
                 f"v_and_b32 v{25+2*i}, 3, v{28+i}", f"v_lshl_or_b32 v{25+2*i}, v{30+i}, 2, v{25+2*i}"]
    dpp = ["row_shr:1", "row_shr:2", "row_shr:4", "row_shr:8"]
    for j, d in enumerate(dpp):
        o(fill[2*j]); o(fill[2*j+1])
        o(f"v_add_u32_dpp v23, v23, v23 {d} row_mask:0xf bank_mask:0xf bound_ctrl:0")
    o(fill[8]); o(fill[9])
    o("v_add_u32_dpp v23, v23, v23 row_bcast:15 row_mask:0xa bank_mask:0xf")
    o(fill[10]); o(fill[11])
    o("v_add_u32_dpp v23, v23, v23 row_bcast:31 row_mask:0xc bank_mask:0xf")
    o("s_nop 0")
    o("v_readlane_b32 s64, v23, 63")
    o("v_sub_u32 v23, v23, v22")
    o("s_and_b32 s65, s64, 0xff"); o("s_bfe_u32 s66, s64, 0x80008"); o("s_lshl_b32 s66, s66, 16"); o("s_or_b32 s65, s65, s66")
    o("s_bfe_u32 s66, s64, 0x80010"); o("s_lshr_b32 s67, s64, 24"); o("s_lshl_b32 s67, s67, 16"); o("s_or_b32 s66, s66, s67")
    o("v_mov_b32 v48, s65"); o("v_mov_b32 v49, s66"); o(f"v_mov_b32 v50, {CNT}")
    o("s_mov_b64 exec, 1")
    o("ds_add_rtn_u64 v[48:49], v50, v[48:49]")
    o("s_mov_b64 exec, -1")
    o("v_add_u32 v22, v23, v20")
    o("v_bfe_u32 v20, v23, v18, 8"); o("v_bfe_u32 v21, v22, v19, 8")
    for i in range(2):
        o(f"v_bfm_b32 v{30+i}, 1, v{25+2*i}")
        o(f"v_bfe_u32 v{22+i}, v{28+i}, 2, 1"); o(f"v_lshlrev_b32 v{22+i}, 7, v{22+i}")
        o(f"v_lshlrev_b32 v{18+i}, 1, v{18+i}")
        o(f"v_mul_u32_u24 v{16+i}, {CAP*512}, v{16+i}")
    o(f"s_movk_i32 s68, {CAP*32}")
    o("s_waitcnt lgkmcnt(0)")
    o("v_readfirstlane_b32 s64, v48"); o("v_readfirstlane_b32 s65, v49")
    o("s_nop 1")
    for i in range(2):
        o(f"v_lshrrev_b64 v[48:49], v{18+i}, s[64:65]")
        o("v_and_b32 v48, 0xffff, v48"); o(f"v_add_u32 v48, v48, v{20+i}")
        o("v_cmp_gt_u32 vcc, s68, v48")
        o("v_lshrrev_b32 v49, 5, v48"); o("v_and_b32 v48, 31, v48")
        o(f"v_lshl_add_u32 v49, v49, 9, v{16+i}")
        o("v_lshl_add_u32 v50, v48, 2, v49")
        o(f"v_add_u32 v51, v50, v{22+i}")
        o("v_lshrrev_b32 v52, 3, v48"); o("v_and_b32 v53, 3, v48")
        o("v_lshl_or_b32 v52, v52, 2, v53"); o("v_lshlrev_b32 v52, v52, v0") if False else None
        o("v_lshl_or_b32 v52, v52, 2, v53") if False else None
        o("v_add_u32 v52, 8, v52"); o("v_bfm_b32 v52, 1, v52")
        o("v_bfe_u32 v53, v48, 2, 1"); o("v_lshl_add_u32 v53, v53, 7, v49")
        o(f"v_lshl_add_u32 v53, v{28+i}, 2, v53")
        o(f"v_bfrev_b32 v{EN+i}, 1")
        o("v_lshlrev_b32 v48, 4, v48")
        o(f"s_and_b64 exec, vcc, s[{74+2*i}:{75+2*i}]")
        o(f"v_lshl_add_u32 v{EN+i}, v49, 1, v48")
        o(f"ds_write_b32 v50, v{24+2*i}")
        o(f"ds_or_b32 v51, v{30+i} offset:256")
        o("ds_or_b32 v53, v52 offset:256")
        o("s_mov_b64 exec, -1")
    o(f"v_mov_b32 v17, {CNT}"); o("v_mov_b32 v16, 0x10000")
    o("s_mov_b64 exec, 1")
    o("ds_add_u32 v17, v16 offset:12")
    o("s_mov_b64 exec, -1")
    if not ALT: stamp(3)
    o(f"s_cmp_lt_u32 s3, {EW}"); o("s_cbranch_scc1 K2_EEARLY")
    eload()
    lab("K2_EEARLY")
    o("s_setprio 0")
    o("s_cmp_lg_u32 s72, 0"); o("s_cbranch_scc1 K2_B2")
    o("s_cmp_ge_u32 s3, 8"); o("s_cbranch_scc1 K2_B2")
    o("v_and_b32 v9, 15, v1"); o("v_min_u32 v9, 9, v9"); o("v_bfe_u32 v73, v1, 4, 1")
    o("v_lshl_add_u32 v9, v9, 2, v73"); o("v_mul_u32_u24 v9, 272, v9"); o("v_lshl_add_u32 v9, v7, 4, v9")
    lab("K2_SPINX")
    o("ds_read_b32 v16, v17 offset:16")
    o("s_waitcnt lgkmcnt(0)")
    o("v_readfirstlane_b32 s70, v16")
    o("s_cmp_lg_u32 s70, 10"); o("s_cbranch_scc1 K2_SPINX")
    XB = [G[0], G[0]+4, G[0]+8, G[0]+12, RO, RO+4, PF]
    def xrd(i): o(f"ds_read_b128 {vr(XB[i%7],4)}, v9 offset:{XS + 32*(i>>1) + 544*(i&1)}")
    for i in range(6): xrd(i)
    o("s_waitcnt vmcnt(4)")
    for i in range(16):
        if i + 6 < 16: xrd(i + 6)
        o(f"s_waitcnt lgkmcnt({min(6, 15-i)})")
        D = ACC if i & 1 else Z
        mfma(D, XB[i%7], WF[i>>1], None if i < 2 else D)
    o("s_cmp_ge_u32 s3, 4"); o("s_cbranch_scc1 K2_UOUT")
    o(f"s_mov_b32 s65, {hex(NLOG2E)}")
    o("s_lshl_b32 s70, s61, 10"); o("v_add_u32 v72, s70, v14")
    o("s_nop 7")
    for v in range(32): o(f"v_mul_f32 v{Z+v}, s65, v{Z+v}")
    for i in range(16): o(f"v_cvt_pk_bf16_f32 v{Z+i}, v{Z+2*i}, v{Z+2*i+1}")
    for l in range(4): o(f"ds_write_b128 v72, {vr(Z+4*l,4)} offset:{PX + l*4096}")
    o("s_branch K2_B2")
    lab("K2_UOUT")
    o("s_lshl_b32 s70, s61, 11"); o(f"s_add_u32 s70, s70, {UX}"); o("v_add_u32 v72, s70, v14")
    o("s_nop 8")
    for l in range(4):
        for hf in range(2): o(f"ds_write_b128 v72, {vr(Z+8*l+4*hf,4)} offset:{l*8192 + hf*1024}")
    lab("K2_B2")
    if not ALT: stamp(4)
    o(f"v_mov_b32 v48, {CNT}")
    o(f"s_mul_i32 s66, s60, {CAP*512}")
    o("v_lshl_add_u32 v4, v7, 4, s66")
    o("v_lshl_add_u32 v5, v1, 2, s66")
    o(f"s_lshl_b32 s66, s66, 1"); o(f"s_add_u32 s66, s66, {EB}")
    o("v_add_u32 v10, s66, v14")
    lab("K2_SPINA")
    o("ds_read_b128 v[52:55], v48")
    o("s_waitcnt lgkmcnt(0)")
    o("v_readfirstlane_b32 s70, v55")
    o("s_cmp_lt_u32 s70, 0x100000"); o("s_cbranch_scc1 K2_SPINA")
    o("v_readfirstlane_b32 s64, v52"); o("v_readfirstlane_b32 s65, v53"); o("v_readfirstlane_b32 s69, v54")
    o("s_and_b32 s70, s64, 0xffff"); o("s_lshr_b32 s71, s64, 16"); o("s_max_u32 s70, s70, s71")
    o("s_and_b32 s71, s65, 0xffff"); o("s_max_u32 s70, s70, s71"); o("s_lshr_b32 s71, s65, 16"); o("s_max_u32 s70, s70, s71")
    o("s_cmp_gt_u32 s70, s68"); o("s_cselect_b32 s69, 1, s69")
    o("s_cmp_lg_u32 s69, 0"); o("s_cbranch_scc1 K2_BAD")
    o("s_lshl_b32 s70, s60, 4"); o("s_lshr_b64 s[64:65], s[64:65], s70"); o("s_and_b32 s64, s64, 0xffff")
    o("s_add_u32 s64, s64, 31"); o("s_lshr_b32 s64, s64, 5")
    if ALT: stamp(1)
    if PRIO and PRIO < 4: o("s_setprio 3")
    if PRIO in (4, 5, 7, 8): o("s_setprio 2")
    if PRIO == 6: o("s_setprio 3")
    MK = [11, 12, 13]
    def issue_a():
        for c in range(2): o(f"ds_read_b128 {vr(RO+4*c,4)}, v4 offset:{32*c}")
    def issue_b(k, first):
        for hf in range(2):
            if hf == 1:
                for c in range(2):
                    o(f"ds_read_b128 {vr(RO+4*c,4)}, v4 offset:{32*(2+c)}")
                o(f"ds_read_b32 v{MK[k]}, v5 offset:256")
            for c in range(2):
                if hf == 1 or first: o(f"s_waitcnt lgkmcnt({1-c+hf})")
                for i in range(0, 4, 2):
                    o(f"v_lshl_add_u64 {vr(RO+4*c+i,2)}, {vr(RO+4*c+i,2)}, 0, v[2:3]")
                for i in range(0 if 'nold' in sys.argv else 4):
                    o(f"buffer_load_dword v{G[k]+8*hf+4*c+i}, v{RO+4*c+i}, s[{sT}:{sT+3}], 0 offen {GFLG}")
        o("v_add_u32 v4, 512, v4"); o("v_add_u32 v5, 512, v5")
    ER = ([int(a[2:]) for a in sys.argv if a.startswith("er")] + [2])[0]
    o("v_and_b32 v16, 1, v0"); o("v_lshlrev_b32 v16, 9, v16"); o(f"v_add_u32 v16, {EB}, v16")
    o(f"v_mov_b32 v17, {CNT}")
    for i in range(2):
        for p, qp in enumerate(["[0,0,2,2]", "[1,1,3,3]"]):
            o(f"v_add_u32_dpp v{18+2*i+p}, v{EN+i}, v16 quad_perm:{qp} row_mask:0xf bank_mask:0xf")
    o("v_mov_b32 v16, 1")
    o(f"s_cmp_lt_u32 s60, {ER}"); o("s_cselect_b32 s69, s64, 0")
    o("s_cmp_eq_u32 s69, 0"); o("s_cbranch_scc1 K2_EW0")
    lab("K2_I0")
    issue_a(); issue_b(0, True)
    if ALT: stamp(2)
    o("s_cmp_eq_u32 s69, 0"); o("s_cbranch_scc1 K2_I1")
    o("s_waitcnt vmcnt(16)"); o("s_branch K2_EW")
    lab("K2_EW0")
    o("s_waitcnt vmcnt(0)")
    lab("K2_EW")
    for i in range(4):
        o(f"v_cmpx_le_i32 vcc, 0, v{18+i}")
        o(f"ds_write_b128 v{18+i}, {vr(G[1]+4*i,4)}")
        o("s_mov_b64 exec, -1")
    o("s_mov_b64 exec, 1")
    o("s_waitcnt lgkmcnt(0)")
    o("ds_add_u32 v17, v16 offset:12")
    o("s_mov_b64 exec, -1")
    if ALT: stamp(3)
    o("s_cmp_lg_u32 s69, s64"); o("s_cbranch_scc1 K2_I0")
    lab("K2_I1")
    if PRIO in (2, 3): o("s_setprio 2")
    if PRIO == 4: o("s_setprio 1")
    o("s_cmp_lt_u32 s64, 2"); o("s_cbranch_scc1 K2_SPIN")
    issue_a(); issue_b(1, True)
    lab("K2_SPIN")
    if PRIO in (1, 2): o("s_setprio 1")
    lab("K2_SPINE")
    o("ds_read_b32 v16, v17 offset:12")
    o("s_waitcnt lgkmcnt(0)")
    o("v_readfirstlane_b32 s70, v16")
    o("s_cmp_lg_u32 s70, 0x100010"); o("s_cbranch_scc1 K2_SPINE")
    o("s_cmp_lg_u32 s73, 0"); o("s_cbranch_scc1 K2_LOOP0")
    o("s_mov_b32 s73, 1")
    o("s_lshl_b32 s70, s3, 10"); o("v_add_u32 v18, s70, v14")
    o(f"ds_read_b128 {vr(PF,4)}, v18 offset:{PX}")
    o("s_lshl_b32 s70, s3, 11"); o(f"s_add_u32 s70, s70, {UX}"); o("v_add_u32 v18, s70, v14")
    o(f"ds_read_b128 {vr(ACC,4)}, v18"); o(f"ds_read_b128 {vr(ACC+4,4)}, v18 offset:1024")
    for v in range(8, 16): o(f"v_mov_b32 v{ACC+v}, 0")
    if ALT: stamp(4)
    PK = "nopk" not in sys.argv
    def body(k):
        g = G[k]
        lab(f"K2_LOOP{k}")
        o("s_cmp_eq_u32 s64, 0"); o("s_cbranch_scc1 K2_BATCH_DONE")
        o(f"ds_read_b128 {vr(EF,4)}, v10")
        for i in range(3):
            o(f"v_lshlrev_b32_sdwa v9, 4, v{MK[k]} dst_sel:DWORD dst_unused:UNUSED_PAD src0_sel:DWORD src1_sel:BYTE_{i}")
            if 'nolut' not in sys.argv: o(f"ds_read_b128 {vr(FR+4*i,4)}, v9 offset:{LUT}")
        issue_a()
        o("v_add_u32 v10, 1024, v10")
        o("s_cmp_eq_u32 s64, 1"); o(f"s_cbranch_scc1 K2_W{k}")
        o("s_waitcnt vmcnt(16)")
        lab(f"K2_C{k}")
        for v in range(0, 16, 2): o(f"v_lshlrev_b64 {vr(Z+v,2)}, 16, {vr(g+v,2)}")
        o("s_sub_u32 s64, s64, 1")
        o("s_waitcnt lgkmcnt(0)")
        mfma(Z, EF, CF, Z); mfma(Z, FR, PF, Z)
        o("s_cmp_lt_u32 s64, 2"); o(f"s_cbranch_scc1 K2_N{k}")
        issue_b((k + 2) % 3, False)
        lab(f"K2_X{k}")
        for v in range(0 if 'notr' in sys.argv else 16): o(f"v_exp_f32 v{Z+v}, v{Z+v}")
        if PK:
            for v in range(0, 16, 2): o(f"v_pk_add_f32 {vr(Z+v,2)}, {vr(Z+v,2)}, s[78:79]")
        else:
            for v in range(16): o(f"v_add_f32 v{Z+v}, 1.0, v{Z+v}")
        for v in range(0 if 'notr' in sys.argv else 16): o(f"v_rcp_f32 v{Z+v}, v{Z+v}")
        if PK:
            for v in range(0, 16, 2): o(f"v_pk_mul_f32 {vr(Z+v,2)}, {vr(Z+v,2)}, {vr(g+v,2)}")
        else:
            for v in range(16): o(f"v_mul_f32 v{Z+v}, v{Z+v}, v{g+v}")
        for i in range(8): o(f"v_cvt_pk_bf16_f32 v{Z+i}, v{Z+2*i}, v{Z+2*i+1}")
        o("s_waitcnt lgkmcnt(0)")
        o("s_nop 0")
        mfma(ACC, FR+4, Z, ACC); mfma(ACC, FR+8, Z+4, ACC)
        if PRIO in (1, 2) and k == 0: o("s_setprio 0")
        if PRIO == 4:
            o("s_cmp_gt_u32 s64, 2"); o(f"s_cbranch_scc1 K2_PR{k}"); o("s_setprio 0")
            lab(f"K2_PR{k}")
        if PRIO == 6: o("s_setprio 2")
        if PRIO == 7:
            o("s_setprio 1"); o("s_cmp_gt_u32 s64, 2"); o(f"s_cbranch_scc1 K2_PR{k}"); o("s_setprio 0")
            lab(f"K2_PR{k}")
        if PRIO == 8:
            o("s_cmp_gt_u32 s64, 4"); o(f"s_cbranch_scc1 K2_PR{k}"); o("s_setprio 1")
            o("s_cmp_gt_u32 s64, 2"); o(f"s_cbranch_scc1 K2_PR{k}"); o("s_setprio 0")
            lab(f"K2_PR{k}")
        if PRIO in (3, 5, 6):
            o("s_cmp_gt_u32 s64, 3"); o(f"s_cbranch_scc1 K2_PR{k}"); o("s_setprio 1")
            o("s_cmp_gt_u32 s64, 1"); o(f"s_cbranch_scc1 K2_PR{k}"); o("s_setprio 0")
            lab(f"K2_PR{k}")
    for k in range(3): body(k)
    o("s_branch K2_LOOP0")
    for k in range(3):
        lab(f"K2_W{k}"); o("s_waitcnt vmcnt(0)"); o(f"s_branch K2_C{k}")
        lab(f"K2_N{k}"); o("s_nop 10"); o(f"s_branch K2_X{k}")
    lab("K2_BAD")
    o("s_cmp_eq_u32 s72, 0"); o("s_cselect_b32 s58, 0, s58"); o("s_movk_i32 s59, 2048"); o("s_cselect_b32 s59, s59, 256")
    o("s_mov_b32 s72, 1"); o("s_branch K2_SCAN")
    lab("K2_BATCH_DONE")
    o("s_cmp_eq_u32 s72, 0"); o("s_cbranch_scc1 K2_EPI")
    o("s_add_u32 s58, s58, s59"); o("s_movk_i32 s59, 2048")
    o(f"s_cmp_ge_u32 s58, {E}"); o("s_cbranch_scc1 K2_EPI")
    lab("K2_SCAN")
    o("s_waitcnt vmcnt(0) lgkmcnt(0)")
    srd(44, 8, E * 4); srd(48, 10, E * 4)
    o("s_lshl_b32 s57, s58, 2"); o("v_lshlrev_b32 v9, 3, v0")
    o("buffer_load_dwordx2 v[48:49], v9, s[48:51], s57 offen")
    o("buffer_load_dwordx2 v[50:51], v9, s[44:47], s57 offen")
    o("s_barrier")
    pool_init()
    o("v_mov_b32 v15, s58")
    o(f"s_sub_u32 s57, {E}, s58"); o("s_min_u32 s57, s57, s59")
    o("s_waitcnt vmcnt(0)")
    for i in range(2):
        o(f"v_lshl_add_u32 v20, v0, 1, {i}")
        o(f"v_and_b32 v21, 0xff, v{48+i}")
        o("v_cmp_eq_u32 vcc, s2, v21"); o("v_cmp_gt_u32 s[66:67], s57, v20")
        o("s_and_b64 vcc, vcc, s[66:67]")
        o(f"v_lshrrev_b32 v21, 8, v{48+i}")
        o(f"v_lshl_or_b32 v21, v{50+i}, 6, v21"); o("v_lshl_or_b32 v21, v20, 20, v21")
        o(f"v_cndmask_b32 v{EN+i}, -1, v21, vcc")
    o("s_waitcnt lgkmcnt(0)"); o("s_barrier")
    o("s_branch K2_COMPACT")
    lab("K2_EPI")
    o("s_waitcnt vmcnt(0) lgkmcnt(0)")
    o(f"s_mov_b32 s65, {hex(NLOG2E)}")
    o("v_lshlrev_b32 v9, 20, v7"); o("v_lshl_add_u32 v9, v6, 1, v9")
    o("s_lshl_b32 s63, s61, 6"); o("s_add_u32 s62, s62, s63"); o("s_lshl_b32 s63, s60, 16"); o("s_add_u32 s62, s62, s63")
    o("s_nop 7")
    for v in range(6): o(f"v_mul_f32 v{Z+v}, s65, v{ACC+v}")
    for v in range(6): o(f"v_exp_f32 v{Z+v}, v{Z+v}")
    for v in range(6): o(f"v_add_f32 v{Z+v}, 1.0, v{Z+v}")
    for v in range(6): o(f"v_rcp_f32 v{Z+v}, v{Z+v}")
    for v in range(6): o(f"v_mul_f32 v{Z+v}, v{Z+v}, v{ACC+v}")
    for v in range(6): o(f"v_cvt_pk_bf16_f32 v{Z+v}, v{Z+v}, v{Z+v}")
    for v in range(6):
        if v == 4: o("s_mov_b32 exec_hi, 0")
        o(f"s_add_u32 s63, s62, {((v&3) + 8*(v>>2)) << 18}")
        o(f"buffer_store_short v{Z+v}, v9, s[{sO}:{sO+3}], s63 offen {OFLG}")
    o("s_lshr_b32 s89, s3, 2") if STAMPS else None
    stamp_out(1, "s89")
    lab("K2_END")
    o("s_endpgm")

header(); k1(); k2()
L.append('.section .rodata,"a"')
kdesc("prep_kernel", 176 if GQ else 160, 102 if STAMPS else 56); kdesc(NAME + "_kernel", 128, 102 if STAMPS else 80)
out = sys.argv[1] if len(sys.argv) > 1 else "cdna_kernels/%s.s" % NAME
open(out, "w").write("\n".join(x for x in L if x is not None) + "\n")
```

```python
import sys
NAME = "standalone__edge_featured_mpnn_egc__graph"
N, E = 10000, 160000
NPROD, CH = 64, 2500
CELLS_OFF, TABLE_OFF, WPACK_OFF = 0, 0x200000, 0x800000
TABLE_BYTES = N * 512
NG = 157
NLOG2E = 0xBFB8AA3B
OOB = 0x7FFFF000
L = []
def o(s): L.append("    " + s)
def lab(s): L.append(s + ":")
def srd(d, b, nbytes, off=0):
    if off:
        o(f"s_add_u32 s{d}, s{b}, {hex(off)}"); o(f"s_addc_u32 s{d+1}, s{b+1}, 0")
    else:
        o(f"s_mov_b32 s{d}, s{b}"); o(f"s_mov_b32 s{d+1}, s{b+1}")
    o(f"s_mov_b32 s{d+2}, {hex(nbytes)}"); o(f"s_mov_b32 s{d+3}, 0x00020000")
def vr(a, n): return f"v[{a}:{a+n-1}]"
def mfma(d, a, b, c):
    cs = "0" if c is None else vr(c, 16)
    o(f"v_mfma_f32_32x32x16_bf16 {vr(d,16)}, {vr(a,4)}, {vr(b,4)}, {cs}")

STAMPS = "stamps" in sys.argv
def stamp(i):
    if STAMPS: o(f"s_memrealtime s[{90+2*i}:{91+2*i}]")
def stamp_init():
    if STAMPS:
        for i in range(1, 6): o(f"s_mov_b32 s{90+2*i}, 0")
        o("v_lshrrev_b32 v255, 6, v0") if False else None
        stamp(0)
def stamp_out(kid, role):
    if not STAMPS: return
    o("s_waitcnt vmcnt(0)")
    stamp(5)
    o("s_waitcnt lgkmcnt(0)")
    o("s_mov_b64 exec, -1")
    o("v_lshrrev_b32 v1, 6, v0"); o("v_and_b32 v2, 63, v0")
    o("v_lshlrev_b32 v1, 5, v1"); o("v_lshl_add_u32 v1, v2, 2, v1")
    for i in range(6): o(f"v_writelane_b32 v3, s{90+2*i}, {i}")
    o(f"s_mov_b32 s4, {role}"); o("v_writelane_b32 v3, s4, 6")
    o("s_mov_b32 s4, 0xC0FFEE"); o("v_writelane_b32 v3, s4, 7")
    if "dbg" in sys.argv:
        wg, slot, msk = {(0,0): (5, 12, 0xf), (0,1): (100, 0, 0x3f), (1,0): (77, 6, 0x3f)}[(kid, role)]
        o("v_readfirstlane_b32 s5, v1"); o("s_load_dwordx2 s[12:13], s[0:1], 64")
        o("s_waitcnt lgkmcnt(0)")
        o(f"s_add_u32 s8, s12, {512*(1-kid)}"); o("s_addc_u32 s9, s13, 0"); o("s_mov_b32 s10, 256"); o("s_mov_b32 s11, 0x00020000")
        o(f"s_xor_b32 s4, s2, {wg}"); o("s_or_b32 s4, s4, s5"); o("s_cmp_eq_u32 s4, 0"); o(f"s_cbranch_scc0 DBG{kid}{role}")
        o(f"v_lshlrev_b32 v1, 2, v2"); o(f"s_mov_b64 exec, {msk}")
        o(f"buffer_store_dword v3, v1, s[8:11], 0 offen offset:{4*slot}")
        lab(f"DBG{kid}{role}")
        return
    srd(8, 20, 0x100000, 0x4000000 + kid * 512 * 512)
    o("s_lshl_b32 s4, s2, 9")
    o("s_mov_b64 exec, 0xff")
    o("buffer_store_dword v3, v1, s[8:11], s4 offen")

def header():
    src = open("cdna_kernels/%s.s.ref" % NAME).read().split("\n")
    for l in src:
        if l.startswith("; Override"): break
        L.append(l)
    L.append("; @launch kernel=prep_kernel grid=(%d,1,1) block=(512,1,1) lds=%d" % (NPROD + NG + 1 + globals().get("NXW", 0), K1_LDS))
    L.append("; @launch kernel=%s_kernel grid=(256,1,1) block=(1024,1,1) lds=%d" % (NAME, K2_LDS))
    L.append('.amdgcn_target "amdgcn-amd-amdhsa--gfx950"')
    L.append(".text")

def kstart(n):
    L.append(f".globl {n}"); L.append(".p2align 8"); L.append(f".type {n},@function"); lab(n)

def kdesc(n, vg, sg):
    L.append(".p2align 6")
    L.append(f".amdhsa_kernel {n}")
    for k, v in [("next_free_vgpr", vg), ("next_free_sgpr", sg), ("accum_offset", (vg + 3) // 4 * 4),
                 ("group_segment_fixed_size", 0), ("kernarg_size", 80), ("user_sgpr_count", 2),
                 ("user_sgpr_kernarg_segment_ptr", 1), ("system_sgpr_workgroup_id_x", 1)]:
        L.append(f"  .amdhsa_{k} {v}")
    L.append(".end_amdhsa_kernel")

NPF = 0
TFLG = ([a[2:].replace("_", " ") for a in sys.argv if a.startswith("tf")] + [""])[0]
CFLG = ([a[2:].replace("_", " ") for a in sys.argv if a.startswith("cf")] + [""])[0]
WARM = "nowarm" not in sys.argv
NXW = 34 if WARM else 0
XR = ([int(a[2:]) for a in sys.argv if a.startswith('xr')] + [11])[0]
PR = ([int(a[2:]) for a in sys.argv if a.startswith('pq')] + [4])[0]
PDO = 'pdo' in sys.argv
WK = ([a[2:].replace('_', ' ') for a in sys.argv if a.startswith('wk')] + [''])[0]
GQ = ([int(a[2:]) for a in sys.argv if a.startswith('gq')] + [0])[0]
K1_LDS = 81920 + 64 * 272
def prefetch_e(va="v1"):
    if not NPF: return
    srd(48, 6, E * 32)
    o("s_mul_i32 s52, s2, 24576")
    for i in range(3):
        o(f"buffer_load_dwordx4 {vr(144+4*i,4)}, {va}, s[48:51], s52 offen")
        if i < 2: o("s_add_u32 s52, s52, 8192")
TLB = "tlb" in sys.argv
def touch(tag, vt, table):
    if not TLB: return
    o(f"v_readfirstlane_b32 s52, v0"); o("s_cmp_lg_u32 s52, 0"); o(f"s_cbranch_scc1 K1_T{tag}")
    srd(48, 6, E * 32)
    o(f"v_mul_u32_u24 v{vt}, 80000, v0")
    o(f"buffer_load_dword v{vt+1}, v{vt}, s[48:51], 0 offen")
    srd(48, 18, N * 256)
    o(f"v_lshrrev_b32 v{vt}, 1, v{vt}")
    o(f"buffer_load_dword v{vt+1}, v{vt}, s[48:51], 0 offen")
    if table:
        o("s_mov_b64 exec, 1")
        o(f"buffer_load_dword v{vt+1}, v{vt}, s[44:47], s40 offen")
        o("s_mov_b64 exec, -1")
    lab(f"K1_T{tag}")
def k1():
    kstart("prep_kernel")
    o(f"s_cmp_ge_u32 s2, {NPROD + NG + 1 + NXW}"); o("s_cbranch_scc1 K1_END")
    o("s_load_dwordx16 s[4:19], s[0:1], 0")
    o("s_load_dwordx2 s[20:21], s[0:1], 72")
    stamp_init()
    if WARM: o(f"s_cmp_ge_u32 s2, {NPROD + NG + 1}"); o("s_cbranch_scc1 K1_WARM")
    o(f"s_cmp_ge_u32 s2, {NPROD}"); o("s_cbranch_scc1 K1_GEMM")
    o("v_lshlrev_b32 v1, 2, v0")
    o(f"s_mul_i32 s22, s2, {CH*4}")
    o("v_mov_b32 v20, -1"); o("v_mov_b32 v21, -1"); o("v_mov_b32 v22, -1"); o("v_mov_b32 v23, -1")
    o("v_lshlrev_b32 v2, 4, v0")
    o("v_mov_b32 v24, 0")
    o("s_waitcnt lgkmcnt(0)")
    srd(24, 8, E * 4); srd(28, 10, E * 4); srd(32, 20, 0x200000, CELLS_OFF)
    for i in range(5):
        o(f"s_add_u32 s23, s22, {i*2048}")
        o(f"buffer_load_dword v{4+i}, v1, s[28:31], s23 offen")
        o(f"buffer_load_dword v{10+i}, v1, s[24:27], s23 offen")
    o("v_lshlrev_b32 v19, 2, v1"); prefetch_e("v19")
    for i in range(4):
        o(f"ds_write_b128 v2, v[20:23] offset:{i*8192}")
    o("ds_write_b32 v1, v24 offset:32768")
    o("v_mov_b32 v25, 0x10000"); o(f"s_movk_i32 s38, {N//2}")
    o("s_waitcnt lgkmcnt(0)"); o("s_barrier")
    o(f"v_cmp_gt_u32 s[36:37], {CH - 2048}, v0") if False else None
    o(f"s_movk_i32 s23, {CH - 2048}")
    o("v_cmp_gt_u32 s[36:37], s23, v0")
    for i in range(5):
        o(f"s_waitcnt vmcnt({2*(4-i)+NPF})")
        o(f"v_cmp_le_u32 s[{40+2*i}:{41+2*i}], s38, v{10+i}")
        if i == 4: o("s_mov_b64 exec, s[36:37]")
        o(f"v_and_b32 v{26+i}, 0xff, v{4+i}")
        o(f"v_lshlrev_b32 v16, 2, v{26+i}")
        o(f"v_cndmask_b32 v17, 1, v25, s[{40+2*i}:{41+2*i}]")
        o(f"ds_add_rtn_u32 v{32+i}, v16, v17 offset:32768")
    o("s_mov_b64 exec, -1")
    o(f"s_waitcnt vmcnt({NPF})")
    stamp(1)
    for i in range(5):
        o(f"v_lshrrev_b32 v{4+i}, 8, v{4+i}")
        o(f"v_lshl_or_b32 v{4+i}, v{10+i}, 6, v{4+i}")
        o(f"v_add_u32 v16, {i*512}, v0")
        o(f"v_lshl_or_b32 v{4+i}, v16, 20, v{4+i}")
    for i in range(5):
        o(f"s_waitcnt lgkmcnt({4-i})") if i == 0 or True else None
        o(f"v_and_b32 v16, 0xffff, v{32+i}"); o(f"v_lshrrev_b32 v17, 16, v{32+i}"); o("v_sub_u32 v17, 31, v17")
        o(f"v_cndmask_b32 v16, v16, v17, s[{40+2*i}:{41+2*i}]")
        o(f"v_cmp_gt_u32 vcc, 32, v16")
        o(f"v_lshlrev_b32 v16, 2, v16")
        o(f"v_lshl_add_u32 v{38+i}, v{26+i}, 7, v16")
        if i == 4: o("s_and_b64 vcc, vcc, s[36:37]")
        o(f"s_mov_b64 s[{40+2*i}:{41+2*i}], vcc")
    for i in range(5):
        o(f"s_mov_b64 exec, s[{40+2*i}:{41+2*i}]")
        o(f"ds_write_b32 v{38+i}, v{4+i}")
    o("s_mov_b64 exec, -1")
    o("s_waitcnt lgkmcnt(0)"); o("s_barrier")
    if WARM and not PDO and PR:
        srd(48, 6, E * 32); o(f"s_mul_i32 s52, s2, {PR*8192}")
        for i in range(PR):
            o(f"buffer_load_dwordx4 {vr(64+4*i,4)}, v2, s[48:51], s52 offen")
            o("s_add_u32 s52, s52, 8192")
    stamp(2)
    o("v_lshrrev_b32 v3, 3, v0")
    o("v_lshlrev_b32 v16, 2, v3")
    for i in range(4):
        o(f"ds_read_b128 {vr(44+4*i,4)}, v2 offset:{i*8192}")
        o(f"ds_read_b32 v{60+i}, v16 offset:{32768 + i*256}")
    o("v_and_b32 v17, 7, v0")
    o("v_cmp_eq_u32 vcc, 0, v17")
    o("v_lshlrev_b32 v17, 4, v17")
    o("v_lshl_add_u32 v17, v3, 13, v17")
    o("v_cndmask_b32 v18, -1, -2, vcc") if False else None
    o("v_mov_b32 v18, -2")
    o("v_cndmask_b32 v18, -1, v18, vcc")
    o("s_lshl_b32 s22, s2, 7")
    for i in range(4):
        o(f"s_waitcnt lgkmcnt({2*(3-i)})")
        o(f"v_add_u32_sdwa v{60+i}, v{60+i}, v{60+i} dst_sel:DWORD dst_unused:UNUSED_PAD src0_sel:WORD_0 src1_sel:WORD_1")
        o(f"v_cmp_lt_u32 vcc, 32, v{60+i}")
        o(f"s_add_u32 s23, s22, {i*64*8192}")
        o("s_nop 0")
        o(f"v_cndmask_b32 v{44+4*i}, v{44+4*i}, v18, vcc")
        for c in range(1, 4):
            o(f"v_cndmask_b32 v{44+4*i+c}, v{44+4*i+c}, v20, vcc")
        o(f"buffer_store_dwordx4 {vr(44+4*i,4)}, v17, s[32:35], s23 offen {CFLG}")
    if PDO:
        srd(48, 6, E * 32)
        o(f"s_mul_i32 s52, s2, {PR*8192}")
        for i in range(PR):
            o(f"buffer_load_dwordx4 {vr(68+4*i,4)}, v2, s[48:51], s52 offen")
            o("s_add_u32 s52, s52, 8192")
    touch("P", 110, False)
    stamp(3); stamp_out(0, 0)
    o("s_endpgm")
    lab("K1_GEMM")
    o(f"s_sub_u32 s3, s2, {NPROD}")
    o("v_lshlrev_b32 v1, 4, v0")
    o("v_lshrrev_b32 v2, 4, v0")
    o("v_mul_u32_u24 v2, 320, v2")
    o("v_and_b32 v3, 15, v0")
    o("v_lshl_add_u32 v2, v3, 4, v2")
    o("v_lshrrev_b32 v4, 6, v0")
    o("v_and_b32 v5, 63, v0")
    o("v_readfirstlane_b32 s36, v4")
    o("s_waitcnt lgkmcnt(0)")
    o(f"s_cmp_eq_u32 s3, {NG}")
    o("s_cselect_b32 s22, 0, 32768")
    o("s_cselect_b32 s28, s12, s14"); o("s_cselect_b32 s29, s13, s15")
    o("s_mov_b32 s30, 32768"); o("s_mov_b32 s31, 0x00020000")
    srd(24, 16, 272 * 256)
    srd(32, 4, N * 256)
    o("s_lshr_b32 s37, s36, 2"); o("s_and_b32 s38, s36, 3")
    o("s_lshl_b32 s39, s3, 1"); o("s_add_u32 s39, s39, s37")
    o("s_lshl_b32 s40, s3, 14")
    o("v_and_b32 v6, 31, v5"); o("v_lshrrev_b32 v7, 5, v5")
    o("s_add_u32 s41, s40, 8192")
    o("buffer_load_dwordx4 v[48:51], v1, s[32:35], s40 offen")
    o("buffer_load_dwordx4 v[52:55], v1, s[32:35], s41 offen")
    for i in range(4):
        o(f"s_add_u32 s23, s22, {i*8192}")
        o(f"buffer_load_dwordx4 {vr(16+4*i,4)}, v1, s[24:27], s23 offen")
    for i in range(4):
        o(f"s_mov_b32 s23, {i*8192}")
        o(f"buffer_load_dwordx4 {vr(32+4*i,4)}, v1, s[28:31], s23 offen")
    o("v_lshrrev_b32 v12, 4, v0"); o("v_mul_u32_u24 v12, 272, v12"); o("v_lshl_add_u32 v12, v3, 4, v12")
    o("v_add_u32 v12, 81920, v12")
    o("s_lshl_b32 s41, s37, 5"); o("v_add_u32 v8, s41, v6"); o("v_mul_u32_u24 v8, 272, v8")
    o("v_lshl_add_u32 v8, v7, 4, v8"); o("v_add_u32 v8, 81920, v8")
    o("v_bfe_u32 v9, v5, 2, 2")
    o("v_lshl_add_u32 v9, v7, 3, v9")
    o("v_mul_u32_u24 v9, 320, v9")
    o("v_bfe_u32 v10, v5, 4, 1"); o("v_lshl_add_u32 v9, v10, 5, v9")
    o("v_and_b32 v10, 3, v5"); o("v_lshl_add_u32 v9, v10, 3, v9")
    o("s_lshl_b32 s41, s38, 6"); o("v_add_u32 v9, s41, v9")
    o("v_add_u32 v10, 40960, v9")
    o("v_add_u32 v11, 40960, v2")
    o("s_waitcnt vmcnt(9)"); o("ds_write_b128 v12, v[48:51]")
    o("s_waitcnt vmcnt(8)"); o(f"ds_write_b128 v12, v[52:55] offset:{32*272}")
    for i in range(4):
        o(f"s_waitcnt vmcnt({7-i})")
        o(f"ds_write_b128 v2, {vr(16+4*i,4)} offset:{i*10240}")
    o("s_waitcnt lgkmcnt(0)"); o("s_barrier")
    stamp(1)
    W1, W2 = 80, 112
    AQ, AH = 16, 144
    def frags(W, va, xs):
        for s in range(8):
            if xs: o(f"ds_read_b128 {vr(48+4*s,4)}, v8 offset:{32*s}")
            for u in range(2):
                o(f"ds_read_b64_tr_b16 {vr(W+4*s+2*u,2)}, {va} offset:{(16*s+4*u)*320}")
            n = 3 if xs else 2
            if s >= 3:
                o(f"s_waitcnt lgkmcnt({3*n})"); yield s - 3
        for s in range(5, 8):
            o(f"s_waitcnt lgkmcnt({(7-s)*n})"); yield s
    for s in frags(W1, "v9", True): mfma(AQ, 48+4*s, W1+4*s, None if s == 0 else AQ)
    for i in range(4):
        o(f"s_waitcnt vmcnt({3-i})")
        o(f"ds_write_b128 v11, {vr(32+4*i,4)} offset:{i*10240}")
    srd(44, 20, TABLE_BYTES, TABLE_OFF)
    o("s_lshl_b32 s40, s39, 14")
    o("s_lshl_b32 s41, s38, 7"); o("s_add_u32 s40, s40, s41")
    o(f"s_mov_b32 s42, {hex(NLOG2E)}"); o("s_mov_b32 s43, 0xffff0000")
    touch("G", 13, True)
    if GQ:
        srd(48, 6, E * 32); o(f"s_mul_i32 s52, s3, {GQ*8192}"); o("v_lshlrev_b32 v175, 4, v0")
        if PR: o(f"s_add_u32 s52, s52, {NPROD*PR*8192}")
        for i in range(GQ):
            o(f"buffer_load_dwordx4 {vr(160+4*i,4)}, v175, s[48:51], s52 offen")
            o("s_add_u32 s52, s52, 8192")
    o("s_waitcnt lgkmcnt(0)"); o("s_barrier")
    stamp(2)
    for s in frags(W2, "v10", False):
        mfma(AH, 48+4*s, W2+4*s, None if s == 0 else AH)
        for v in range(2*s, 2*s+2): o(f"v_mul_f32 v{AQ+v}, s42, v{AQ+v}")
    o(f"s_cmp_eq_u32 s3, {NG}"); o("s_cbranch_scc1 K1_PACK")
    o("v_lshlrev_b32 v8, 11, v7"); o("v_lshl_add_u32 v8, v6, 2, v8")
    o("s_nop 5")
    for v in range(16):
        t = 32 + 2 * (v % 4)
        o(f"v_cvt_pk_bf16_f32 v{t}, v{AQ+v}, v{AH+v}")
        o(f"v_and_b32 v{t+1}, s43, v{t}")
        o(f"v_sub_f32 v{t}, v{t+1}, v{t}")
        o(f"v_add_f32 v{AH+v}, v{AH+v}, v{t}")
        o(f"v_cvt_pk_bf16_f32 v{AH+v}, v{AQ+v}, v{AH+v}")
        if v % 4 == 0: o(f"s_add_u32 s41, s40, {4096*(v//4)}")
        o(f"buffer_store_dword v{AH+v}, v8, s[44:47], s41 offen offset:{512*(v%4)} {TFLG}")
    stamp(3); stamp_out(0, 1)
    o("s_endpgm")
    lab("K1_PACK")
    srd(28, 20, 0x11000, WPACK_OFF)
    o("v_lshlrev_b32 v8, 4, v5")
    o("s_cmp_eq_u32 s37, 0"); o("s_cbranch_scc0 K1_PACKC")
    o("s_lshl_b32 s40, s38, 13")
    for s in range(8):
        if s % 4 == 0:
            o(f"s_add_u32 s41, s40, {s*1024}"); o(f"s_add_u32 s42, s40, {s*1024 + 32768}")
        o(f"buffer_store_dwordx4 {vr(W1+4*s,4)}, v8, s[28:31], s41 offen offset:{(s%4)*1024} {WK}")
        o(f"buffer_store_dwordx4 {vr(W2+4*s,4)}, v8, s[28:31], s42 offen offset:{(s%4)*1024} {WK}")
    o("s_endpgm")
    lab("K1_PACKC")
    o("v_lshlrev_b32 v12, 11, v7"); o("v_lshl_add_u32 v12, v6, 1, v12")
    o("s_lshl_b32 s40, s38, 6"); o("s_add_u32 s40, s40, 65536")
    for i in range(8):
        o(f"buffer_load_ushort v{16+i}, v12, s[24:27], s40 offen offset:{256*i}")
    o(f"s_mov_b32 s42, {hex(NLOG2E)}")
    o("s_waitcnt vmcnt(0)")
    for i in range(8):
        o(f"v_lshlrev_b32 v{16+i}, 16, v{16+i}")
        o(f"v_mul_f32 v{16+i}, s42, v{16+i}")
    for i in range(4):
        o(f"v_cvt_pk_bf16_f32 v{24+i}, v{16+2*i}, v{17+2*i}")
    o("s_lshl_b32 s40, s38, 10"); o("s_add_u32 s40, s40, 65536")
    o(f"buffer_store_dwordx4 v[24:27], v8, s[28:31], s40 offen {WK}")
    o("s_endpgm")
    if WARM:
        lab("K1_WARM")
        o("v_lshlrev_b32 v2, 4, v0")
        o(f"s_sub_u32 s3, s2, {NPROD + NG + 1}"); o(f"s_mul_i32 s52, s3, {XR*8192}"); o(f"s_add_u32 s52, s52, {(NPROD*PR + (NG+1)*GQ)*8192}")
        o("s_waitcnt lgkmcnt(0)")
        srd(48, 6, E * 32)
        ST = ([int(a[2:]) for a in sys.argv if a.startswith('sx')] + [0])[0]
        if ST:
            o(f"v_lshlrev_b32 v2, {ST}, v0")
            for i in range((XR * 8192 + (512 << ST) - 1) // (512 << ST)):
                o(f"buffer_load_dword v{16+i}, v2, s[48:51], s52 offen")
                o(f"s_add_u32 s52, s52, {512 << ST}")
        for i in range(0 if ST else XR):
            o(f"buffer_load_dwordx4 {vr(16+4*i,4)}, v2, s[48:51], s52 offen")
            o("s_add_u32 s52, s52, 8192")
        if 'wo' in sys.argv:
            srd(44, 18, N * 256); o(f"s_mul_i32 s52, s3, {10*8192}")
            for i in range(10):
                o(f"buffer_load_dwordx4 {vr(100+4*i,4)}, v2, s[44:47], s52 offen")
                o("s_add_u32 s52, s52, 8192")
        o("s_waitcnt vmcnt(0)")
        stamp_out(0, 2)
    lab("K1_END")
    o("s_endpgm")

CAP = 12
POOL = 0; POOL_BYTES = 32768
LUT = 32768; CNT = LUT + 4096; XS = CNT + 64
PX = XS + 40 * 272; UX = PX + 16384; EB = UX + 32768; K2_LDS = EB + 4 * CAP * 1024
ALT = "alt" in sys.argv
OFLG = ([a[2:].replace("_", " ") for a in sys.argv if a.startswith("of")] + [""])[0]
EFLG = ([a[2:].replace("_", " ") for a in sys.argv if a.startswith("ef")] + [""])[0]
GFLG = ([a[2:].replace("_", " ") for a in sys.argv if a.startswith("gf")] + [""])[0]
PFT = ([int(a[3:]) for a in sys.argv if a.startswith("pft")] + [0])[0]
PRIO = ([int(a[4:]) for a in sys.argv if a.startswith("prio")] + [0])[0]
def k2():
    kn = NAME + "_kernel"
    kstart(kn)
    o("s_cmp_ge_u32 s2, 256"); o("s_cbranch_scc1 K2_END")
    o("s_load_dwordx16 s[4:19], s[0:1], 0")
    o("s_load_dwordx2 s[20:21], s[0:1], 72")
    stamp_init()
    o("v_bfe_u32 v15, v0, 3, 6"); o("v_and_b32 v9, 7, v0"); o("v_lshlrev_b32 v9, 3, v9")
    o("v_lshl_add_u32 v9, v15, 7, v9"); o("v_lshrrev_b32 v4, 9, v0"); o("v_lshl_add_u32 v9, v4, 6, v9")
    o("v_lshrrev_b32 v4, 6, v0"); o("v_and_b32 v1, 63, v0")
    o("v_lshlrev_b32 v8, 4, v0")
    o("v_readfirstlane_b32 s3, v4")
    o("v_and_b32 v6, 31, v1"); o("v_lshrrev_b32 v7, 5, v1")
    o("s_lshr_b32 s60, s3, 2"); o("s_and_b32 s61, s3, 3")
    o("s_lshl_b32 s22, s2, 13")
    o("s_waitcnt lgkmcnt(0)")
    sW, sX, sE, sT, sO = 24, 28, 32, 36, 40
    srd(sW, 20, WPACK_OFF + 0x11000)
    EN = 12
    G = [80, 96, 112]; Z, ACC, RO, FR, EF, PF, CF = 16, 32, 48, 56, 68, 72, 76
    WF = [112 + 4*s for s in range(4)] + [56 + 4*s for s in range(4)]
    o(f"buffer_load_dwordx2 {vr(EN,2)}, v9, s[{sW}:{sW+3}], s22 offen")
    srd(sX, 4, N * 256)
    o("v_lshrrev_b32 v10, 4, v0"); o("v_and_b32 v11, 15, v0")
    o("v_lshlrev_b32 v5, 16, v10"); o("v_lshl_add_u32 v5, v11, 4, v5")
    o("s_lshl_b32 s62, s2, 8")
    o("s_cmp_ge_u32 s3, 10"); o("s_cbranch_scc1 K2_NOX")
    o(f"buffer_load_dwordx4 {vr(ACC,4)}, v5, s[{sX}:{sX+3}], s62 offen")
    lab("K2_NOX")
    o("v_lshlrev_b32 v14, 4, v1")
    o("s_lshl_b32 s63, s61, 10"); o(f"s_add_u32 s63, s63, {hex(WPACK_OFF+65536)}")
    o(f"buffer_load_dwordx4 {vr(CF,4)}, v14, s[{sW}:{sW+3}], s63 offen")
    def wload():
        o("s_cmp_ge_u32 s3, 8"); o("s_cbranch_scc1 K2_NOW")
        o("s_lshl_b32 s63, s3, 13"); o(f"s_add_u32 s63, s63, {hex(WPACK_OFF)}"); o("s_add_u32 s64, s63, 4096")
        for s in range(8):
            o(f"buffer_load_dwordx4 {vr(WF[s],4)}, v14, s[{sW}:{sW+3}], s{63 + s//4} offen offset:{(s%4)*1024}")
        lab("K2_NOW")
    WP = ([int(a[2:]) for a in sys.argv if a.startswith("wp")] + [0])[0]
    if WP == 0: wload()
    srd(sE, 6, E * 32); srd(sT, 20, TABLE_BYTES, TABLE_OFF); srd(sO, 18, N * 256)
    PW = ([int(a[2:]) for a in sys.argv if a.startswith("pw")] + [12])[0]
    if PFT:
        o(f"s_cmp_lt_u32 s3, {PW}"); o("s_cbranch_scc1 K2_NOPF")
        o("v_lshlrev_b32 v23, 7, v1")
        o("s_lshr_b32 s63, s2, 3"); o(f"s_mul_i32 s63, s63, {16-PW}"); o("s_add_u32 s63, s63, s3"); o(f"s_sub_u32 s63, s63, {PW}")
        o(f"s_mul_i32 s63, s63, {PFT*8192}")
        for i in range(PFT):
            o(f"buffer_load_dword v{G[2]}, v23, s[{sT}:{sT+3}], s63 offen")
            if i < PFT-1: o("s_add_u32 s63, s63, 8192")
        lab("K2_NOPF")
    for i in range(4):
        o(f"v_bfe_u32 v{16+i}, v0, {2*i}, 1"); o(f"v_bfe_u32 v20, v0, {2*i+1}, 1")
        o(f"v_lshl_or_b32 v{16+i}, v20, 16, v{16+i}")
        o(f"v_mul_u32_u24 v{16+i}, 0x3f80, v{16+i}")
    o("s_cmp_ge_u32 s3, 4"); o("s_cbranch_scc1 K2_NOLUT")
    o(f"ds_write_b128 v8, v[16:19] offset:{LUT}")
    lab("K2_NOLUT")
    o("s_lshl_b32 s63, s61, 7")
    o("v_lshlrev_b32 v2, 2, v6"); o("v_add_u32 v2, s63, v2")
    o("v_mov_b32 v3, v2")
    o(f"v_mul_u32_u24 v15, {CH}, v15")
    if 'xb' in sys.argv: o("s_lshl_b32 s63, s2, 9"); o("v_mov_b32 v15, s63")
    o("s_mov_b32 s72, 0")
    o("s_mov_b32 s73, 0")
    def pool_init():
        o("v_and_b32 v20, 16, v0"); o("v_cmp_eq_u32 vcc, 0, v20")
        o(f"v_mov_b32 v21, {hex(OOB)}"); o("v_mov_b32 v28, 0")
        o("v_cndmask_b32 v24, 0, v21, vcc")
        o("v_mov_b32 v29, 0"); o("v_mov_b32 v30, 0"); o("v_mov_b32 v31, 0")
        o("v_mov_b32 v25, v24"); o("v_mov_b32 v26, v24"); o("v_mov_b32 v27, v24")
        o(f"v_mov_b32 v20, {CNT}")
        for i in range(2):
            o(f"ds_write_b128 v8, v[24:27] offset:{POOL + i*16384}")
        o("ds_write_b128 v20, v[28:31]")
        o(f"v_add_u32 v21, {EB}, v8")
        for i in range(3): o(f"ds_write_b128 v21, v[28:31] offset:{i*16384}")
    if WP == 1: wload()
    pool_init()
    if WP == 2: wload()
    o("ds_write_b32 v20, v28 offset:16")
    o("v_mov_b32 v22, 1")
    o("v_mul_u32_u24 v5, 272, v10"); o("v_lshl_add_u32 v5, v11, 4, v5")
    o("s_mov_b32 s78, 1.0"); o("s_mov_b32 s79, 1.0")
    o("s_waitcnt lgkmcnt(0)"); o("s_barrier")
    if WP == 3: wload()
    o("s_cmp_ge_u32 s3, 8"); o("s_cbranch_scc1 K2_XW1")
    o("s_waitcnt vmcnt(9)"); o("s_branch K2_XW2")
    lab("K2_XW1"); o(f"s_waitcnt vmcnt({1+PFT})")
    if PFT: o(f"s_cmp_ge_u32 s3, {PW}"); o("s_cbranch_scc1 K2_B1"); o("s_waitcnt vmcnt(1)")
    o("s_cmp_ge_u32 s3, 10"); o("s_cbranch_scc1 K2_B1")
    lab("K2_XW2")
    o(f"ds_write_b128 v5, {vr(ACC,4)} offset:{XS}")
    o("s_mov_b64 exec, 1"); o("ds_add_u32 v20, v22 offset:16"); o("s_mov_b64 exec, -1")
    lab("K2_B1")
    if not ALT: stamp(1)
    o(f"v_cmp_eq_u32 vcc, -2, v{EN}")
    o("s_cbranch_vccz K2_COMPACT")
    o(f"v_mov_b32 v20, {CNT}"); o("v_mov_b32 v21, 1"); o("ds_write_b32 v20, v21 offset:8")
    lab("K2_COMPACT")
    o("s_setprio 3")
    o("v_and_b32 v20, 1, v0"); o("v_lshlrev_b32 v20, 4, v20"); o(f"v_mov_b32 v21, {hex(OOB)}")
    for i in range(2):
        e = EN + i
        o(f"v_cmp_gt_u32 s[{74+2*i}:{75+2*i}], -2, v{e}")
        o(f"v_lshrrev_b32 v{22+i}, 20, v{e}"); o(f"v_add_lshl_u32 v{22+i}, v{22+i}, v15, 5")
    for i in range(2):
        o(f"v_cndmask_b32 v{22+i}, v21, v{22+i}, s[{74+2*i}:{75+2*i}]")
    o("s_nop 0")
    for i in range(2):
        for p, qp in enumerate(["[0,0,2,2]", "[1,1,3,3]"]):
            o(f"v_add_u32_dpp v{G[1]+4*(2*i+p)}, v{22+i}, v20 quad_perm:{qp} row_mask:0xf bank_mask:0xf")
    def eload():
        for i in range(4):
            o(f"buffer_load_dwordx4 {vr(G[1]+4*i,4)}, v{G[1]+4*i}, s[{sE}:{sE+3}], 0 offen {EFLG}")
    EW = ([int(a[2:]) for a in sys.argv if a.startswith("ew")] + [8])[0]
    o(f"s_cmp_ge_u32 s3, {EW}"); o("s_cbranch_scc1 K2_ELATE")
    eload()
    lab("K2_ELATE")
    if not ALT: stamp(2)
    for i in range(2):
        e = EN + i
        o(f"v_and_b32 v{16+i}, 3, v{e}")
        o(f"v_lshlrev_b32 v{18+i}, 3, v{16+i}")
        o(f"v_bfm_b32 v{20+i}, 1, v{18+i}")
        o(f"v_cndmask_b32 v{20+i}, 0, v{20+i}, s[{74+2*i}:{75+2*i}]")
    o("v_add_u32 v22, v20, v21"); o("v_mov_b32 v23, v22")
    fill = []
    for i in range(2):
        e = EN + i
        fill += [f"v_bfe_u32 v{24+2*i}, v{e}, 6, 14", f"v_lshlrev_b32 v{24+2*i}, 9, v{24+2*i}",
                 f"v_bfe_u32 v{28+i}, v{e}, 2, 4", f"v_bfe_u32 v{30+i}, v{e}, 5, 1",
                 f"v_and_b32 v{25+2*i}, 3, v{28+i}", f"v_lshl_or_b32 v{25+2*i}, v{30+i}, 2, v{25+2*i}"]
    dpp = ["row_shr:1", "row_shr:2", "row_shr:4", "row_shr:8"]
    for j, d in enumerate(dpp):
        o(fill[2*j]); o(fill[2*j+1])
        o(f"v_add_u32_dpp v23, v23, v23 {d} row_mask:0xf bank_mask:0xf bound_ctrl:0")
    o(fill[8]); o(fill[9])
    o("v_add_u32_dpp v23, v23, v23 row_bcast:15 row_mask:0xa bank_mask:0xf")
    o(fill[10]); o(fill[11])
    o("v_add_u32_dpp v23, v23, v23 row_bcast:31 row_mask:0xc bank_mask:0xf")
    o("s_nop 0")
    o("v_readlane_b32 s64, v23, 63")
    o("v_sub_u32 v23, v23, v22")
    o("s_and_b32 s65, s64, 0xff"); o("s_bfe_u32 s66, s64, 0x80008"); o("s_lshl_b32 s66, s66, 16"); o("s_or_b32 s65, s65, s66")
    o("s_bfe_u32 s66, s64, 0x80010"); o("s_lshr_b32 s67, s64, 24"); o("s_lshl_b32 s67, s67, 16"); o("s_or_b32 s66, s66, s67")
    o("v_mov_b32 v48, s65"); o("v_mov_b32 v49, s66"); o(f"v_mov_b32 v50, {CNT}")
    o("s_mov_b64 exec, 1")
    o("ds_add_rtn_u64 v[48:49], v50, v[48:49]")
    o("s_mov_b64 exec, -1")
    o("v_add_u32 v22, v23, v20")
    o("v_bfe_u32 v20, v23, v18, 8"); o("v_bfe_u32 v21, v22, v19, 8")
    for i in range(2):
        o(f"v_bfm_b32 v{30+i}, 1, v{25+2*i}")
        o(f"v_bfe_u32 v{22+i}, v{28+i}, 2, 1"); o(f"v_lshlrev_b32 v{22+i}, 7, v{22+i}")
        o(f"v_lshlrev_b32 v{18+i}, 1, v{18+i}")
        o(f"v_mul_u32_u24 v{16+i}, {CAP*512}, v{16+i}")
    o(f"s_movk_i32 s68, {CAP*32}")
    o("s_waitcnt lgkmcnt(0)")
    o("v_readfirstlane_b32 s64, v48"); o("v_readfirstlane_b32 s65, v49")
    o("s_nop 1")
    for i in range(2):
        o(f"v_lshrrev_b64 v[48:49], v{18+i}, s[64:65]")
        o("v_and_b32 v48, 0xffff, v48"); o(f"v_add_u32 v48, v48, v{20+i}")
        o("v_cmp_gt_u32 vcc, s68, v48")
        o("v_lshrrev_b32 v49, 5, v48"); o("v_and_b32 v48, 31, v48")
        o(f"v_lshl_add_u32 v49, v49, 9, v{16+i}")
        o("v_lshl_add_u32 v50, v48, 2, v49")
        o(f"v_add_u32 v51, v50, v{22+i}")
        o("v_lshrrev_b32 v52, 3, v48"); o("v_and_b32 v53, 3, v48")
        o("v_lshl_or_b32 v52, v52, 2, v53"); o("v_lshlrev_b32 v52, v52, v0") if False else None
        o("v_lshl_or_b32 v52, v52, 2, v53") if False else None
        o("v_add_u32 v52, 8, v52"); o("v_bfm_b32 v52, 1, v52")
        o("v_bfe_u32 v53, v48, 2, 1"); o("v_lshl_add_u32 v53, v53, 7, v49")
        o(f"v_lshl_add_u32 v53, v{28+i}, 2, v53")
        o(f"v_bfrev_b32 v{EN+i}, 1")
        o("v_lshlrev_b32 v48, 4, v48")
        o(f"s_and_b64 exec, vcc, s[{74+2*i}:{75+2*i}]")
        o(f"v_lshl_add_u32 v{EN+i}, v49, 1, v48")
        o(f"ds_write_b32 v50, v{24+2*i}")
        o(f"ds_or_b32 v51, v{30+i} offset:256")
        o("ds_or_b32 v53, v52 offset:256")
        o("s_mov_b64 exec, -1")
    o(f"v_mov_b32 v17, {CNT}"); o("v_mov_b32 v16, 0x10000")
    o("s_mov_b64 exec, 1")
    o("ds_add_u32 v17, v16 offset:12")
    o("s_mov_b64 exec, -1")
    if not ALT: stamp(3)
    o(f"s_cmp_lt_u32 s3, {EW}"); o("s_cbranch_scc1 K2_EEARLY")
    eload()
    lab("K2_EEARLY")
    o("s_setprio 0")
    o("s_cmp_lg_u32 s72, 0"); o("s_cbranch_scc1 K2_B2")
    o("s_cmp_ge_u32 s3, 8"); o("s_cbranch_scc1 K2_B2")
    o("v_and_b32 v9, 15, v1"); o("v_min_u32 v9, 9, v9"); o("v_bfe_u32 v73, v1, 4, 1")
    o("v_lshl_add_u32 v9, v9, 2, v73"); o("v_mul_u32_u24 v9, 272, v9"); o("v_lshl_add_u32 v9, v7, 4, v9")
    lab("K2_SPINX")
    o("ds_read_b32 v16, v17 offset:16")
    o("s_waitcnt lgkmcnt(0)")
    o("v_readfirstlane_b32 s70, v16")
    o("s_cmp_lg_u32 s70, 10"); o("s_cbranch_scc1 K2_SPINX")
    XB = [G[0], G[0]+4, G[0]+8, G[0]+12, RO, RO+4, PF]
    def xrd(i): o(f"ds_read_b128 {vr(XB[i%7],4)}, v9 offset:{XS + 32*(i>>1) + 544*(i&1)}")
    for i in range(6): xrd(i)
    o("s_waitcnt vmcnt(4)")
    for i in range(16):
        if i + 6 < 16: xrd(i + 6)
        o(f"s_waitcnt lgkmcnt({min(6, 15-i)})")
        D = ACC if i & 1 else Z
        mfma(D, XB[i%7], WF[i>>1], None if i < 2 else D)
    o("s_cmp_ge_u32 s3, 4"); o("s_cbranch_scc1 K2_UOUT")
    o(f"s_mov_b32 s65, {hex(NLOG2E)}")
    o("s_lshl_b32 s70, s61, 10"); o("v_add_u32 v72, s70, v14")
    o("s_nop 7")
    for v in range(32): o(f"v_mul_f32 v{Z+v}, s65, v{Z+v}")
    for i in range(16): o(f"v_cvt_pk_bf16_f32 v{Z+i}, v{Z+2*i}, v{Z+2*i+1}")
    for l in range(4): o(f"ds_write_b128 v72, {vr(Z+4*l,4)} offset:{PX + l*4096}")
    o("s_branch K2_B2")
    lab("K2_UOUT")
    o("s_lshl_b32 s70, s61, 11"); o(f"s_add_u32 s70, s70, {UX}"); o("v_add_u32 v72, s70, v14")
    o("s_nop 8")
    for l in range(4):
        for hf in range(2): o(f"ds_write_b128 v72, {vr(Z+8*l+4*hf,4)} offset:{l*8192 + hf*1024}")
    lab("K2_B2")
    if not ALT: stamp(4)
    o(f"v_mov_b32 v48, {CNT}")
    o(f"s_mul_i32 s66, s60, {CAP*512}")
    o("v_lshl_add_u32 v4, v7, 4, s66")
    o("v_lshl_add_u32 v5, v1, 2, s66")
    o(f"s_lshl_b32 s66, s66, 1"); o(f"s_add_u32 s66, s66, {EB}")
    o("v_add_u32 v10, s66, v14")
    lab("K2_SPINA")
    o("ds_read_b128 v[52:55], v48")
    o("s_waitcnt lgkmcnt(0)")
    o("v_readfirstlane_b32 s70, v55")
    o("s_cmp_lt_u32 s70, 0x100000"); o("s_cbranch_scc1 K2_SPINA")
    o("v_readfirstlane_b32 s64, v52"); o("v_readfirstlane_b32 s65, v53"); o("v_readfirstlane_b32 s69, v54")
    o("s_and_b32 s70, s64, 0xffff"); o("s_lshr_b32 s71, s64, 16"); o("s_max_u32 s70, s70, s71")
    o("s_and_b32 s71, s65, 0xffff"); o("s_max_u32 s70, s70, s71"); o("s_lshr_b32 s71, s65, 16"); o("s_max_u32 s70, s70, s71")
    o("s_cmp_gt_u32 s70, s68"); o("s_cselect_b32 s69, 1, s69")
    o("s_cmp_lg_u32 s69, 0"); o("s_cbranch_scc1 K2_BAD")
    o("s_lshl_b32 s70, s60, 4"); o("s_lshr_b64 s[64:65], s[64:65], s70"); o("s_and_b32 s64, s64, 0xffff")
    o("s_add_u32 s64, s64, 31"); o("s_lshr_b32 s64, s64, 5")
    if ALT: stamp(1)
    if PRIO and PRIO < 4: o("s_setprio 3")
    if PRIO in (4, 5, 7, 8): o("s_setprio 2")
    if PRIO == 6: o("s_setprio 3")
    MK = [11, 12, 13]
    def issue_a():
        for c in range(2): o(f"ds_read_b128 {vr(RO+4*c,4)}, v4 offset:{32*c}")
    def issue_b(k, first):
        for hf in range(2):
            if hf == 1:
                for c in range(2):
                    o(f"ds_read_b128 {vr(RO+4*c,4)}, v4 offset:{32*(2+c)}")
                o(f"ds_read_b32 v{MK[k]}, v5 offset:256")
            for c in range(2):
                if hf == 1 or first: o(f"s_waitcnt lgkmcnt({1-c+hf})")
                for i in range(0, 4, 2):
                    o(f"v_lshl_add_u64 {vr(RO+4*c+i,2)}, {vr(RO+4*c+i,2)}, 0, v[2:3]")
                for i in range(0 if 'nold' in sys.argv else 4):
                    o(f"buffer_load_dword v{G[k]+8*hf+4*c+i}, v{RO+4*c+i}, s[{sT}:{sT+3}], 0 offen {GFLG}")
        o("v_add_u32 v4, 512, v4"); o("v_add_u32 v5, 512, v5")
    ER = ([int(a[2:]) for a in sys.argv if a.startswith("er")] + [2])[0]
    o("v_and_b32 v16, 1, v0"); o("v_lshlrev_b32 v16, 9, v16"); o(f"v_add_u32 v16, {EB}, v16")
    o(f"v_mov_b32 v17, {CNT}")
    for i in range(2):
        for p, qp in enumerate(["[0,0,2,2]", "[1,1,3,3]"]):
            o(f"v_add_u32_dpp v{18+2*i+p}, v{EN+i}, v16 quad_perm:{qp} row_mask:0xf bank_mask:0xf")
    o("v_mov_b32 v16, 1")
    o(f"s_cmp_lt_u32 s60, {ER}"); o("s_cselect_b32 s69, s64, 0")
    o("s_cmp_eq_u32 s69, 0"); o("s_cbranch_scc1 K2_EW0")
    lab("K2_I0")
    issue_a(); issue_b(0, True)
    if ALT: stamp(2)
    o("s_cmp_eq_u32 s69, 0"); o("s_cbranch_scc1 K2_I1")
    o("s_waitcnt vmcnt(16)"); o("s_branch K2_EW")
    lab("K2_EW0")
    o("s_waitcnt vmcnt(0)")
    lab("K2_EW")
    for i in range(4):
        o(f"v_cmpx_le_i32 vcc, 0, v{18+i}")
        o(f"ds_write_b128 v{18+i}, {vr(G[1]+4*i,4)}")
        o("s_mov_b64 exec, -1")
    o("s_mov_b64 exec, 1")
    o("s_waitcnt lgkmcnt(0)")
    o("ds_add_u32 v17, v16 offset:12")
    o("s_mov_b64 exec, -1")
    if ALT: stamp(3)
    o("s_cmp_lg_u32 s69, s64"); o("s_cbranch_scc1 K2_I0")
    lab("K2_I1")
    if PRIO in (2, 3): o("s_setprio 2")
    if PRIO == 4: o("s_setprio 1")
    o("s_cmp_lt_u32 s64, 2"); o("s_cbranch_scc1 K2_SPIN")
    issue_a(); issue_b(1, True)
    lab("K2_SPIN")
    if PRIO in (1, 2): o("s_setprio 1")
    lab("K2_SPINE")
    o("ds_read_b32 v16, v17 offset:12")
    o("s_waitcnt lgkmcnt(0)")
    o("v_readfirstlane_b32 s70, v16")
    o("s_cmp_lg_u32 s70, 0x100010"); o("s_cbranch_scc1 K2_SPINE")
    o("s_cmp_lg_u32 s73, 0"); o("s_cbranch_scc1 K2_LOOP0")
    o("s_mov_b32 s73, 1")
    o("s_lshl_b32 s70, s3, 10"); o("v_add_u32 v18, s70, v14")
    o(f"ds_read_b128 {vr(PF,4)}, v18 offset:{PX}")
    o("s_lshl_b32 s70, s3, 11"); o(f"s_add_u32 s70, s70, {UX}"); o("v_add_u32 v18, s70, v14")
    o(f"ds_read_b128 {vr(ACC,4)}, v18"); o(f"ds_read_b128 {vr(ACC+4,4)}, v18 offset:1024")
    for v in range(8, 16): o(f"v_mov_b32 v{ACC+v}, 0")
    if ALT: stamp(4)
    PK = "nopk" not in sys.argv
    def body(k):
        g = G[k]
        lab(f"K2_LOOP{k}")
        o("s_cmp_eq_u32 s64, 0"); o("s_cbranch_scc1 K2_BATCH_DONE")
        o(f"ds_read_b128 {vr(EF,4)}, v10")
        for i in range(3):
            o(f"v_lshlrev_b32_sdwa v9, 4, v{MK[k]} dst_sel:DWORD dst_unused:UNUSED_PAD src0_sel:DWORD src1_sel:BYTE_{i}")
            if 'nolut' not in sys.argv: o(f"ds_read_b128 {vr(FR+4*i,4)}, v9 offset:{LUT}")
        issue_a()
        o("v_add_u32 v10, 1024, v10")
        o("s_cmp_eq_u32 s64, 1"); o(f"s_cbranch_scc1 K2_W{k}")
        o("s_waitcnt vmcnt(16)")
        lab(f"K2_C{k}")
        for v in range(0, 16, 2): o(f"v_lshlrev_b64 {vr(Z+v,2)}, 16, {vr(g+v,2)}")
        o("s_sub_u32 s64, s64, 1")
        o("s_waitcnt lgkmcnt(0)")
        mfma(Z, EF, CF, Z); mfma(Z, FR, PF, Z)
        o("s_cmp_lt_u32 s64, 2"); o(f"s_cbranch_scc1 K2_N{k}")
        issue_b((k + 2) % 3, False)
        lab(f"K2_X{k}")
        for v in range(0 if 'notr' in sys.argv else 16): o(f"v_exp_f32 v{Z+v}, v{Z+v}")
        if PK:
            for v in range(0, 16, 2): o(f"v_pk_add_f32 {vr(Z+v,2)}, {vr(Z+v,2)}, s[78:79]")
        else:
            for v in range(16): o(f"v_add_f32 v{Z+v}, 1.0, v{Z+v}")
        for v in range(0 if 'notr' in sys.argv else 16): o(f"v_rcp_f32 v{Z+v}, v{Z+v}")
        if PK:
            for v in range(0, 16, 2): o(f"v_pk_mul_f32 {vr(Z+v,2)}, {vr(Z+v,2)}, {vr(g+v,2)}")
        else:
            for v in range(16): o(f"v_mul_f32 v{Z+v}, v{Z+v}, v{g+v}")
        for i in range(8): o(f"v_cvt_pk_bf16_f32 v{Z+i}, v{Z+2*i}, v{Z+2*i+1}")
        o("s_waitcnt lgkmcnt(0)")
        o("s_nop 0")
        mfma(ACC, FR+4, Z, ACC); mfma(ACC, FR+8, Z+4, ACC)
        if PRIO in (1, 2) and k == 0: o("s_setprio 0")
        if PRIO == 4:
            o("s_cmp_gt_u32 s64, 2"); o(f"s_cbranch_scc1 K2_PR{k}"); o("s_setprio 0")
            lab(f"K2_PR{k}")
        if PRIO == 6: o("s_setprio 2")
        if PRIO == 7:
            o("s_setprio 1"); o("s_cmp_gt_u32 s64, 2"); o(f"s_cbranch_scc1 K2_PR{k}"); o("s_setprio 0")
            lab(f"K2_PR{k}")
        if PRIO == 8:
            o("s_cmp_gt_u32 s64, 4"); o(f"s_cbranch_scc1 K2_PR{k}"); o("s_setprio 1")
            o("s_cmp_gt_u32 s64, 2"); o(f"s_cbranch_scc1 K2_PR{k}"); o("s_setprio 0")
            lab(f"K2_PR{k}")
        if PRIO in (3, 5, 6):
            o("s_cmp_gt_u32 s64, 3"); o(f"s_cbranch_scc1 K2_PR{k}"); o("s_setprio 1")
            o("s_cmp_gt_u32 s64, 1"); o(f"s_cbranch_scc1 K2_PR{k}"); o("s_setprio 0")
            lab(f"K2_PR{k}")
    for k in range(3): body(k)
    o("s_branch K2_LOOP0")
    for k in range(3):
        lab(f"K2_W{k}"); o("s_waitcnt vmcnt(0)"); o(f"s_branch K2_C{k}")
        lab(f"K2_N{k}"); o("s_nop 10"); o(f"s_branch K2_X{k}")
    lab("K2_BAD")
    o("s_cmp_eq_u32 s72, 0"); o("s_cselect_b32 s58, 0, s58"); o("s_movk_i32 s59, 2048"); o("s_cselect_b32 s59, s59, 256")
    o("s_mov_b32 s72, 1"); o("s_branch K2_SCAN")
    lab("K2_BATCH_DONE")
    o("s_cmp_eq_u32 s72, 0"); o("s_cbranch_scc1 K2_EPI")
    o("s_add_u32 s58, s58, s59"); o("s_movk_i32 s59, 2048")
    o(f"s_cmp_ge_u32 s58, {E}"); o("s_cbranch_scc1 K2_EPI")
    lab("K2_SCAN")
    o("s_waitcnt vmcnt(0) lgkmcnt(0)")
    srd(44, 8, E * 4); srd(48, 10, E * 4)
    o("s_lshl_b32 s57, s58, 2"); o("v_lshlrev_b32 v9, 3, v0")
    o("buffer_load_dwordx2 v[48:49], v9, s[48:51], s57 offen")
    o("buffer_load_dwordx2 v[50:51], v9, s[44:47], s57 offen")
    o("s_barrier")
    pool_init()
    o("v_mov_b32 v15, s58")
    o(f"s_sub_u32 s57, {E}, s58"); o("s_min_u32 s57, s57, s59")
    o("s_waitcnt vmcnt(0)")
    for i in range(2):
        o(f"v_lshl_add_u32 v20, v0, 1, {i}")
        o(f"v_and_b32 v21, 0xff, v{48+i}")
        o("v_cmp_eq_u32 vcc, s2, v21"); o("v_cmp_gt_u32 s[66:67], s57, v20")
        o("s_and_b64 vcc, vcc, s[66:67]")
        o(f"v_lshrrev_b32 v21, 8, v{48+i}")
        o(f"v_lshl_or_b32 v21, v{50+i}, 6, v21"); o("v_lshl_or_b32 v21, v20, 20, v21")
        o(f"v_cndmask_b32 v{EN+i}, -1, v21, vcc")
    o("s_waitcnt lgkmcnt(0)"); o("s_barrier")
    o("s_branch K2_COMPACT")
    lab("K2_EPI")
    o("s_waitcnt vmcnt(0) lgkmcnt(0)")
    o(f"s_mov_b32 s65, {hex(NLOG2E)}")
    o("v_lshlrev_b32 v9, 20, v7"); o("v_lshl_add_u32 v9, v6, 1, v9")
    o("s_lshl_b32 s63, s61, 6"); o("s_add_u32 s62, s62, s63"); o("s_lshl_b32 s63, s60, 16"); o("s_add_u32 s62, s62, s63")
    o("s_nop 7")
    for v in range(6): o(f"v_mul_f32 v{Z+v}, s65, v{ACC+v}")
    for v in range(6): o(f"v_exp_f32 v{Z+v}, v{Z+v}")
    for v in range(6): o(f"v_add_f32 v{Z+v}, 1.0, v{Z+v}")
    for v in range(6): o(f"v_rcp_f32 v{Z+v}, v{Z+v}")
    for v in range(6): o(f"v_mul_f32 v{Z+v}, v{Z+v}, v{ACC+v}")
    for v in range(6): o(f"v_cvt_pk_bf16_f32 v{Z+v}, v{Z+v}, v{Z+v}")
    for v in range(6):
        if v == 4: o("s_mov_b32 exec_hi, 0")
        o(f"s_add_u32 s63, s62, {((v&3) + 8*(v>>2)) << 18}")
        o(f"buffer_store_short v{Z+v}, v9, s[{sO}:{sO+3}], s63 offen {OFLG}")
    o("s_lshr_b32 s89, s3, 2") if STAMPS else None
    stamp_out(1, "s89")
    lab("K2_END")
    o("s_endpgm")

header(); k1(); k2()
L.append('.section .rodata,"a"')
kdesc("prep_kernel", 176 if GQ else 160, 102 if STAMPS else 56); kdesc(NAME + "_kernel", 128, 102 if STAMPS else 80)
out = sys.argv[1] if len(sys.argv) > 1 else "cdna_kernels/%s.s" % NAME
open(out, "w").write("\n".join(x for x in L if x is not None) + "\n")
```
